```python
import torch

def _softmax(x, axis=-1):
    return torch.softmax(x, dim=axis)
def _gelu(x):
    return torch.nn.functional.gelu(x, approximate="tanh")
def _silu(x):
    return torch.nn.functional.silu(x)
def _sigmoid(x):
    return torch.sigmoid(x)
def _layernorm(x, axis=-1, eps=1e-5):
    m = x.mean(dim=axis, keepdim=True)
    v = x.var(dim=axis, keepdim=True, unbiased=False)
    return (x - m) / torch.sqrt(v + eps)
def _scatter_add(tgt, idx, src, axis=0):
    return tgt.clone().index_add_(axis, idx, src)
def _segment_sum(src, seg, n):
    out = torch.zeros((n,) + src.shape[1:], dtype=src.dtype)
    return out.index_add_(0, seg, src)
def _pad(x, pw):
    flat = tuple(v for pair in reversed(pw) for v in pair)
    return torch.nn.functional.pad(x, flat)

kernel_name = 'concat_heads__mha_block__linear_kernel_hedgehog__prompt'

def setup_inputs():

    _w = (lambda a: (lambda t: t.to(torch.bfloat16) if t.is_floating_point() else t)(torch.as_tensor(a)))
    def _A_setup():
        B, S, D, H = 1, 2048, 448, 16
        return {
            "x": _w((lambda *s: torch.randn(*s, dtype=torch.bfloat16) * 0.4)(B, S, D)),
            "wqkv": _w((lambda *s: torch.randn(*s, dtype=torch.bfloat16) * 0.4)(D, 3 * D)),
            "wo": _w((lambda *s: torch.randn(*s, dtype=torch.bfloat16) * 0.05)(D, D)),
        }
    _A_in = _A_setup()

    def _B_setup():
        B, S, D, H = 1, 2048, 448, 16
        Dh = D // H
        return {
            "x": _w((lambda *s: torch.randn(*s, dtype=torch.bfloat16) * 0.8)(B, S, D)),
            "wqkv": _w((lambda *s: torch.randn(*s, dtype=torch.bfloat16) * 1.6)(D, 3 * D)),
            "w_phi": _w((lambda *s: torch.randn(*s, dtype=torch.bfloat16) * 1.6)(H, Dh, Dh) * (Dh ** -0.5)),
            "wo": _w((lambda *s: torch.randn(*s, dtype=torch.bfloat16) * 0.1)(D, D)),
        }
    _B_in = _B_setup()

    return {
        "A_x": _A_in["x"],
        "A_wqkv": _A_in["wqkv"],
        "A_wo": _A_in["wo"],
        "B_x": _B_in["x"],
        "B_wqkv": _B_in["wqkv"],
        "B_w_phi": _B_in["w_phi"],
        "B_wo": _B_in["wo"],
    }

def reference(A_x, A_wqkv, A_wo, B_x, B_wqkv, B_w_phi, B_wo):
    def _A_ref(x, wqkv, wo):
        B, S, D = x.shape
        H = 16
        Dh = D // H
        qkv = (lambda x, *d: x.permute(*d))((x @ wqkv).reshape(B, S, 3, H, Dh), 2, 0, 3, 1, 4)
        q, k, v = qkv[0], qkv[1], qkv[2]
        scores = torch.einsum("bhqd,bhkd->bhqk", q, k) * (Dh ** -0.5)
        p = _softmax(scores, axis=-1)
        o = torch.einsum("bhqk,bhkd->bhqd", p, v)
        return (lambda x, *d: x.permute(*d))(o, 0, 2, 1, 3).reshape(B, S, D) @ wo

    def _B_ref(x, wqkv, w_phi, wo):
        B, S, D = x.shape
        H = 16; Dh = D // H
        qkv = (lambda x, *d: x.permute(*d))((x @ wqkv).reshape(B, S, 3, H, Dh), 2, 0, 3, 1, 4)
        q, k, v = qkv[0], qkv[1], qkv[2]
        pq = torch.einsum("bhsd,hdf->bhsf", q, w_phi)
        pk = torch.einsum("bhsd,hdf->bhsf", k, w_phi)
        phi_q = torch.concatenate([_softmax(pq, axis=-1), _softmax(-pq, axis=-1)], axis=-1)
        phi_k = torch.concatenate([_softmax(pk, axis=-1), _softmax(-pk, axis=-1)], axis=-1)
        kv = torch.einsum("bhsf,bhsd->bhfd", phi_k, v)
        z  = torch.einsum("bhsf->bhf", phi_k)
        num = torch.einsum("bhqf,bhfd->bhqd", phi_q, kv)
        den = torch.einsum("bhqf,bhf->bhq", phi_q, z)[..., None] + 1e-6
        o = num / den
        return (lambda x, *d: x.permute(*d))(o, 0, 2, 1, 3).reshape(B, S, D) @ wo

    a = _A_ref(A_x, A_wqkv, A_wo)
    b = _B_ref(B_x, B_wqkv, B_w_phi, B_wo)
    return torch.concatenate([a, b], axis=-1)
```

```python
import re

TRANS = ("v_exp_f32", "v_log_f32", "v_rcp_f32", "v_rsq_f32", "v_sqrt_f32", "v_sin_f32", "v_cos_f32")
_reg_re = re.compile(r"^(-)?(\|)?([vas])(?:(\d+)|\[(\d+):(\d+)\])(\|)?$")

def parse_reg(tok):
    tok = tok.strip()
    if tok in ("vcc",): return [("s", "vcc")]
    if tok in ("vcc_lo", "vcc_hi"): return [("s", "vcc")]
    if tok in ("exec", "exec_lo", "exec_hi"): return [("s", "exec")]
    if tok == "m0": return [("s", "m0")]
    m = _reg_re.match(tok)
    if not m: return []
    f = m.group(3)
    if m.group(4) is not None: return [(f, int(m.group(4)))]
    return [(f, i) for i in range(int(m.group(5)), int(m.group(6)) + 1)]

class Ins:
    __slots__ = ("text", "op", "kind", "w", "r", "srcc", "states", "wide_store", "note")
    def __init__(self, text):
        self.text = text
        t = text.split(";")[0].strip()
        parts = t.split(None, 1)
        self.op = parts[0]
        ops = []
        if len(parts) > 1:
            raw = [x.strip() for x in parts[1].split(",")]
            for x in raw:
                ops.append(x.split()[0] if x else x)
            mods = parts[1]
        else:
            mods = ""
        op = self.op
        self.w = []; self.r = []; self.srcc = []; self.states = 1; self.wide_store = False
        R = [parse_reg(o) for o in ops]
        if op.startswith("v_mfma"):
            self.kind = "mfma"; self.w = R[0]; self.r = R[1] + R[2] + R[3]; self.srcc = R[3]
        elif op.startswith("v_"):
            self.kind = "trans" if op.replace("_e32", "").replace("_e64", "") in TRANS else "valu"
            if op.startswith("v_permlane32_swap") or op.startswith("v_permlane16_swap"):
                self.kind = "permlane"; self.w = R[0] + R[1]; self.r = R[0] + R[1]
            elif op.startswith("v_add_co") or op.startswith("v_sub_co") or op.startswith("v_addc_co"):
                self.w = R[0] + R[1]; self.r = sum(R[2:], [])
            else:
                self.w = R[0]; self.r = sum(R[1:], [])
                if op.startswith("v_fmac") or op.startswith("v_pk_fmac") or "UNUSED_PRESERVE" in mods:
                    self.r = self.r + R[0]
                if op.startswith("v_readfirstlane") or op.startswith("v_readlane"):
                    self.kind = "readlane"
        elif op.startswith("ds_"):
            self.kind = "ds"
            if op.startswith("ds_read") or op.startswith("ds_bpermute") or op.startswith("ds_swizzle"):
                self.w = R[0]; self.r = sum(R[1:], [])
            else:
                self.r = sum(R, [])
        elif op.startswith("buffer_") or op.startswith("global_"):
            self.kind = "vmem"
            islds = re.search(r"\blds\b", mods) is not None
            if "load" in op and not islds:
                self.w = R[0]; self.r = sum(R[1:], [])
            else:
                self.r = sum(R, [])
                if islds: self.r = self.r + [("s", "m0")]
                if "store" in op and ("x4" in op or "x3" in op):
                    self.wide_store = True
                    self.srcc = R[0] if op.startswith("buffer_") else R[1]
        elif op.startswith("s_"):
            self.kind = "salu"
            if op == "s_nop":
                self.states = int(ops[0], 0) + 1
            elif op.startswith("s_cmp") or op.startswith("s_cbranch") or op in ("s_branch", "s_waitcnt", "s_barrier", "s_endpgm", "s_setprio", "s_sleep"):
                self.r = sum(R, [])
            else:
                self.w = R[0] if R else []; self.r = sum(R[1:], [])
        else:
            raise ValueError("unknown instr: " + text)

class Kernel:
    def __init__(self, name):
        self.name = name
        self.items = []
        self.inserted = []
    def I(self, text):
        for line in text.strip().split("\n"):
            line = line.strip()
            if not line or line.startswith(";"):
                continue
            if line.endswith(":") or line.startswith("."):
                self.items.append(line)
            else:
                self.items.append(Ins(line))
    def label(self, l): self.items.append(l + ":")
    def comment(self, c): self.items.append("; " + c)

    def fix_hazards(self, verbose=True):
        out = []
        pos = 0
        lastw = {}
        last_srcc_read = {}
        last_store_data = {}
        for it in self.items:
            if isinstance(it, str):
                out.append(it); continue
            need = 0
            why = ""
            def req(p, dist, y):
                nonlocal need, why
                if p + dist + 1 > need:
                    need = p + dist + 1; why = y
            k = it.kind
            isvalu = k in ("valu", "trans", "permlane", "readlane")
            for r in it.r:
                if r not in lastw: continue
                p, wk = lastw[r]
                if wk == "mfma":
                    if k == "mfma":
                        if r in it.srcc:
                            if not (lastw[r + ("tuple",)] if False else False):
                                pass
                        if r not in it.srcc or mf_tuple.get(r) != tuple(it.srcc):
                            req(p, 12 if r not in it.srcc else 10, "mfma D->mfma src %s" % (r,))
                    else:
                        req(p, 12, "mfma D->%s read %s" % (k, r))
                elif wk in ("valu", "trans", "permlane", "readlane"):
                    if r[0] in ("v", "a"):
                        if k == "mfma": req(p, 2, "valu->mfma %s" % (r,))
                        if k == "permlane": req(p, 2, "valu->permlane %s" % (r,))
                        if k == "readlane": req(p, 1, "valu->readlane %s" % (r,))
                        if wk == "trans" and isvalu and k != "trans": req(p, 1, "trans->valu %s" % (r,))
                        if wk == "trans" and k == "trans": pass
                    else:
                        if isvalu: req(p, 2, "valu sgpr->valu %s" % (r,))
                        if k == "vmem": req(p, 5, "valu sgpr->vmem %s" % (r,))
                        if k == "salu": req(p, 1, "valu sgpr->salu (pad) %s" % (r,))
                elif wk == "salu":
                    if r == ("s", "m0") and k == "vmem": req(p, 1, "m0->lds dma")
            for w in it.w:
                if w in lastw:
                    p, wk = lastw[w]
                    if wk == "mfma":
                        if k == "mfma":
                            if mf_tuple.get(w) != tuple(it.w) :
                                req(p, 12, "mfma WAW overlap %s" % (w,))
                        else:
                            req(p, 12, "mfma D->%s write %s" % (k, w))
                if isvalu or k in ("ds", "vmem"):
                    if w in last_srcc_read and isvalu: req(last_srcc_read[w], 7, "mfma srcC WAR %s" % (w,))
                    if w in last_store_data: req(last_store_data[w], 2, "store data WAR %s" % (w,))
            if need > pos:
                n = need - pos
                self.inserted.append((n, why, it.text))
                while n > 0:
                    c = min(n, 16)
                    out.append(Ins("s_nop %d" % (c - 1)))
                    pos += c; n -= c
            out.append(it)
            for w in it.w:
                lastw[w] = (pos, k)
                if k == "mfma": mf_tuple[w] = tuple(it.w)
            if k == "mfma":
                for r in it.srcc: last_srcc_read[r] = pos
            if it.wide_store:
                for r in it.srcc: last_store_data[r] = pos
            pos += it.states
        self.items = out
        if verbose:
            for n, why, t in self.inserted:
                print("  [%s] inserted %d states (%s) before: %s" % (self.name, n, why, t))

    def text(self):
        L = []
        for it in self.items:
            if isinstance(it, str):
                L.append(it if (it.endswith(":") or it.startswith(".")) else "    " + it)
            else:
                L.append("    " + it.text)
        return "\n".join(L)

mf_tuple = {}

def vr(base, n=1, f="v"):
    return "%s%d" % (f, base) if n == 1 else "%s[%d:%d]" % (f, base, base + n - 1)
def ar(base, n=1): return vr(base, n, "a")
def sr(base, n=1): return vr(base, n, "s")
```

```python
import sys, struct
from asmlib import Kernel, vr, ar, sr

NAME = "concat_heads__mha_block__linear_kernel_hedgehog__prompt"
def f2u(x): return struct.unpack("<I", struct.pack("<f", x))[0]

KV_OFF   = 0
Q_OFF    = 4 << 20
PHIQ_OFF = 6 << 20
KVP_OFF  = 10 << 20
O_OFF    = 11 << 20
WS_USED  = 15 << 20

LOG2E = 1.4426950408889634
QSCALE = 28 ** -0.5 * LOG2E
MOFF = 40.0
ROUND_PQ = True

MF = "v_mfma_f32_32x32x16_bf16"
def mfma(d, a, b, c=None):
    return "%s %s, %s, %s, %s" % (MF, d, a, b, d if c is None else "0")

EXEC_ALL = "s_mov_b64 exec, -1"
EXEC_LO = "s_mov_b64 exec, 0xffffffff"
def exec_hi(k):
    k.I("s_mov_b32 exec_lo, 0\ns_mov_b32 exec_hi, -1")

def srd(k, s, lo, hi, nbytes):
    k.I("s_mov_b32 s%d, s%d" % (s, lo))
    k.I("s_mov_b32 s%d, s%d" % (s + 1, hi))
    k.I("s_mov_b32 s%d, 0x%x" % (s + 2, nbytes))
    k.I("s_mov_b32 s%d, 0x00020000" % (s + 3))

def cvt8(k, dst, src):
    for i in range(8):
        k.I("v_cvt_pk_bf16_f32 v%d, v%d, v%d" % (dst + i, src + 2 * i, src + 2 * i + 1))

def xhalf(k, op, x, t):
    k.I("v_mov_b32 v%d, v%d" % (t, x))
    k.I("v_permlane32_swap_b32 v%d, v%d" % (x, t))
    k.I("%s v%d, v%d, v%d" % (op, x, x, t))

def neg_max_pieces(k, m, t0, t1, d6, d7, s_mask):
    k.I("v_and_b32 v%d, s%d, v%d" % (t0, s_mask, m))
    k.I("v_sub_f32 v%d, v%d, v%d" % (m, m, t0))
    k.I("v_and_b32 v%d, s%d, v%d" % (t1, s_mask, m))
    k.I("v_sub_f32 v%d, v%d, v%d" % (m, m, t1))
    exec_hi(k)
    k.I("v_cvt_pk_bf16_f32 v%d, -v%d, -v%d" % (d6, t0, t1))
    k.I("v_cvt_pk_bf16_f32 v%d, -v%d, 0" % (d7, m))
    k.I(EXEC_ALL)

def gen_k1():
    k = Kernel("qkv_kernel")
    WPART = 28672
    XBASE = 3 * WPART
    LDS = XBASE + 8 * 8192
    S_X, S_W, S_WS, S_PHI = 12, 16, 20, 24
    sW, sHEAD, sBLK, sT, sBR = 28, 29, 30, 31, 32
    sWOFF, sXOFF, sXL, sTMP, sM = 33, 34, 35, 36, 37
    sC, sL, sMASK = 38, 40, 42
    sKV, sQ = 43, 44
    vL, vWD, vXD, vXR, vWR, vWR2, vL16 = 1, 2, 3, 7, 11, 12, 13
    vPADV = 14
    AQ, AK, AV = 16, 32, 48
    XF = (64, 80)
    WF = (96, 108)
    PHIRAW, PHI, IDN = 120, 136, 144
    T = 152
    k.I("""
    s_cmp_ge_u32 s2, 256
    s_cbranch_scc1 L1_end
    s_and_b32 s3, s2, 7
    s_lshr_b32 s%d, s3, 2
    s_mul_i32 s%d, s%d, 24
    s_load_dwordx4 s[4:7], s[0:1], s%d
    s_load_dwordx2 s[8:9], s[0:1], 72
    s_load_dwordx2 s[10:11], s[0:1], 40
    v_lshrrev_b32 v2, 6, v0
    v_and_b32 v%d, 63, v0
    """ % (sBR, sTMP, sBR, sTMP, vL))
    k.I("v_readfirstlane_b32 s%d, v2" % sW)
    k.I("""
    s_lshr_b32 s{tmp}, s2, 3
    s_and_b32 s{head}, s{tmp}, 7
    s_and_b32 s{m}, s3, 1
    s_lshl_b32 s{m}, s{m}, 3
    s_add_u32 s{head}, s{head}, s{m}
    s_lshr_b32 s{blk}, s{tmp}, 3
    s_and_b32 s{m}, s3, 2
    s_lshl_b32 s{m}, s{m}, 1
    s_add_u32 s{blk}, s{blk}, s{m}
    s_lshl_b32 s{t}, s{blk}, 3
    s_add_u32 s{t}, s{t}, s{w}
    """.format(tmp=sTMP, head=sHEAD, m=sM, blk=sBLK, t=sT, w=sW))
    k.I("""
    v_lshrrev_b32 v{a}, 2, v{l}
    v_mul_u32_u24 v{a}, 2688, v{a}
    v_and_b32 v{b}, 3, v{l}
    v_lshl_add_u32 v{wd}, v{b}, 4, v{a}
    """.format(a=T, b=T + 1, l=vL, wd=vWD))
    k.I("""
    v_lshrrev_b32 v{a}, 3, v{l}
    v_mul_u32_u24 v{a}, 896, v{a}
    v_and_b32 v{b}, 7, v{l}
    v_lshrrev_b32 v{c}, 4, v{l}
    v_xor_b32 v{b}, v{b}, v{c}
    v_lshl_add_u32 v{x0}, v{b}, 4, v{a}
    v_xor_b32 v{b}, 4, v{b}
    v_lshl_add_u32 v{x1}, v{b}, 4, v{a}
    v_add_u32 v{x1}, 7168, v{x1}
    v_add_u32 v{x2}, 14336, v{x0}
    v_add_u32 v{x3}, 14336, v{x1}
    """.format(a=T, b=T + 1, c=T + 2, l=vL, x0=vXD, x1=vXD + 1, x2=vXD + 2, x3=vXD + 3))
    k.I("""
    s_mul_i32 s{woff}, s{w}, {wrow16}
    s_mul_i32 s{tmp}, s{head}, 56
    s_add_u32 s{woff}, s{woff}, s{tmp}
    s_mul_i32 s{xoff}, s{t}, {xrow32}
    s_lshl_b32 s{xl}, s{w}, 13
    s_add_u32 s{xl}, s{xl}, {xbase}
    s_waitcnt lgkmcnt(0)
    """.format(woff=sWOFF, w=sW, wrow16=16 * 2688, tmp=sTMP, head=sHEAD, xoff=sXOFF, t=sT, xrow32=32 * 896, xl=sXL, xbase=XBASE))
    srd(k, S_X, 4, 5, 2048 * 896)
    srd(k, S_W, 6, 7, 448 * 2688)
    srd(k, S_WS, 8, 9, WS_USED)
    srd(k, S_PHI, 10, 11, 16 * 1568)

    def wdma(chunk):
        for p in range(3):
            k.I("s_lshl_b32 s%d, s%d, 10" % (sM, sW))
            k.I("s_add_u32 m0, s%d, %d" % (sM, p * WPART + chunk * 128 * 64))
            k.I("s_add_u32 s%d, s%d, %d" % (sTMP, sWOFF, chunk * 128 * 2688 + p * 896))
            k.I("buffer_load_dwordx4 v%d, s[%d:%d], s%d offen lds" % (vWD, S_W, S_W + 3, sTMP))
    def wdma_tail():
        k.I("""
        s_and_b32 s{m}, s{w}, 3
        s_mul_i32 s{tmp}, s{m}, {r16}
        s_mul_i32 s45, s{head}, 56
        s_add_u32 s{tmp}, s{tmp}, s45
        s_add_u32 s{tmp}, s{tmp}, {r384}
        s_lshl_b32 s{m}, s{m}, 10
        s_add_u32 s{m}, s{m}, {l384}
        s_lshr_b32 s45, s{w}, 2
        s_mul_i32 s46, s45, {wpart}
        s_add_u32 m0, s{m}, s46
        s_mul_i32 s46, s45, 896
        s_add_u32 s46, s46, s{tmp}
        buffer_load_dwordx4 v{wd}, s[{sw}:{sw3}], s46 offen lds
        s_add_u32 m0, s{m}, {wpart2}
        s_add_u32 s46, s{tmp}, 1792
        buffer_load_dwordx4 v{wd}, s[{sw}:{sw3}], s46 offen lds
        """.format(m=sM, w=sW, tmp=sTMP, r16=16 * 2688, head=sHEAD, r384=384 * 2688, l384=384 * 64, wpart=WPART,
                   wd=vWD, sw=S_W, sw3=S_W + 3, wpart2=2 * WPART))
    def xdma(j):
        k.I("s_add_u32 s%d, s%d, %d" % (sTMP, sXOFF, 128 * j))
        for i in range(4):
            k.I("s_add_u32 m0, s%d, %d" % (sXL, (j & 1) * 4096 + i * 1024))
            k.I("s_nop 0")
            k.I("buffer_load_dwordx4 v%d, s[%d:%d], s%d offen lds" % (vXD + i, S_X, S_X + 3, sTMP))

    k.I("s_cmp_eq_u32 s%d, 0" % sBR)
    k.I("s_cbranch_scc1 L1_nophi")
    k.I("""
    v_and_b32 v{a}, 31, v{l}
    v_lshrrev_b32 v{b}, 5, v{l}
    v_mul_u32_u24 v{b}, 224, v{b}
    v_lshl_add_u32 v{b}, v{a}, 1, v{b}
    v_cmp_gt_u32 vcc, 28, v{a}
    v_mov_b32 v{c}, 0x40000000
    s_mul_i32 s{tmp}, s{head}, 1568
    v_cndmask_b32 v{b}, v{c}, v{b}, vcc
    v_cmp_gt_u32 vcc, 32, v{l}
    s_nop 1
    v_cndmask_b32 v{c}, v{c}, v{b}, vcc
    """.format(a=T, b=T + 1, c=T + 2, l=vL, tmp=sTMP, head=sHEAD))
    for e in range(16):
        g, i = e >> 2, e & 3
        areg = T + 2 if g == 3 else T + 1
        k.I("buffer_load_ushort v%d, v%d, s[%d:%d], s%d offen offset:%d" % (PHIRAW + e, areg, S_PHI, S_PHI + 3, sTMP, (8 * g + i) * 56))
    k.label("L1_nophi")
    wdma(0); xdma(0); xdma(1); wdma(1); wdma(2); wdma_tail()

    k.I("""
    v_and_b32 v{s}, 31, v{l}
    v_lshrrev_b32 v{h}, 5, v{l}
    v_bfe_u32 v{c}, v{l}, 1, 3
    v_xor_b32 v{c}, v{c}, v{h}
    v_lshlrev_b32 v{d}, 7, v{s}
    v_add_u32 v{d}, s{xl}, v{d}
    v_lshl_add_u32 v{r0}, v{c}, 4, v{d}
    v_xor_b32 v{e}, 2, v{c}
    v_lshl_add_u32 v{r1}, v{e}, 4, v{d}
    v_xor_b32 v{e}, 4, v{c}
    v_lshl_add_u32 v{r2}, v{e}, 4, v{d}
    v_xor_b32 v{e}, 6, v{c}
    v_lshl_add_u32 v{r3}, v{e}, 4, v{d}
    v_lshlrev_b32 v{wr}, 9, v{h}
    v_bfe_u32 v{c}, v{l}, 2, 2
    v_lshl_add_u32 v{wr}, v{c}, 6, v{wr}
    v_bfe_u32 v{c}, v{l}, 4, 1
    v_lshl_add_u32 v{wr}, v{c}, 5, v{wr}
    v_and_b32 v{c}, 3, v{l}
    v_lshl_add_u32 v{wr}, v{c}, 3, v{wr}
    v_add_u32 v{wr2}, {p2}, v{wr}
    v_lshlrev_b32 v{l16}, 4, v{l}
    v_mov_b32 v{c}, 0x3f803f80
    v_cmp_eq_u32 vcc, 28, v{s}
    s_mov_b32 s{c0}, 0x{qs:x}
    s_mov_b32 s{c1}, 0x{qs:x}
    v_cndmask_b32 v{padv}, 0, v{c}, vcc
    s_mov_b32 s{l0}, 0x{lg:x}
    s_mov_b32 s{l1}, 0x{lg:x}
    s_mov_b32 s{mask}, 0xffff0000
    s_lshl_b32 s{kv}, s{head}, 6
    s_add_u32 s{kv}, s{kv}, s{t}
    """.format(s=T, h=T + 1, c=T + 2, d=T + 3, e=T + 4, l=vL, xl=sXL, r0=vXR, r1=vXR + 1, r2=vXR + 2, r3=vXR + 3,
               wr=vWR, wr2=vWR2, p2=2 * WPART, l16=vL16, padv=vPADV, c0=sC, c1=sC + 1, qs=f2u(QSCALE),
               l0=sL, l1=sL + 1, lg=f2u(LOG2E), mask=sMASK, kv=sKV, head=sHEAD, t=sT))
    k.I("v_lshlrev_b32 v%d, 2, v%d" % (T + 2, T + 1))
    k.I("v_sub_u32 v%d, v%d, v%d" % (T + 2, T, T + 2))
    k.I("v_mov_b32 v%d, 0x3f80" % (T + 3))
    k.I("v_mov_b32 v%d, 0x3f800000" % (T + 4))
    for p in range(8):
        base = 8 * (p >> 1) + 2 * (p & 1)
        k.I("v_cmp_eq_u32 vcc, %d, v%d" % (base, T + 2))
        k.I("v_cmp_eq_u32 s[46:47], %d, v%d" % (base + 1, T + 2))
        k.I("v_cndmask_b32 v%d, 0, v%d, vcc" % (IDN + p, T + 3))
        k.I("v_cndmask_b32 v%d, v%d, v%d, s[46:47]" % (IDN + p, IDN + p, T + 4))

    def xread(j):
        for kk in range(4):
            b = XF[j & 1] + 4 * kk
            k.I("ds_read_b128 v[%d:%d], v%d offset:%d" % (b, b + 3, vXR + kk, (j & 1) * 4096))
    def wread(ks):
        for p in range(3):
            b = WF[ks & 1] + 4 * p
            for jj in range(2):
                off = (p * WPART if p < 2 else 0) + ks * 1024 + jj * 256
                k.I("ds_read_b64_tr_b16 v[%d:%d], v%d offset:%d" % (b + 2 * jj, b + 2 * jj + 1, vWR2 if p == 2 else vWR, off))

    k.I("s_waitcnt vmcnt(12)")
    k.I("s_barrier")
    xread(0); wread(0)
    for ks in range(28):
        j, kk = ks >> 2, ks & 3
        nl = 0
        if kk == 3 and j < 6:
            k.I("s_waitcnt vmcnt(%d)" % (12 if j == 0 else (4 if j + 2 <= 6 else 0)))
            if j == 1: k.I("s_barrier")
            xread(j + 1); nl += 4
        if ks < 27:
            wread(ks + 1); nl += 6
        k.I("s_waitcnt lgkmcnt(%d)" % nl)
        if kk == 0 and j + 2 <= 6:
            xdma(j + 2)
        xf = vr(XF[j & 1] + 4 * kk, 4)
        wf = WF[ks & 1]
        c = 0 if ks == 0 else None
        k.I(mfma(vr(AQ, 16), vr(wf, 4), xf, c))
        k.I(mfma(vr(AK, 16), vr(wf + 4, 4), xf, c))
        k.I(mfma(vr(AV, 16), xf, vr(wf + 8, 4), c))

    QF, KF, VF = 64, 72, 80
    def vfrag():
        cvt8(k, VF, AV)
        k.I("s_mov_b32 exec_lo, 0xf0000000\ns_mov_b32 exec_hi, 0xf0000000")
        for i in range(8): k.I("v_mov_b32 v%d, v%d" % (VF + i, vPADV))
        k.I(EXEC_ALL)
    def store4(reg, soff, off):
        k.I("buffer_store_dwordx4 v[%d:%d], v%d, s[%d:%d], s%d offen offset:%d" % (reg, reg + 3, vL16, S_WS, S_WS + 3, soff, off))

    k.I("s_cmp_eq_u32 s%d, 0" % sBR)
    k.I("s_cbranch_scc0 L1_epiB")
    for i in range(8):
        k.I("v_pk_mul_f32 v[%d:%d], v[%d:%d], s[%d:%d]" % (AQ + 2 * i, AQ + 2 * i + 1, AQ + 2 * i, AQ + 2 * i + 1, sC, sC + 1))
    cvt8(k, QF, AQ)
    cvt8(k, KF, AK)
    exec_hi(k)
    k.I("v_mov_b32 v%d, 0" % (QF + 6))
    k.I("v_mov_b32 v%d, 0" % (QF + 7))
    k.I("v_mov_b32 v%d, 0x3f803f80" % (KF + 6))
    k.I("v_mov_b32 v%d, 0x3f80" % (KF + 7))
    k.I(EXEC_ALL)
    k.I(mfma(vr(AQ, 16), vr(KF, 4), vr(QF, 4), 0))
    k.I(mfma(vr(AQ, 16), vr(KF + 4, 4), vr(QF + 4, 4)))
    k.I("s_lshl_b32 s%d, s%d, 12" % (sTMP, sKV))
    store4(KF, sTMP, 0); store4(KF + 4, sTMP, 1024)
    vfrag()
    store4(VF, sTMP, 2048); store4(VF + 4, sTMP, 3072)
    m = T
    k.I("v_max3_f32 v%d, v%d, v%d, v%d" % (m, AQ, AQ + 1, AQ + 2))
    for i in range(3, 15, 2):
        k.I("v_max3_f32 v%d, v%d, v%d, v%d" % (m, m, AQ + i, AQ + i + 1))
    k.I("v_max_f32 v%d, v%d, v%d" % (m, m, AQ + 15))
    xhalf(k, "v_max_f32", m, T + 1)
    k.I("v_add_f32 v%d, 0x%x, v%d" % (m, f2u(MOFF), m))
    neg_max_pieces(k, m, T + 1, T + 2, QF + 6, QF + 7, sMASK)
    k.I("s_lshl_b32 s%d, s%d, 11" % (sTMP, sKV))
    k.I("s_add_u32 s%d, s%d, 0x%x" % (sTMP, sTMP, Q_OFF))
    store4(QF, sTMP, 0); store4(QF + 4, sTMP, 1024)
    k.I("s_endpgm")

    k.label("L1_epiB")
    k.I("s_nop 7\ns_nop 3")
    for p in range(8):
        k.I("v_lshl_or_b32 v%d, v%d, 16, v%d" % (PHI + p, PHIRAW + 2 * p + 1, PHIRAW + 2 * p))
    cvt8(k, QF, AQ)
    cvt8(k, KF, AK)
    k.I(mfma(vr(AQ, 16), vr(PHI, 4), vr(QF, 4), 0))
    k.I(mfma(vr(AQ, 16), vr(PHI + 4, 4), vr(QF + 4, 4)))
    k.I(mfma(vr(AK, 16), vr(PHI, 4), vr(KF, 4), 0))
    k.I(mfma(vr(AK, 16), vr(PHI + 4, 4), vr(KF + 4, 4)))
    vfrag()
    EP, EM = 160, 176
    MX, MN, TT = 152, 154, 156
    def feature(D, FP, FM):
        if ROUND_PQ:
            for i in range(8):
                k.I("v_cvt_pk_bf16_f32 v%d, v%d, v%d" % (EP + i, D + 2 * i, D + 2 * i + 1))
            for i in range(8):
                k.I("v_lshlrev_b32 v%d, 16, v%d" % (D + 2 * i, EP + i))
                k.I("v_and_b32 v%d, s%d, v%d" % (D + 2 * i + 1, sMASK, EP + i))
        for (op3, op2, r) in (("v_max3_f32", "v_max_f32", MX), ("v_min3_f32", "v_min_f32", MN)):
            k.I("%s v%d, v%d, v%d, v%d" % (op3, r, D, D + 1, D + 2))
            for i in range(3, 11, 2):
                k.I("%s v%d, v%d, v%d, v%d" % (op3, r, r, D + i, D + i + 1))
            k.I("%s v%d, v%d, v%d" % (op2, r, r, D + 11))
        k.I(EXEC_LO)
        for (op3, r) in (("v_max3_f32", MX), ("v_min3_f32", MN)):
            k.I("%s v%d, v%d, v%d, v%d" % (op3, r, r, D + 12, D + 13))
            k.I("%s v%d, v%d, v%d, v%d" % (op3, r, r, D + 14, D + 15))
        k.I(EXEC_ALL)
        k.I("v_mov_b32 v%d, v%d" % (TT, MX))
        k.I("v_mov_b32 v%d, v%d" % (TT + 1, MN))
        k.I("v_permlane32_swap_b32 v%d, v%d" % (MX, TT))
        k.I("v_permlane32_swap_b32 v%d, v%d" % (MN, TT + 1))
        k.I("v_max_f32 v%d, v%d, v%d" % (MX, MX, TT))
        k.I("v_min_f32 v%d, v%d, v%d" % (MN, MN, TT + 1))
        k.I("v_mul_f32 v%d, s%d, v%d" % (MX, sL, MX))
        k.I("v_mul_f32 v%d, s%d, v%d" % (MN, sL, MN))
        for i in range(8):
            k.I("v_pk_fma_f32 v[%d:%d], v[%d:%d], s[%d:%d], v[%d:%d] op_sel_hi:[1,1,0] neg_lo:[0,0,1] neg_hi:[0,0,1]" %
                (EP + 2 * i, EP + 2 * i + 1, D + 2 * i, D + 2 * i + 1, sL, sL + 1, MX, MX + 1))
            k.I("v_pk_fma_f32 v[%d:%d], v[%d:%d], s[%d:%d], v[%d:%d] op_sel_hi:[1,1,0] neg_lo:[1,0,0] neg_hi:[1,0,0]" %
                (EM + 2 * i, EM + 2 * i + 1, D + 2 * i, D + 2 * i + 1, sL, sL + 1, MN, MN + 1))
        for i in range(16):
            k.I("v_exp_f32 v%d, v%d" % (EP + i, EP + i))
            k.I("v_exp_f32 v%d, v%d" % (EM + i, EM + i))
        exec_hi(k)
        for i in range(12, 16):
            k.I("v_mov_b32 v%d, 0" % (EP + i))
        for i in range(12, 16):
            k.I("v_mov_b32 v%d, 0" % (EM + i))
        k.I(EXEC_ALL)
        for (E, r) in ((EP, MX), (EM, MN)):
            k.I("v_pk_add_f32 v[%d:%d], v[%d:%d], v[%d:%d]" % (r, r + 1, E, E + 1, E + 2, E + 3))
            for i in range(2, 8):
                k.I("v_pk_add_f32 v[%d:%d], v[%d:%d], v[%d:%d]" % (r, r + 1, r, r + 1, E + 2 * i, E + 2 * i + 1))
            k.I("v_add_f32 v%d, v%d, v%d" % (r, r, r + 1))
        k.I("v_mov_b32 v%d, v%d" % (TT, MX))
        k.I("v_mov_b32 v%d, v%d" % (TT + 1, MN))
        k.I("v_permlane32_swap_b32 v%d, v%d" % (MX, TT))
        k.I("v_permlane32_swap_b32 v%d, v%d" % (MN, TT + 1))
        k.I("v_add_f32 v%d, v%d, v%d" % (MX, MX, TT))
        k.I("v_add_f32 v%d, v%d, v%d" % (MN, MN, TT + 1))
        k.I("v_rcp_f32 v%d, v%d" % (MX, MX))
        k.I("v_rcp_f32 v%d, v%d" % (MN, MN))
        for (E, r, F) in ((EP, MX, FP), (EM, MN, FM)):
            for i in range(8):
                k.I("v_pk_mul_f32 v[%d:%d], v[%d:%d], v[%d:%d] op_sel_hi:[1,0]" % (E + 2 * i, E + 2 * i + 1, E + 2 * i, E + 2 * i + 1, r, r + 1))
            cvt8(k, F, E)
    FQP, FQM = 96, 104
    feature(AQ, FQP, FQM)
    k.I("s_lshl_b32 s%d, s%d, 12" % (sTMP, sKV))
    k.I("s_add_u32 s%d, s%d, 0x%x" % (sTMP, sTMP, PHIQ_OFF))
    for i in range(4): store4(FQP + 4 * i, sTMP, 1024 * i)
    FKP, FKM = 64, 72
    feature(AK, FKP, FKM)
    k.I(mfma(vr(AQ, 16), vr(FKP, 4), vr(IDN, 4), 0))
    k.I(mfma(vr(AQ, 16), vr(FKP + 4, 4), vr(IDN + 4, 4)))
    k.I(mfma(vr(AK, 16), vr(FKM, 4), vr(IDN, 4), 0))
    k.I(mfma(vr(AK, 16), vr(FKM + 4, 4), vr(IDN + 4, 4)))
    TP, TM = 112, 120
    cvt8(k, TP, AQ)
    k.I(mfma(vr(EP, 16), vr(TP, 4), vr(VF, 4), 0))
    k.I(mfma(vr(EP, 16), vr(TP + 4, 4), vr(VF + 4, 4)))
    cvt8(k, TM, AK)
    k.I(mfma(vr(EM, 16), vr(TM, 4), vr(VF, 4), 0))
    k.I(mfma(vr(EM, 16), vr(TM + 4, 4), vr(VF + 4, 4)))
    k.I("v_add_u32 v%d, s%d, v%d" % (T, sXL, vL16))
    for q in range(8):
        k.I("ds_write_b128 v%d, v[%d:%d] offset:%d" % (T, EP + 4 * q, EP + 4 * q + 3, 1024 * q))
    k.I("s_lshl_b32 s%d, s%d, 10" % (sM, sW))
    k.I("s_add_u32 s%d, s%d, %d" % (sTMP, sM, XBASE))
    k.I("v_add_u32 v%d, s%d, v%d" % (T, sTMP, vL16))
    k.I("s_waitcnt lgkmcnt(0)")
    k.I("s_barrier")
    for w in range(8):
        k.I("ds_read_b128 v[%d:%d], v%d offset:%d" % (16 + 4 * w, 19 + 4 * w, T, 8192 * w))
    k.I("""
    s_lshl_b32 s{tmp}, s{head}, 3
    s_add_u32 s{tmp}, s{tmp}, s{blk}
    s_lshl_b32 s{tmp}, s{tmp}, 13
    s_add_u32 s{tmp}, s{tmp}, s{m}
    s_add_u32 s{tmp}, s{tmp}, 0x{off:x}
    """.format(tmp=sTMP, head=sHEAD, blk=sBLK, m=sM, off=KVP_OFF))
    for w in range(1, 8):
        k.I("s_waitcnt lgkmcnt(%d)" % (7 - w))
        k.I("v_pk_add_f32 v[16:17], v[16:17], v[%d:%d]" % (16 + 4 * w, 17 + 4 * w))
        k.I("v_pk_add_f32 v[18:19], v[18:19], v[%d:%d]" % (18 + 4 * w, 19 + 4 * w))
    store4(16, sTMP, 0)
    k.label("L1_end")
    k.I("s_endpgm")
    return k, dict(grid=256, block=512, lds=LDS, vgpr=192, agpr=0, sgpr=48)

def gen_k2(R=8):
    k = Kernel("attn_kernel")
    S_WS, S_KV = 4, 8
    sW, sHEAD, sQB, sTMP, sT, sU, sKVB, sP, sMASK, sFLAG = 12, 13, 14, 15, 16, 17, 18, 19, 20, 21
    vL16 = 1
    Q = {"a": 4, "b": 12}
    S = {"a": 20, "b": 36}
    P = {"a": 52, "b": 60}
    O = {"a": 68, "b": 84}
    PART = 100
    T = 164
    KVF = 180
    PHQ = 128
    def KR(i, f): return ar((i % R) * 16 + 4 * f, 4)
    def VR(i, f): return ar((i % R) * 16 + 8 + 4 * f, 4)
    NT = 32
    k.I("""
    s_cmp_ge_u32 s2, 256
    s_cbranch_scc1 L2_end
    s_load_dwordx2 s[0:1], s[0:1], 72
    v_lshrrev_b32 v2, 6, v0
    v_and_b32 v1, 63, v0
    v_lshlrev_b32 v1, 4, v1
    v_readfirstlane_b32 s{w}, v2
    s_and_b32 s{head}, s2, 7
    s_lshl_b32 s{head}, s{head}, 1
    s_lshr_b32 s{tmp}, s2, 7
    s_add_u32 s{head}, s{head}, s{tmp}
    s_bfe_u32 s{qb}, s2, 0x40003
    s_lshr_b32 s{u}, s{w}, 1
    s_and_b32 s{tmp}, s{w}, 1
    s_lshl_b32 s{tmp}, s{tmp}, 1
    s_lshl_b32 s{t}, s{qb}, 2
    s_add_u32 s{t}, s{t}, s{tmp}
    s_lshl_b32 s{tmp}, s{head}, 6
    s_add_u32 s{t}, s{t}, s{tmp}
    s_lshl_b32 s{kvb}, s{head}, 18
    s_lshl_b32 s{tmp}, s{u}, 17
    s_add_u32 s{p}, s{kvb}, s{tmp}
    s_lshl_b32 s{tmp}, s{t}, 11
    s_add_u32 s{tmp}, s{tmp}, 0x{qoff:x}
    s_waitcnt lgkmcnt(0)
    """.format(w=sW, head=sHEAD, tmp=sTMP, qb=sQB, u=sU, t=sT, kvb=sKVB, p=sP, qoff=Q_OFF))
    srd(k, S_WS, 0, 1, WS_USED)
    def ld(dst, soff, off):
        k.I("buffer_load_dwordx4 %s, v%d, s[%d:%d], s%d offen offset:%d" % (dst, vL16, S_WS, S_WS + 3, soff, off))
    issued = []
    def LD(tag, dst, soff, off):
        ld(dst, soff, off); issued.append(tag)
    def wait_for(tags):
        idx = max(i for i, t in enumerate(issued) if t in tags)
        n = len(issued) - 1 - idx
        k.I("s_waitcnt vmcnt(%d)" % n)
    for i, (x, f) in enumerate((("a", 0), ("a", 1), ("b", 0), ("b", 1))):
        if i == 2:
            pass
        LD("Q" + x, vr(Q[x] + 4 * f, 4), sTMP, 1024 * i)
        if i == 1:
            LD("K0", KR(0, 0), sP, 0); LD("K0", KR(0, 1), sP, 1024)
    sADR = 24
    def tile_soff(i):
        k.I("s_add_u32 s%d, s%d, %d" % (sADR + (i & 1), sP, 4096 * i))
        return sADR + (i & 1)
    def loadV(i, s):
        LD("V%d" % i, VR(i, 0), s, 2048); LD("V%d" % i, VR(i, 1), s, 3072)
    def loadK(i, s):
        LD("K%d" % i, KR(i, 0), s, 0); LD("K%d" % i, KR(i, 1), s, 1024)
    loadV(0, sP)
    for i in range(1, R):
        s = tile_soff(i)
        loadK(i, s)
        if i < R - 1: loadV(i, s)
    side = []
    sPB, sPQ = 26, 27
    k.I("""
    s_lshl_b32 s{pb}, s{head}, 16
    s_lshl_b32 s{tmp}, s{w}, 11
    s_add_u32 s{pb}, s{pb}, s{tmp}
    s_add_u32 s{pb}, s{pb}, 0x{kvp:x}
    s_add_u32 s{t}, s{t}, s{u}
    s_lshl_b32 s{pq}, s{t}, 12
    s_add_u32 s{pq}, s{pq}, 0x{phq:x}
    s_mov_b32 s{mask}, 0xffff0000
    s_mov_b32 s{flag}, 0
    """.format(pb=sPB, head=sHEAD, tmp=sTMP, w=sW, kvp=KVP_OFF, t=sT, u=sU, pq=sPQ, phq=PHIQ_OFF, mask=sMASK, flag=sFLAG))
    for blk in range(8):
        for q in range(2):
            side.append(("part", vr(PART + 8 * blk + 4 * q, 4), blk, q))
    for f in range(4):
        side.append(("phq", ar(PHQ + 4 * f, 4), None, f))
    def side_load():
        if not side: return
        tag, dst, blk, q = side.pop(0)
        if tag == "part":
            k.I("s_add_u32 s%d, s%d, %d" % (sTMP, sPB, 8192 * blk))
            LD("side", dst, sTMP, 1024 * q)
        else:
            LD("side", dst, sPQ, 1024 * q)

    def qk(x, i):
        return [mfma(vr(S[x], 16), KR(i, 0), vr(Q[x], 4), 0), mfma(vr(S[x], 16), KR(i, 1), vr(Q[x] + 4, 4))]
    def pv(x, i, first=False):
        return [mfma(vr(O[x], 16), VR(i, 0), vr(P[x], 4), 0 if first else None), mfma(vr(O[x], 16), VR(i, 1), vr(P[x] + 4, 4))]
    def phase(x, mf, extra):
        groups = []
        for g in range(4):
            L = []
            for e in range(4):
                L.append("v_exp_f32 v%d, v%d" % (S[x] + 4 * g + e, S[x] + 4 * g + e))
            groups.append(L)
        extra = list(extra)
        def cv(n): return "v_cvt_pk_bf16_f32 v%d, v%d, v%d" % (P[x] + n, S[x] + 2 * n, S[x] + 2 * n + 1)
        for g in range(4):
            if g < len(mf) and mf[g] is not None: k.I(mf[g])
            k.I(groups[g][0])
            if extra: extra.pop(0)()
            k.I(groups[g][1])
            if g > 0: k.I(cv(2 * g - 1))
            k.I(groups[g][2])
            if extra: extra.pop(0)()
            k.I(groups[g][3])
            k.I(cv(2 * g))
        k.I(cv(7))
        for e in extra: e()

    wait_for(["Qa", "K0"])
    for m in qk("a", 0): k.I(m)
    wait_for(["Qb"])
    for i in range(NT):
        mfA = qk("b", i) + (pv("b", i - 1, first=(i == 1)) if i > 0 else [])
        exA = []
        if i >= 1: exA.append(side_load)
        phase("a", mfA, exA)
        need = ["V%d" % i] + (["K%d" % (i + 1)] if i + 1 < NT else [])
        wait_for(need)
        mfB = (qk("a", i + 1) if i + 1 < NT else [None, None]) + pv("a", i, first=(i == 0))
        exB = []
        if i - 1 + R < NT:
            def f1(i=i):
                s = tile_soff(i - 1 + R); LD("V%d" % (i - 1 + R), VR(i - 1 + R, 0), s, 2048)
            def f2(i=i):
                LD("V%d" % (i - 1 + R), VR(i - 1 + R, 1), sADR + ((i - 1 + R) & 1), 3072)
            exB += [f1, f2]
        if i + R < NT:
            def f3(i=i):
                s = tile_soff(i + R); LD("K%d" % (i + R), KR(i + R, 0), s, 0)
            def f4(i=i):
                LD("K%d" % (i + R), KR(i + R, 1), sADR + ((i + R) & 1), 1024)
            exB += [f3, f4]
        phase("b", mfB, exB)
    for m in pv("b", NT - 1): k.I(m)
    assert not side
    k.I("s_waitcnt vmcnt(0)")
    for blk in range(1, 8):
        for q in range(4):
            k.I("v_pk_add_f32 v[%d:%d], v[%d:%d], v[%d:%d]" % (PART + 2 * q, PART + 2 * q + 1, PART + 2 * q, PART + 2 * q + 1,
                                                            PART + 8 * blk + 2 * q, PART + 8 * blk + 2 * q + 1))
    for q in range(4):
        k.I("v_cvt_pk_bf16_f32 v%d, v%d, v%d" % (T + q, PART + 2 * q, PART + 2 * q + 1))
    k.I("s_lshl_b32 s%d, s%d, 10" % (sTMP, sW))
    k.I("v_add_u32 v2, s%d, v%d" % (sTMP, vL16))
    k.I("ds_write_b128 v2, v[%d:%d] offset:16384" % (T, T + 3))
    k.I("s_lshl_b32 s%d, s%d, 12" % (sTMP, sW))
    k.I("v_add_u32 v2, s%d, v%d" % (sTMP, vL16))
    k.I("s_xor_b32 s%d, s%d, 0x2000" % (sTMP, sTMP))
    k.I("v_add_u32 v3, s%d, v%d" % (sTMP, vL16))
    k.I("s_cmp_eq_u32 s%d, 0" % sU)
    k.I("s_cbranch_scc1 L2_sendb")
    for q in range(4):
        k.I("ds_write_b128 v2, v[%d:%d] offset:%d" % (O["a"] + 4 * q, O["a"] + 4 * q + 3, 1024 * q))
    k.I("s_nop 1")
    for i in range(16): k.I("v_mov_b32 v%d, v%d" % (O["a"] + i, O["b"] + i))
    for i in range(8): k.I("v_mov_b32 v%d, v%d" % (Q["a"] + i, Q["b"] + i))
    k.I("s_branch L2_sent")
    k.label("L2_sendb")
    for q in range(4):
        k.I("ds_write_b128 v2, v[%d:%d] offset:%d" % (O["b"] + 4 * q, O["b"] + 4 * q + 3, 1024 * q))
    k.label("L2_sent")
    k.I("s_waitcnt lgkmcnt(0)")
    k.I("s_barrier")
    for f in range(4):
        k.I("ds_read_b128 v[%d:%d], v%d offset:%d" % (KVF + 4 * f, KVF + 4 * f + 3, vL16, 16384 + 1024 * f))
    for q in range(4):
        k.I("ds_read_b128 v[%d:%d], v3 offset:%d" % (O["b"] + 4 * q, O["b"] + 4 * q + 3, 1024 * q))
    k.I("s_waitcnt lgkmcnt(4)")
    NB = S["a"]
    for f in range(4):
        k.I(mfma(vr(NB, 16), vr(KVF + 4 * f, 4), ar(PHQ + 4 * f, 4), 0 if f == 0 else None))
    k.I("s_waitcnt lgkmcnt(0)")
    OA = O["a"]
    for i in range(8):
        k.I("v_pk_add_f32 v[%d:%d], v[%d:%d], v[%d:%d]" % (OA + 2 * i, OA + 2 * i + 1, OA + 2 * i, OA + 2 * i + 1, O["b"] + 2 * i, O["b"] + 2 * i + 1))
    k.I("""
    s_and_b32 s{tmp}, s{t}, 63
    s_lshl_b32 s{tmp}, s{tmp}, 4
    s_add_u32 s{tmp}, s{tmp}, s{head}
    s_lshl_b32 s{tmp}, s{tmp}, 11
    s_add_u32 s28, s{tmp}, 0x{oa:x}
    s_add_u32 s29, s{tmp}, 0x{ob:x}
    """.format(tmp=sTMP, t=sT, head=sHEAD, oa=O_OFF, ob=O_OFF + (2 << 20)))
    k.label("L2_check")
    k.I("v_max3_f32 v%d, |v%d|, |v%d|, |v%d|" % (T, OA, OA + 1, OA + 2))
    for i in range(3, 15, 2):
        k.I("v_max3_f32 v%d, v%d, |v%d|, |v%d|" % (T, T, OA + i, OA + i + 1))
    k.I("v_max_f32 v%d, v%d, |v%d|" % (T, T, OA + 15))
    k.I("v_pk_add_f32 v[%d:%d], v[%d:%d], v[%d:%d]" % (T + 2, T + 3, OA, OA + 1, OA + 2, OA + 3))
    for i in range(2, 8):
        k.I("v_pk_add_f32 v[%d:%d], v[%d:%d], v[%d:%d]" % (T + 2, T + 3, T + 2, T + 3, OA + 2 * i, OA + 2 * i + 1))
    k.I("v_add_f32 v%d, v%d, v%d" % (T + 2, T + 2, T + 3))
    k.I("v_mov_b32 v%d, 0x7e800000" % (T + 1))
    k.I("v_cmp_nlt_f32 vcc, v%d, v%d" % (T, T + 1))
    k.I("v_cmp_u_f32 s[30:31], v%d, v%d" % (T + 2, T + 2))
    k.I("s_or_b64 vcc, vcc, s[30:31]")
    k.I("s_cmp_lg_u32 s%d, 0" % sFLAG)
    k.I("s_cbranch_scc1 L2_norm")
    k.I("s_cbranch_vccnz L2_slow")
    k.label("L2_norm")
    def normalise(X, soff, eps):
        k.I("v_mov_b32 v%d, v%d" % (T, X + 12))
        k.I("v_mov_b32 v%d, v%d" % (T + 2, X + 12))
        k.I("v_permlane32_swap_b32 v%d, v%d" % (T, T + 2))
        if eps: k.I("v_add_f32 v%d, 0x%x, v%d" % (T + 2, f2u(1e-6), T + 2))
        k.I("v_rcp_f32 v%d, v%d" % (T + 2, T + 2))
        for i in range(8):
            k.I("v_pk_mul_f32 v[%d:%d], v[%d:%d], v[%d:%d] op_sel_hi:[1,0]" % (X + 2 * i, X + 2 * i + 1, X + 2 * i, X + 2 * i + 1, T + 2, T + 3))
        F = P["a"] if not eps else P["b"]
        cvt8(k, F, X)
        exec_hi(k)
        k.I("v_mov_b32 v%d, 0" % (F + 6))
        k.I("v_mov_b32 v%d, 0" % (F + 7))
        k.I(EXEC_ALL)
        for f in range(2):
            k.I("buffer_store_dwordx4 v[%d:%d], v%d, s[%d:%d], s%d offen offset:%d" % (F + 4 * f, F + 4 * f + 3, vL16, S_WS, S_WS + 3, soff, 1024 * f))
    normalise(OA, 28, False)
    normalise(NB, 29, True)
    k.label("L2_end")
    k.I("s_endpgm")

    k.label("L2_slow")
    SS = S["b"]
    k.I("s_mov_b32 s%d, 1" % sFLAG)
    exec_hi(k)
    k.I("v_mov_b32 v%d, 0" % (Q["a"] + 6))
    k.I("v_mov_b32 v%d, 0" % (Q["a"] + 7))
    k.I(EXEC_ALL)
    k.I("v_mov_b32 v%d, 0xff800000" % T)
    k.I("s_mov_b32 s%d, s%d" % (sP, sKVB))
    k.I("s_add_u32 s%d, s%d, 0x40000" % (sTMP, sKVB))
    k.label("L2_slow1")
    ld(ar(0, 4), sP, 0); ld(ar(4, 4), sP, 1024)
    k.I("s_waitcnt vmcnt(0)")
    k.I(mfma(vr(SS, 16), ar(0, 4), vr(Q["a"], 4), 0))
    k.I(mfma(vr(SS, 16), ar(4, 4), vr(Q["a"] + 4, 4)))
    for i in range(0, 16, 2):
        k.I("v_max3_f32 v%d, v%d, v%d, v%d" % (T, T, SS + i, SS + i + 1))
    k.I("s_add_u32 s%d, s%d, 4096" % (sP, sP))
    k.I("s_cmp_lt_u32 s%d, s%d" % (sP, sTMP))
    k.I("s_cbranch_scc1 L2_slow1")
    xhalf(k, "v_max_f32", T, T + 1)
    neg_max_pieces(k, T, T + 1, T + 2, Q["a"] + 6, Q["a"] + 7, sMASK)
    for i in range(16): k.I("v_mov_b32 v%d, 0" % (OA + i))
    k.I("s_mov_b32 s%d, s%d" % (sP, sKVB))
    k.label("L2_slow2")
    for f in range(4): ld(ar(4 * f, 4), sP, 1024 * f)
    k.I("s_waitcnt vmcnt(0)")
    k.I(mfma(vr(SS, 16), ar(0, 4), vr(Q["a"], 4), 0))
    k.I(mfma(vr(SS, 16), ar(4, 4), vr(Q["a"] + 4, 4)))
    for i in range(16): k.I("v_exp_f32 v%d, v%d" % (SS + i, SS + i))
    cvt8(k, P["a"], SS)
    k.I(mfma(vr(OA, 16), ar(8, 4), vr(P["a"], 4)))
    k.I(mfma(vr(OA, 16), ar(12, 4), vr(P["a"] + 4, 4)))
    k.I("s_add_u32 s%d, s%d, 4096" % (sP, sP))
    k.I("s_cmp_lt_u32 s%d, s%d" % (sP, sTMP))
    k.I("s_cbranch_scc1 L2_slow2")
    k.I("s_nop 7\ns_nop 7")
    k.I("s_branch L2_norm")
    return k, dict(grid=256, block=256, lds=20480, vgpr=256, agpr=144, sgpr=40)

def gen_k3():
    k = Kernel("oproj_kernel")
    PL = 480 * 64
    S_WO, S_WS, S_OUT = 8, 12, 16
    sW, sBR, sRB, sCG, sTMP, sWO, sO, sM = 20, 21, 22, 23, 24, 25, 26, 27
    vL, vL16, vWD, vWR, vST = 1, 2, 3, 4, 5
    ACC = (16, 32)
    WF = 48
    T = 80
    k.I("""
    s_cmp_ge_u32 s2, 224
    s_cbranch_scc1 L3_end
    s_and_b32 s3, s2, 7
    s_lshr_b32 s{br}, s3, 2
    s_lshl_b32 s{tmp}, s{br}, 5
    s_add_u32 s{tmp}, s{tmp}, 16
    s_load_dwordx2 s[4:5], s[0:1], s{tmp}
    s_load_dwordx2 s[6:7], s[0:1], 72
    s_load_dwordx2 s[0:1], s[0:1], 56
    v_lshrrev_b32 v2, 6, v0
    v_and_b32 v{l}, 63, v0
    v_readfirstlane_b32 s{w}, v2
    v_lshlrev_b32 v{l16}, 4, v{l}
    v_lshrrev_b32 v{a}, 2, v{l}
    v_mul_u32_u24 v{a}, 896, v{a}
    v_and_b32 v{b}, 3, v{l}
    v_lshl_add_u32 v{wd}, v{b}, 4, v{a}
    s_and_b32 s{rb}, s3, 3
    s_lshl_b32 s{rb}, s{rb}, 2
    s_bfe_u32 s{tmp}, s2, 0x20003
    s_add_u32 s{rb}, s{rb}, s{tmp}
    s_lshr_b32 s{cg}, s2, 5
    s_lshr_b32 s{tmp}, s{w}, 1
    s_mul_i32 s{wo}, s{tmp}, {r16}
    s_lshl_b32 s{m}, s{tmp}, 10
    s_and_b32 s{tmp}, s{w}, 1
    s_mul_i32 s3, s{tmp}, {pl}
    s_add_u32 s{m}, s{m}, s3
    s_lshl_b32 s{tmp}, s{tmp}, 6
    s_add_u32 s{wo}, s{wo}, s{tmp}
    s_lshl_b32 s{tmp}, s{cg}, 7
    s_add_u32 s{wo}, s{wo}, s{tmp}
    s_lshl_b32 s{o}, s{br}, 6
    s_lshl_b32 s{rb}, s{rb}, 2
    s_add_u32 s{rb}, s{rb}, s{w}
    s_add_u32 s{o}, s{o}, s{rb}
    s_lshl_b32 s{o}, s{o}, 15
    s_add_u32 s{o}, s{o}, 0x{ooff:x}
    s_waitcnt lgkmcnt(0)
    """.format(br=sBR, tmp=sTMP, l=vL, w=sW, l16=vL16, a=T, b=T + 1, wd=vWD, rb=sRB, cg=sCG, wo=sWO, m=sM, r16=16 * 896,
               pl=PL, o=sO, ooff=O_OFF))
    srd(k, S_WO, 4, 5, 448 * 896)
    srd(k, S_WS, 6, 7, WS_USED)
    srd(k, S_OUT, 0, 1, 2048 * 1792)
    issued = []
    def wdma(n):
        k.I("s_add_u32 m0, s%d, %d" % (sM, n * 2048))
        k.I("s_add_u32 s%d, s%d, %d" % (sTMP, sWO, n * 32 * 896))
        k.I("buffer_load_dwordx4 v%d, s[%d:%d], s%d offen lds" % (vWD, S_WO, S_WO + 3, sTMP))
        issued.append("w%d" % n)
    def oload(h):
        if h % 2 == 0:
            k.I("s_add_u32 s%d, s%d, %d" % (28, sO, h * 2048))
        for f in range(2):
            k.I("buffer_load_dwordx4 a[%d:%d], v%d, s[%d:%d], s28 offen offset:%d" % (8 * h + 4 * f, 8 * h + 4 * f + 3, vL16, S_WS, S_WS + 3, (h % 2) * 2048 + 1024 * f))
            issued.append("o%d" % h)
    def wait_for(tags):
        idx = max(i for i, t in enumerate(issued) if t in tags)
        k.I("s_waitcnt vmcnt(%d)" % (len(issued) - 1 - idx))
    chunks = [(range(0, 4), range(0, 4)), (range(4, 8), range(4, 8)), (range(8, 15), range(8, 16))]
    for ws_, hs in chunks:
        for n in ws_: wdma(n)
        for h in hs: oload(h)
    k.I("""
    v_lshrrev_b32 v{h}, 5, v{l}
    v_lshlrev_b32 v{wr}, 8, v{h}
    v_bfe_u32 v{c}, v{l}, 2, 2
    v_lshl_add_u32 v{wr}, v{c}, 6, v{wr}
    v_bfe_u32 v{c}, v{l}, 4, 1
    v_lshl_add_u32 v{wr}, v{c}, 5, v{wr}
    v_and_b32 v{c}, 3, v{l}
    v_lshl_add_u32 v{wr}, v{c}, 3, v{wr}
    v_and_b32 v{c}, 31, v{l}
    v_mul_u32_u24 v{c}, 1792, v{c}
    v_lshl_add_u32 v{st}, v{h}, 4, v{c}
    s_mul_i32 s{rb}, s{rb}, {r32}
    s_mul_i32 s{tmp}, s{br}, 896
    s_add_u32 s{rb}, s{rb}, s{tmp}
    s_lshl_b32 s{tmp}, s{cg}, 7
    s_add_u32 s{rb}, s{rb}, s{tmp}
    """.format(h=T, c=T + 1, l=vL, wr=vWR, st=vST, rb=sRB, r32=32 * 1792, tmp=sTMP, br=sBR, cg=sCG))
    def wread(h):
        b = WF + 16 * (h & 1)
        for c in range(2):
            for f in range(2):
                for jj in range(2):
                    r = b + 8 * c + 4 * f + 2 * jj
                    k.I("ds_read_b64_tr_b16 v[%d:%d], v%d offset:%d" % (r, r + 1, vWR, c * PL + (28 * h + 16 * f + 8 * jj) * 64))
    first_of_chunk = {0: 0, 4: 1, 8: 2}
    def sync(h):
        ws_, hs = chunks[first_of_chunk[h]]
        wait_for(["w%d" % n for n in ws_])
        k.I("s_barrier")
    sync(0); wread(0)
    for h in range(16):
        nl = 0
        if h + 1 < 16:
            if h + 1 in first_of_chunk: sync(h + 1)
            wread(h + 1); nl = 8
        wait_for(["o%d" % h])
        k.I("s_waitcnt lgkmcnt(%d)" % nl)
        b = WF + 16 * (h & 1)
        for f in range(2):
            for c in range(2):
                k.I(mfma(vr(ACC[c], 16), vr(b + 8 * c + 4 * f, 4), ar(8 * h + 4 * f, 4), 0 if (h == 0 and f == 0) else None))
    for c in range(2):
        F = WF + 8 * c
        cvt8(k, F, ACC[c])
        for gp in range(2):
            k.I("v_permlane32_swap_b32 v%d, v%d" % (F + 4 * gp, F + 4 * gp + 2))
            k.I("v_permlane32_swap_b32 v%d, v%d" % (F + 4 * gp + 1, F + 4 * gp + 3))
            k.I("buffer_store_dwordx4 v[%d:%d], v%d, s[%d:%d], s%d offen offset:%d" % (F + 4 * gp, F + 4 * gp + 3, vST, S_OUT, S_OUT + 3, sRB, 64 * c + 32 * gp))
    k.label("L3_end")
    k.I("s_endpgm")
    return k, dict(grid=224, block=256, lds=2 * PL, vgpr=96, agpr=128, sgpr=32)

HEADER = open("cdna_kernels/%s.s.ref" % NAME).read().split("; Override launch geometry")[0]

def build(kernels):
    out = [HEADER.rstrip("\n")]
    for k, cfg in kernels:
        out.append("; @launch kernel=%s grid=(%d,1,1) block=(%d,1,1) lds=%d" % (k.name, cfg["grid"], cfg["block"], cfg["lds"]))
    out.append('.amdgcn_target "amdgcn-amd-amdhsa--gfx950"')
    out.append(".text")
    for k, cfg in kernels:
        k.fix_hazards(verbose=("-v" in sys.argv))
        out += [".globl %s" % k.name, ".p2align 8", ".type %s,@function" % k.name, "%s:" % k.name, k.text()]
    out.append('.section .rodata,"a"')
    for k, cfg in kernels:
        acc = (cfg["vgpr"] + 3) // 4 * 4
        out += [".p2align 6", ".amdhsa_kernel %s" % k.name,
                "  .amdhsa_next_free_vgpr %d" % (acc + cfg["agpr"] if cfg["agpr"] else cfg["vgpr"]),
                "  .amdhsa_next_free_sgpr %d" % cfg["sgpr"],
                "  .amdhsa_accum_offset %d" % acc,
                "  .amdhsa_group_segment_fixed_size 0",
                "  .amdhsa_kernarg_size 80",
                "  .amdhsa_user_sgpr_count 2",
                "  .amdhsa_user_sgpr_kernarg_segment_ptr 1",
                "  .amdhsa_system_sgpr_workgroup_id_x 1",
                ".end_amdhsa_kernel"]
    return "\n".join(out) + "\n"

if __name__ == "__main__":
    txt = build([gen_k1(), gen_k2(), gen_k3()])
    path = "cdna_kernels/%s.s" % NAME
    for a in sys.argv[1:]:
        if a.endswith(".s"): path = a
    open(path, "w").write(txt)
    print("wrote", path, len(txt), "bytes")
```

```python
import sys, struct
from asmlib import Kernel, vr, ar, sr

NAME = "concat_heads__mha_block__linear_kernel_hedgehog__prompt"
def f2u(x): return struct.unpack("<I", struct.pack("<f", x))[0]
def opt(name, default):
    for a in sys.argv[1:]:
        if a.startswith(name + "="): return int(a.split("=")[1])
    return default

KV_OFF   = 0
Q_OFF    = 4 << 20
PHIQ_OFF = 6 << 20
KVP_OFF  = 10 << 20
O_OFF    = 11 << 20
WS_USED  = 15 << 20

LOG2E = 1.4426950408889634
QSCALE = 28 ** -0.5 * LOG2E
MOFF = 40.0
ROUND_PQ = opt("round", 0)
ROT = opt("rot", 1)

STAMP = "-stamp" in sys.argv
STAMP_OFF = 16 << 20
class Stamper:
    def __init__(self, k, kidx, nwaves, va):
        self.k, self.kidx, self.n, self.nw, self.va = k, kidx, 0, nwaves, va
    def start(self):
        if not STAMP: return
        self.k.I("s_memrealtime s[96:97]")
        self.k.I("s_mov_b32 s98, s2")
        self.k.I("v_mov_b32 v%d, v0" % (self.va + 1))
        self()
    def __call__(self):
        if not STAMP: return
        self.k.I("s_memtime s[%d:%d]" % (64 + 2 * self.n, 65 + 2 * self.n)); self.n += 1
        assert self.n <= 15
    def dump(self, S_WS):
        if not STAMP: return
        k, a, b = self.k, self.va, self.va + 1
        sv = self.n
        self()
        k.I("s_waitcnt vmcnt(0)")
        self()
        k.I("s_memrealtime s[94:95]")
        k.I("s_waitcnt lgkmcnt(0)")
        k.I("s_sub_u32 s94, s94, s96")
        k.I("s_mov_b32 s%d, 0x2000000" % (S_WS + 2))
        k.I("v_lshrrev_b32 v%d, 6, v%d" % (b, b))
        k.I("s_mul_i32 s98, s98, %d" % self.nw)
        k.I("v_add_u32 v%d, s98, v%d" % (b, b))
        k.I("v_lshlrev_b32 v%d, 6, v%d" % (b, b))
        k.I("s_mov_b32 s98, 0x%x" % (STAMP_OFF + (self.kidx << 20)))
        k.I("s_mov_b64 exec, 1")
        for i in range(15):
            k.I(("s_sub_u32 s99, s%d, s64" % (64 + 2 * i) if i else "s_mov_b32 s99, s96") if i < self.n else "s_mov_b32 s99, 0")
            k.I("v_mov_b32 v%d, s99" % a)
            k.I("buffer_store_dword v%d, v%d, s[%d:%d], s98 offen offset:%d" % (a, b, S_WS, S_WS + 3, 4 * i))
        k.I("v_mov_b32 v%d, s94" % a)
        k.I("buffer_store_dword v%d, v%d, s[%d:%d], s98 offen offset:60" % (a, b, S_WS, S_WS + 3))
        self.n = sv

MF = "v_mfma_f32_32x32x16_bf16"
def mfma(d, a, b, c=None):
    return "%s %s, %s, %s, %s" % (MF, d, a, b, d if c is None else "0")

EXEC_ALL = "s_mov_b64 exec, -1"
EXEC_LO = "s_mov_b64 exec, 0xffffffff"
def exec_hi(k): k.I("s_mov_b32 exec_lo, 0\ns_mov_b32 exec_hi, -1")
def exec_both(k, m): k.I("s_mov_b32 exec_lo, 0x%x\ns_mov_b32 exec_hi, 0x%x" % (m, m))

def srd(k, s, lo, hi, nbytes):
    k.I("s_mov_b32 s%d, s%d" % (s, lo))
    k.I("s_mov_b32 s%d, s%d" % (s + 1, hi))
    k.I("s_mov_b32 s%d, 0x%x" % (s + 2, nbytes))
    k.I("s_mov_b32 s%d, 0x00020000" % (s + 3))

def cvt8(k, dst, src):
    for i in range(8):
        k.I("v_cvt_pk_bf16_f32 v%d, v%d, v%d" % (dst + i, src + 2 * i, src + 2 * i + 1))
def pk(op, d, a, b, mods=""):
    return "%s v[%d:%d], v[%d:%d], v[%d:%d]%s" % (op, d, d + 1, a, a + 1, b, b + 1, mods)

def xhalf(k, op, x, t):
    k.I("v_mov_b32 v%d, v%d" % (t, x))
    k.I("v_permlane32_swap_b32 v%d, v%d" % (x, t))
    k.I("%s v%d, v%d, v%d" % (op, x, x, t))

def neg_max_pieces(k, m, t0, t1, d6, d7, s_mask):
    k.I("v_and_b32 v%d, s%d, v%d" % (t0, s_mask, m))
    k.I("v_sub_f32 v%d, v%d, v%d" % (m, m, t0))
    k.I("v_and_b32 v%d, s%d, v%d" % (t1, s_mask, m))
    k.I("v_sub_f32 v%d, v%d, v%d" % (m, m, t1))
    exec_hi(k)
    k.I("v_cvt_pk_bf16_f32 v%d, -v%d, -v%d" % (d6, t0, t1))
    k.I("v_cvt_pk_bf16_f32 v%d, -v%d, 0" % (d7, m))
    k.I(EXEC_ALL)

class VmQueue:
    def __init__(self, k): self.k, self.q = k, []
    def add(self, tag): self.q.append(tag)
    def count_for(self, tags):
        idx = max(i for i, t in enumerate(self.q) if t in tags)
        return len(self.q) - 1 - idx
    def wait(self, tags):
        n = self.count_for(tags)
        assert n <= 63
        self.k.I("s_waitcnt vmcnt(%d)" % n)

def gen_k1():
    k = Kernel("qkv_kernel")
    WPART = 28672
    XBASE = 3 * WPART
    PHIB = XBASE + 8 * 8192
    LDS = PHIB + 2048
    S_X, S_W, S_WS, S_PHI = 12, 16, 20, 24
    sW, sHEAD, sBLK, sT, sBR = 28, 29, 30, 31, 32
    sWOFF, sXOFF, sXL, sTMP, sM = 33, 34, 35, 36, 37
    sC, sL, sMASK, sKV = 38, 40, 42, 43
    sROT, sKB, sWH, sWL, sWG, sWM, sXG = 44, 45, 46, 47, 48, 49, 50
    vL, vWD, vXD, vXR, vWR, vWR2, vL16, vPADV, vPH = 1, 2, 3, 7, 11, 12, 13, 14, 15
    AQ, AK, AV = 16, 32, 48
    XF = (64, 80)
    WF = (96, 108)
    PHI, IDN = 120, 128
    T = 136
    EP, EM = 144, 160
    KVP_, KVM_ = 16, 32
    vm = VmQueue(k)
    k.I("""
    s_cmp_ge_u32 s2, 256
    s_cbranch_scc1 L1_end
    s_and_b32 s3, s2, 7
    s_lshr_b32 s{br}, s3, 2
    s_mul_i32 s{tmp}, s{br}, 24
    s_load_dwordx4 s[4:7], s[0:1], s{tmp}
    s_load_dwordx2 s[8:9], s[0:1], 72
    s_load_dwordx2 s[10:11], s[0:1], 40
    v_lshrrev_b32 v2, 6, v0
    v_and_b32 v{l}, 63, v0
    v_readfirstlane_b32 s{w}, v2
    """.format(br=sBR, tmp=sTMP, l=vL, w=sW))
    st = Stamper(k, 0, 8, 192); st.start()
    k.I("""
    s_lshr_b32 s{tmp}, s2, 3
    s_and_b32 s{head}, s{tmp}, 7
    s_and_b32 s{m}, s3, 1
    s_lshl_b32 s{m}, s{m}, 3
    s_add_u32 s{head}, s{head}, s{m}
    s_lshr_b32 s{blk}, s{tmp}, 3
    s_and_b32 s{m}, s3, 2
    s_lshl_b32 s{m}, s{m}, 1
    s_add_u32 s{blk}, s{blk}, s{m}
    s_lshl_b32 s{t}, s{blk}, 3
    s_add_u32 s{t}, s{t}, s{w}
    v_lshrrev_b32 v{a}, 2, v{l}
    v_mul_u32_u24 v{a}, 2688, v{a}
    v_and_b32 v{b}, 3, v{l}
    v_lshl_add_u32 v{wd}, v{b}, 4, v{a}
    v_lshrrev_b32 v{a}, 3, v{l}
    v_mul_u32_u24 v{a}, 896, v{a}
    v_and_b32 v{b}, 7, v{l}
    v_lshrrev_b32 v{c}, 4, v{l}
    v_xor_b32 v{b}, v{b}, v{c}
    v_lshl_add_u32 v{x0}, v{b}, 4, v{a}
    v_xor_b32 v{b}, 4, v{b}
    v_lshl_add_u32 v{x1}, v{b}, 4, v{a}
    v_add_u32 v{x1}, 7168, v{x1}
    v_add_u32 v{x2}, 14336, v{x0}
    v_add_u32 v{x3}, 14336, v{x1}
    v_lshlrev_b32 v{l16}, 4, v{l}
    s_mul_i32 s{xoff}, s{t}, {xrow32}
    s_lshl_b32 s{xl}, s{w}, 13
    s_add_u32 s{xl}, s{xl}, {xbase}
    s_lshl_b32 s{tmp}, s{blk}, 1
    s_add_u32 s{rot}, s{head}, s{tmp}
    s_mul_i32 s{tmp}, s{rot}, 37
    s_lshr_b32 s{tmp}, s{tmp}, 8
    s_mul_i32 s{tmp}, s{tmp}, 7
    s_sub_u32 s{rot}, s{rot}, s{tmp}
    s_lshr_b32 s{wh}, s{w}, 2
    s_and_b32 s{wl}, s{w}, 3
    s_mul_i32 s{woff}, s{wl}, {r16}
    s_mul_i32 s{tmp}, s{head}, 56
    s_add_u32 s{woff}, s{woff}, s{tmp}
    s_lshl_b32 s{wl}, s{wl}, 10
    """.format(tmp=sTMP, head=sHEAD, m=sM, blk=sBLK, t=sT, w=sW, a=T, b=T + 1, c=T + 2, l=vL, wd=vWD,
               x0=vXD, x1=vXD + 1, x2=vXD + 2, x3=vXD + 3, l16=vL16, xoff=sXOFF, xrow32=32 * 896, xl=sXL, xbase=XBASE,
               rot=sROT, wh=sWH, wl=sWL, woff=sWOFF, r16=16 * 2688))
    if not ROT: k.I("s_mov_b32 s%d, 0" % sROT)
    k.I("s_waitcnt lgkmcnt(0)")
    srd(k, S_X, 4, 5, 2048 * 896)
    srd(k, S_W, 6, 7, 448 * 2688)
    srd(k, S_PHI, 10, 11, 16 * 1568)

    def kblock(o, extra=None):
        k.I("s_add_u32 s%d, s%d, %d" % (sKB, sROT, o))
        if extra is not None: k.I("s_add_u32 s%d, s%d, s%d" % (sKB, sKB, extra))
        k.I("s_sub_u32 s%d, s%d, 7" % (sTMP, sKB))
        k.I("s_cmp_ge_u32 s%d, 7" % sKB)
        k.I("s_cselect_b32 s%d, s%d, s%d" % (sKB, sTMP, sKB))
    def wload(soff, tag):
        k.I("buffer_load_dwordx4 v%d, s[%d:%d], s%d offen lds" % (vWD, S_W, S_W + 3, soff)); vm.add(tag)
    def wdma(pair):
        def one(p):
            def f():
                if p == 0:
                    kblock(2 * pair, sWH)
                    k.I("s_mul_i32 s%d, s%d, %d" % (sWG, sKB, 64 * 2688))
                    k.I("s_add_u32 s%d, s%d, s%d" % (sWG, sWG, sWOFF))
                    k.I("s_lshl_b32 s%d, s%d, 12" % (sWM, sWH))
                    k.I("s_add_u32 s%d, s%d, s%d" % (sWM, sWM, sWL))
                k.I("s_add_u32 m0, s%d, %d" % (sWM, p * WPART + pair * 8192))
                k.I("s_add_u32 s%d, s%d, %d" % (sTMP, sWG, p * 896))
                wload(sTMP, "W%d" % pair)
            return f
        return [one(p) for p in range(3)]
    def wdma_tail():
        def f0():
            kblock(6)
            k.I("s_mul_i32 s%d, s%d, %d" % (sWG, sKB, 64 * 2688))
            k.I("s_add_u32 s%d, s%d, s%d" % (sWG, sWG, sWOFF))
            k.I("s_mul_i32 s%d, s%d, %d" % (sWM, sWH, WPART))
            k.I("s_add_u32 s%d, s%d, s%d" % (sWM, sWM, sWL))
            k.I("s_add_u32 m0, s%d, %d" % (sWM, 6 * 4096))
            k.I("s_mul_i32 s%d, s%d, 896" % (sTMP, sWH))
            k.I("s_add_u32 s%d, s%d, s%d" % (sTMP, sTMP, sWG))
            wload(sTMP, "W3")
        def f1():
            k.I("s_add_u32 m0, s%d, %d" % (sWL, 2 * WPART + 6 * 4096))
            k.I("s_add_u32 s%d, s%d, 1792" % (sTMP, sWG))
            wload(sTMP, "W3")
        return [f0, f1]
    def xdma(j):
        def one(i):
            def f():
                if i == 0:
                    kblock(j)
                    k.I("s_lshl_b32 s%d, s%d, 7" % (sXG, sKB))
                    k.I("s_add_u32 s%d, s%d, s%d" % (sXG, sXG, sXOFF))
                k.I("s_add_u32 m0, s%d, %d" % (sXL, (j & 1) * 4096 + i * 1024))
                k.I("s_nop 0")
                k.I("buffer_load_dwordx4 v%d, s[%d:%d], s%d offen lds" % (vXD + i, S_X, S_X + 3, sXG)); vm.add("x%d" % j)
            return f
        return [one(i) for i in range(4)]
    def run(fs):
        for f in fs: f()

    k.I("""
    s_cmp_ge_u32 s{w}, 2
    s_cbranch_scc1 L1_nophi
    s_lshl_b32 s{m}, s{w}, 10
    s_mul_i32 s{tmp}, s{head}, 1568
    s_add_u32 m0, s{m}, {phib}
    s_add_u32 s{tmp}, s{tmp}, s{m}
    buffer_load_dwordx4 v{l16}, s[{p}:{p3}], s{tmp} offen lds
    """.format(w=sW, m=sM, tmp=sTMP, head=sHEAD, phib=PHIB, l16=vL16, p=S_PHI, p3=S_PHI + 3))
    k.label("L1_nophi")
    run(wdma(0)); run(xdma(0))
    k.I("s_barrier")
    run(xdma(1)); run(wdma(1))
    srd(k, S_WS, 8, 9, WS_USED)
    k.I("""
    v_and_b32 v{s}, 31, v{l}
    v_lshrrev_b32 v{h}, 5, v{l}
    v_bfe_u32 v{c}, v{l}, 1, 3
    v_xor_b32 v{c}, v{c}, v{h}
    v_lshlrev_b32 v{d}, 7, v{s}
    v_add_u32 v{d}, s{xl}, v{d}
    v_lshl_add_u32 v{r0}, v{c}, 4, v{d}
    v_xor_b32 v{e}, 2, v{c}
    v_lshl_add_u32 v{r1}, v{e}, 4, v{d}
    v_xor_b32 v{e}, 4, v{c}
    v_lshl_add_u32 v{r2}, v{e}, 4, v{d}
    v_xor_b32 v{e}, 6, v{c}
    v_lshl_add_u32 v{r3}, v{e}, 4, v{d}
    v_bfe_u32 v{c}, v{l}, 4, 1
    v_lshlrev_b32 v{d}, 5, v{c}
    v_and_b32 v{c}, 3, v{l}
    v_lshl_add_u32 v{d}, v{c}, 3, v{d}
    v_bfe_u32 v{c}, v{l}, 2, 2
    v_lshl_add_u32 v{wr}, v{c}, 6, v{d}
    v_lshl_add_u32 v{wr}, v{h}, 9, v{wr}
    v_add_u32 v{wr2}, {p2}, v{wr}
    v_lshl_add_u32 v{c}, v{h}, 2, v{c}
    v_mul_u32_u24 v{c}, 56, v{c}
    v_add3_u32 v{ph}, v{c}, v{d}, 0
    v_add_u32 v{ph}, {phib}, v{ph}
    v_mov_b32 v{c}, 0x3f803f80
    v_cmp_eq_u32 vcc, 28, v{s}
    s_mov_b32 s{c0}, 0x{qs:x}
    s_mov_b32 s{c1}, 0x{qs:x}
    v_cndmask_b32 v{padv}, 0, v{c}, vcc
    s_mov_b32 s{l0}, 0x{lg:x}
    s_mov_b32 s{l1}, 0x{lg:x}
    s_mov_b32 s{mask}, 0xffff0000
    s_lshl_b32 s{kv}, s{head}, 6
    s_add_u32 s{kv}, s{kv}, s{t}
    """.format(s=T, h=T + 1, c=T + 2, d=T + 3, e=T + 4, l=vL, xl=sXL, r0=vXR, r1=vXR + 1, r2=vXR + 2, r3=vXR + 3,
               wr=vWR, wr2=vWR2, p2=2 * WPART, padv=vPADV, c0=sC, c1=sC + 1, qs=f2u(QSCALE), ph=vPH, phib=PHIB,
               l0=sL, l1=sL + 1, lg=f2u(LOG2E), mask=sMASK, kv=sKV, head=sHEAD, t=sT))
    k.I("v_lshlrev_b32 v%d, 2, v%d" % (T + 2, T + 1))
    k.I("v_sub_u32 v%d, v%d, v%d" % (T + 2, T, T + 2))
    k.I("v_mov_b32 v%d, 0x3f80" % (T + 3))
    k.I("v_mov_b32 v%d, 0x3f800000" % (T + 4))
    for p in range(8):
        base = 8 * (p >> 1) + 2 * (p & 1)
        k.I("v_cmp_eq_u32 vcc, %d, v%d" % (base, T + 2))
        k.I("v_cmp_eq_u32 s[52:53], %d, v%d" % (base + 1, T + 2))
        k.I("v_cndmask_b32 v%d, 0, v%d, vcc" % (IDN + p, T + 3))
        k.I("v_cndmask_b32 v%d, v%d, v%d, s[52:53]" % (IDN + p, IDN + p, T + 4))
    for i in range(12, 16):
        k.I("v_mov_b32 v%d, 0" % (EP + i))
        k.I("v_mov_b32 v%d, 0" % (EM + i))

    def xread(j):
        for kk in range(4):
            b = XF[j & 1] + 4 * kk
            k.I("ds_read_b128 v[%d:%d], v%d offset:%d" % (b, b + 3, vXR + kk, (j & 1) * 4096))
    def wread_one(ks, p, jj):
        b = WF[ks & 1] + 4 * p
        off = (p * WPART if p < 2 else 0) + ks * 1024 + jj * 256
        k.I("ds_read_b64_tr_b16 v[%d:%d], v%d offset:%d" % (b + 2 * jj, b + 2 * jj + 1, vWR2 if p == 2 else vWR, off))
    def wread(ks):
        for p in range(3):
            for jj in range(2): wread_one(ks, p, jj)

    st()
    vm.wait(["W0", "x0"])
    k.I("s_barrier")
    st()
    xread(0); wread(0)
    pend = []
    for ks in range(28):
        j, kk = ks >> 2, ks & 3
        nl = 0
        if kk == 3 and j < 6:
            vm.wait(["x%d" % (j + 1)])
            if j in (1, 3): k.I("s_barrier")
            st()
            xread(j + 1); nl += 4
        if ks < 27:
            wread(ks + 1); nl += 6
        k.I("s_waitcnt lgkmcnt(%d)" % nl)
        if kk == 0:
            if j + 2 <= 6: pend += xdma(j + 2)
            if j == 0: pend += wdma(2)
            if j == 1: pend += wdma_tail()
        xf = vr(XF[j & 1] + 4 * kk, 4)
        wf = WF[ks & 1]
        c = 0 if ks == 0 else None
        for m in (mfma(vr(AQ, 16), vr(wf, 4), xf, c), mfma(vr(AK, 16), vr(wf + 4, 4), xf, c), mfma(vr(AV, 16), xf, vr(wf + 8, 4), c)):
            k.I(m)
            if pend: pend.pop(0)()
        if kk == 3: assert not pend

    QF, KF, VF = 64, 72, 80
    def vfrag():
        cvt8(k, VF, AV)
        exec_both(k, 0xf0000000)
        for i in range(8): k.I("v_mov_b32 v%d, v%d" % (VF + i, vPADV))
        k.I(EXEC_ALL)
    def store4(reg, soff, off):
        k.I("buffer_store_dwordx4 v[%d:%d], v%d, s[%d:%d], s%d offen offset:%d" % (reg, reg + 3, vL16, S_WS, S_WS + 3, soff, off))

    st()
    k.I("s_cmp_eq_u32 s%d, 0" % sBR)
    k.I("s_cbranch_scc0 L1_epiB")
    for i in range(8):
        k.I("v_pk_mul_f32 v[%d:%d], v[%d:%d], s[%d:%d]" % (AQ + 2 * i, AQ + 2 * i + 1, AQ + 2 * i, AQ + 2 * i + 1, sC, sC + 1))
    cvt8(k, QF, AQ)
    cvt8(k, KF, AK)
    exec_hi(k)
    k.I("v_mov_b32 v%d, 0" % (QF + 6))
    k.I("v_mov_b32 v%d, 0" % (QF + 7))
    k.I("v_mov_b32 v%d, 0x3f803f80" % (KF + 6))
    k.I("v_mov_b32 v%d, 0x3f80" % (KF + 7))
    k.I(EXEC_ALL)
    k.I(mfma(vr(AQ, 16), vr(KF, 4), vr(QF, 4), 0))
    k.I(mfma(vr(AQ, 16), vr(KF + 4, 4), vr(QF + 4, 4)))
    k.I("s_lshl_b32 s%d, s%d, 12" % (sTMP, sKV))
    store4(KF, sTMP, 0); store4(KF + 4, sTMP, 1024)
    vfrag()
    store4(VF, sTMP, 2048); store4(VF + 4, sTMP, 3072)
    m = T
    k.I("v_max3_f32 v%d, v%d, v%d, v%d" % (m, AQ, AQ + 1, AQ + 2))
    for i in range(3, 15, 2):
        k.I("v_max3_f32 v%d, v%d, v%d, v%d" % (m, m, AQ + i, AQ + i + 1))
    k.I("v_max_f32 v%d, v%d, v%d" % (m, m, AQ + 15))
    xhalf(k, "v_max_f32", m, T + 1)
    k.I("v_add_f32 v%d, 0x%x, v%d" % (m, f2u(MOFF), m))
    neg_max_pieces(k, m, T + 1, T + 2, QF + 6, QF + 7, sMASK)
    k.I("s_lshl_b32 s%d, s%d, 11" % (sTMP, sKV))
    k.I("s_add_u32 s%d, s%d, 0x%x" % (sTMP, sTMP, Q_OFF))
    store4(QF, sTMP, 0); store4(QF + 4, sTMP, 1024)
    st.dump(S_WS)
    k.I("s_endpgm")

    k.label("L1_epiB")
    for ff in range(2):
        for jj in range(2):
            r = PHI + 4 * ff + 2 * jj
            k.I("ds_read_b64_tr_b16 v[%d:%d], v%d offset:%d" % (r, r + 1, vPH, (16 * ff + 8 * jj) * 56))
    k.I("s_nop 7")
    cvt8(k, KF, AK)
    cvt8(k, QF, AQ)
    exec_hi(k)
    for r in (KF + 6, KF + 7, QF + 6, QF + 7): k.I("v_mov_b32 v%d, 0" % r)
    k.I(EXEC_ALL)
    k.I("s_waitcnt lgkmcnt(0)")
    k.I(mfma(vr(AK, 16), vr(PHI, 4), vr(KF, 4), 0))
    k.I(mfma(vr(AK, 16), vr(PHI + 4, 4), vr(KF + 4, 4)))
    k.I(mfma(vr(AQ, 16), vr(PHI, 4), vr(QF, 4), 0))
    k.I(mfma(vr(AQ, 16), vr(PHI + 4, 4), vr(QF + 4, 4)))
    vfrag()
    MX, MN, TT = T, T + 2, T + 4
    def feature(D, FP, FM, norm):
        if ROUND_PQ:
            for i in range(8):
                k.I("v_cvt_pk_bf16_f32 v%d, v%d, v%d" % (FP + i, D + 2 * i, D + 2 * i + 1))
            for i in range(8):
                k.I("v_lshlrev_b32 v%d, 16, v%d" % (D + 2 * i, FP + i))
                k.I("v_and_b32 v%d, s%d, v%d" % (D + 2 * i + 1, sMASK, FP + i))
        for (op3, op2, r) in (("v_max3_f32", "v_max_f32", MX), ("v_min3_f32", "v_min_f32", MN)):
            k.I("%s v%d, v%d, v%d, v%d" % (op3, r, D, D + 1, D + 2))
            for i in range(3, 11, 2):
                k.I("%s v%d, v%d, v%d, v%d" % (op3, r, r, D + i, D + i + 1))
            k.I("%s v%d, v%d, v%d" % (op2, r, r, D + 11))
        k.I(EXEC_LO)
        for (op3, r) in (("v_max3_f32", MX), ("v_min3_f32", MN)):
            k.I("%s v%d, v%d, v%d, v%d" % (op3, r, r, D + 12, D + 13))
            k.I("%s v%d, v%d, v%d, v%d" % (op3, r, r, D + 14, D + 15))
        k.I(EXEC_ALL)
        k.I("v_mov_b32 v%d, v%d" % (TT, MX))
        k.I("v_mov_b32 v%d, v%d" % (TT + 1, MN))
        k.I("v_permlane32_swap_b32 v%d, v%d" % (MX, TT))
        k.I("v_permlane32_swap_b32 v%d, v%d" % (MN, TT + 1))
        k.I("v_max_f32 v%d, v%d, v%d" % (MX, MX, TT))
        k.I("v_min_f32 v%d, v%d, v%d" % (MN, MN, TT + 1))
        k.I("v_mul_f32 v%d, s%d, v%d" % (MX, sL, MX))
        k.I("v_mul_f32 v%d, s%d, v%d" % (MN, sL, MN))
        def args(i):
            k.I("v_pk_fma_f32 v[%d:%d], v[%d:%d], s[%d:%d], v[%d:%d] op_sel_hi:[1,1,0] neg_lo:[0,0,1] neg_hi:[0,0,1]" %
                (EP + 2 * i, EP + 2 * i + 1, D + 2 * i, D + 2 * i + 1, sL, sL + 1, MX, MX + 1))
            k.I("v_pk_fma_f32 v[%d:%d], v[%d:%d], s[%d:%d], v[%d:%d] op_sel_hi:[1,1,0] neg_lo:[1,0,0] neg_hi:[1,0,0]" %
                (EM + 2 * i, EM + 2 * i + 1, D + 2 * i, D + 2 * i + 1, sL, sL + 1, MN, MN + 1))
        def exps(lo, hi):
            for i in range(lo, hi):
                k.I("v_exp_f32 v%d, v%d" % (EP + i, EP + i))
                k.I("v_exp_f32 v%d, v%d" % (EM + i, EM + i))
        for i in range(6): args(i)
        k.I(EXEC_LO)
        args(6); args(7); exps(12, 16)
        k.I(EXEC_ALL)
        exps(0, 12)
        if norm:
            for (E, r) in ((EP, MX), (EM, MN)):
                k.I(pk("v_pk_add_f32", r, E + 12, E + 14))
                for i in range(6):
                    k.I(pk("v_pk_add_f32", r, r, E + 2 * i))
                k.I("v_add_f32 v%d, v%d, v%d" % (r, r, r + 1))
            k.I("v_mov_b32 v%d, v%d" % (TT, MX))
            k.I("v_mov_b32 v%d, v%d" % (TT + 1, MN))
            k.I("v_permlane32_swap_b32 v%d, v%d" % (MX, TT))
            k.I("v_permlane32_swap_b32 v%d, v%d" % (MN, TT + 1))
            k.I("v_add_f32 v%d, v%d, v%d" % (MX, MX, TT))
            k.I("v_add_f32 v%d, v%d, v%d" % (MN, MN, TT + 1))
            k.I("v_rcp_f32 v%d, v%d" % (MX, MX))
            k.I("v_rcp_f32 v%d, v%d" % (MN, MN))
            for (E, r, F) in ((EP, MX, FP), (EM, MN, FM)):
                for i in range(8):
                    k.I(pk("v_pk_mul_f32", E + 2 * i, E + 2 * i, r, " op_sel_hi:[1,0]"))
                cvt8(k, F, E)
        else:
            cvt8(k, FP, EP); cvt8(k, FM, EM)
    FKP, FKM = 96, 104
    feature(AK, FKP, FKM, True)
    TPD, TMD = AK, AV
    k.I(mfma(vr(TPD, 16), vr(FKP, 4), vr(IDN, 4), 0))
    k.I(mfma(vr(TPD, 16), vr(FKP + 4, 4), vr(IDN + 4, 4)))
    k.I(mfma(vr(TMD, 16), vr(FKM, 4), vr(IDN, 4), 0))
    k.I(mfma(vr(TMD, 16), vr(FKM + 4, 4), vr(IDN + 4, 4)))
    FQP, FQM = 64, 72
    feature(AQ, FQP, FQM, False)
    k.I("s_lshl_b32 s%d, s%d, 12" % (sTMP, sKV))
    k.I("s_add_u32 s%d, s%d, 0x%x" % (sTMP, sTMP, PHIQ_OFF))
    for i in range(4): store4(FQP + 4 * i, sTMP, 1024 * i)
    TP, TM = 96, 104
    cvt8(k, TP, TPD)
    k.I(mfma(vr(EP, 16), vr(TP, 4), vr(VF, 4), 0))
    k.I(mfma(vr(EP, 16), vr(TP + 4, 4), vr(VF + 4, 4)))
    cvt8(k, TM, TMD)
    k.I(mfma(vr(EM, 16), vr(TM, 4), vr(VF, 4), 0))
    k.I(mfma(vr(EM, 16), vr(TM + 4, 4), vr(VF + 4, 4)))
    k.I("v_add_u32 v%d, s%d, v%d" % (T, sXL, vL16))
    k.I("s_lshl_b32 s%d, s%d, 10" % (sM, sW))
    k.I("s_add_u32 s%d, s%d, %d" % (sTMP, sM, XBASE))
    k.I("v_add_u32 v%d, s%d, v%d" % (T + 1, sTMP, vL16))
    for q in range(8):
        k.I("ds_write_b128 v%d, v[%d:%d] offset:%d" % (T, EP + 4 * q, EP + 4 * q + 3, 1024 * q))
    k.I("""
    s_lshl_b32 s{tmp}, s{head}, 3
    s_add_u32 s{tmp}, s{tmp}, s{blk}
    s_lshl_b32 s{tmp}, s{tmp}, 13
    s_add_u32 s{tmp}, s{tmp}, s{m}
    s_add_u32 s{tmp}, s{tmp}, 0x{off:x}
    """.format(tmp=sTMP, head=sHEAD, blk=sBLK, m=sM, off=KVP_OFF))
    k.I("s_waitcnt lgkmcnt(0)")
    st()
    k.I("s_barrier")
    for w in range(8):
        k.I("ds_read_b128 v[%d:%d], v%d offset:%d" % (16 + 4 * w, 19 + 4 * w, T + 1, 8192 * w))
    for w in range(1, 8):
        k.I("s_waitcnt lgkmcnt(%d)" % (7 - w))
        k.I(pk("v_pk_add_f32", 16, 16, 16 + 4 * w))
        k.I(pk("v_pk_add_f32", 18, 18, 18 + 4 * w))
    store4(16, sTMP, 0)
    st.dump(S_WS)
    k.label("L1_end")
    k.I("s_endpgm")
    return k, dict(grid=256, block=512, lds=LDS, vgpr=200 if STAMP else 176, agpr=0, sgpr=102 if STAMP else 56)

def gen_k2(R=8):
    k = Kernel("attn_kernel")
    S_WS = 4
    sW, sHEAD, sTMP, sT, sU, sKVB, sP, sMASK, sFLAG, sPB, sPQ, sOA, sOB, sQA = 8, 9, 10, 11, 12, 13, 14, 15, 16, 17, 18, 19, 20, 21
    sTILE = 24
    vL16 = 1
    Q = {"a": 4, "b": 12}
    S = {"a": 20, "b": 36}
    P = {"a": 52, "b": 60}
    O = {"a": 68, "b": 84}
    PART = 100
    NP, NM = 100, 116
    T = 164
    KVF = 180
    FB = 196
    PHQ = 16 * R
    NT = 32
    def KR(i, f): return ar((i % R) * 16 + 4 * f, 4)
    def VR(i, f): return ar((i % R) * 16 + 8 + 4 * f, 4)
    vm = VmQueue(k)
    k.I("""
    s_cmp_ge_u32 s2, 256
    s_cbranch_scc1 L2_end
    s_load_dwordx2 s[0:1], s[0:1], 72
    v_lshrrev_b32 v2, 6, v0
    v_and_b32 v1, 63, v0
    v_lshlrev_b32 v1, 4, v1
    v_readfirstlane_b32 s{w}, v2
    s_and_b32 s{head}, s2, 7
    s_lshl_b32 s{head}, s{head}, 1
    s_lshr_b32 s{tmp}, s2, 7
    s_add_u32 s{head}, s{head}, s{tmp}
    s_bfe_u32 s{t}, s2, 0x40003
    s_lshl_b32 s{t}, s{t}, 2
    s_lshr_b32 s{u}, s{w}, 1
    s_and_b32 s{tmp}, s{w}, 1
    s_lshl_b32 s{tmp}, s{tmp}, 1
    s_add_u32 s{t}, s{t}, s{tmp}
    s_add_u32 s{t}, s{t}, s{u}
    s_lshl_b32 s{tmp}, s{head}, 6
    s_add_u32 s{tmp}, s{t}, s{tmp}
    s_lshl_b32 s{pq}, s{tmp}, 12
    s_lshl_b32 s{tmp}, s{tmp}, 11
    s_add_u32 s{tmp}, s{tmp}, 0x{qoff:x}
    s_xor_b32 s{qa}, s{tmp}, 0x800
    s_lshl_b32 s{kvb}, s{head}, 18
    s_lshl_b32 s{p}, s{u}, 17
    s_add_u32 s{p}, s{kvb}, s{p}
    s_mov_b32 s{ws2}, 0x{used:x}
    s_mov_b32 s{ws3}, 0x00020000
    s_waitcnt lgkmcnt(0)
    s_mov_b32 s{ws0}, s0
    s_mov_b32 s{ws1}, s1
    """.format(w=sW, head=sHEAD, tmp=sTMP, u=sU, t=sT, kvb=sKVB, p=sP, qoff=Q_OFF, pq=sPQ, qa=sQA,
               ws0=S_WS, ws1=S_WS + 1, ws2=S_WS + 2, ws3=S_WS + 3, used=WS_USED))
    st = Stamper(k, 1, 4, 250); st.start()
    def ld(dst, soff, off):
        k.I("buffer_load_dwordx4 %s, v%d, s[%d:%d], s%d offen offset:%d" % (dst, vL16, S_WS, S_WS + 3, soff, off))
    def LD(tag, dst, soff, off):
        ld(dst, soff, off); vm.add(tag)
    def ldK(j, f): LD("K%d" % j, KR(j, f), sTILE + j if j else sP, 1024 * f)
    def ldV(j, f): LD("V%d" % j, VR(j, f), sTILE + j if j else sP, 2048 + 1024 * f)
    LD("Qa", vr(Q["a"], 4), sQA, 0); LD("Qa", vr(Q["a"] + 4, 4), sQA, 1024)
    ldK(0, 0); ldK(0, 1)
    LD("Qb", vr(Q["b"], 4), sTMP, 0); LD("Qb", vr(Q["b"] + 4, 4), sTMP, 1024)
    ldV(0, 0); ldV(0, 1)
    NPRE = opt("npre", 3)
    for j in range(1, NPRE):
        k.I("s_add_u32 s%d, s%d, %d" % (sTILE + j, sP, 4096 * j))
        ldK(j, 0); ldK(j, 1); ldV(j, 0); ldV(j, 1)
    for j in range(NPRE, NT):
        k.I("s_add_u32 s%d, s%d, %d" % (sTILE + j, sP, 4096 * j))
    k.I("""
    s_lshl_b32 s{pb}, s{head}, 16
    s_lshl_b32 s{tmp}, s{w}, 11
    s_add_u32 s{pb}, s{pb}, s{tmp}
    s_add_u32 s{pb}, s{pb}, 0x{kvp:x}
    s_add_u32 s{pq}, s{pq}, 0x{phq:x}
    s_mov_b32 s{mask}, 0xffff0000
    s_mov_b32 s{flag}, 0
    s_lshl_b32 s{tmp}, s{t}, 4
    s_add_u32 s{tmp}, s{tmp}, s{head}
    s_lshl_b32 s{tmp}, s{tmp}, 11
    s_add_u32 s{oa}, s{tmp}, 0x{ooff:x}
    s_add_u32 s{ob}, s{tmp}, 0x{ooffb:x}
    s_lshl_b32 s{tmp}, s{w}, 10
    v_add_u32 v2, s{tmp}, v1
    s_lshl_b32 s{tmp}, s{w}, 12
    v_add_u32 v3, s{tmp}, v1
    s_xor_b32 s{tmp}, s{tmp}, 0x2000
    v_add_u32 v{xr}, s{tmp}, v1
    """.format(pb=sPB, head=sHEAD, tmp=sTMP, w=sW, kvp=KVP_OFF, t=sT, pq=sPQ, phq=PHIQ_OFF, mask=sMASK, flag=sFLAG,
               oa=sOA, ob=sOB, ooff=O_OFF, ooffb=O_OFF + (2 << 20), xr=T + 15))
    for blk in range(8):
        k.I("s_add_u32 s%d, s%d, %d" % (56 + blk, sPB, 8192 * blk)) if not STAMP or True else None
    ring = []
    for j in range(NPRE, NT):
        for f in range(2): ring.append(("K", j, f))
        for f in range(2): ring.append(("V", j, f))
    side = [("part", blk, q) for blk in range(8) for q in range(2)] + [("phq", f, 0) for f in range(4)]
    freeK = R - 1
    freeV = R - 1
    def slot_fill(allow_side):
        if ring:
            kind, j, f = ring[0]
            if j <= (freeK if kind == "K" else freeV):
                ring.pop(0)
                (ldK if kind == "K" else ldV)(j, f)
                return
        if allow_side and side:
            kind, a, b = side.pop(0)
            if kind == "part": LD("side", vr(PART + 8 * a + 4 * b, 4), 56 + a, 1024 * b)
            else: LD("side", ar(PHQ + 4 * a, 4), sPQ, 1024 * a)

    def qk(x, i):
        return [mfma(vr(S[x], 16), KR(i, 0), vr(Q[x], 4), 0), mfma(vr(S[x], 16), KR(i, 1), vr(Q[x] + 4, 4))]
    def pv(x, i, first=False):
        return [mfma(vr(O[x], 16), VR(i, 0), vr(P[x], 4), 0 if first else None), mfma(vr(O[x], 16), VR(i, 1), vr(P[x] + 4, 4))]
    def phase(x, mf, after):
        def cv(n): return "v_cvt_pk_bf16_f32 v%d, v%d, v%d" % (P[x] + n, S[x] + 2 * n, S[x] + 2 * n + 1)
        def ex(n): return "v_exp_f32 v%d, v%d" % (S[x] + n, S[x] + n)
        for g in range(4):
            if mf[g] is not None: k.I(mf[g])
            after[g]()
            k.I(ex(4 * g)); k.I(ex(4 * g + 1))
            if g > 0: k.I(cv(2 * g - 1))
            k.I(ex(4 * g + 2)); k.I(ex(4 * g + 3))
            k.I(cv(2 * g))
        k.I(cv(7))
    def bcast_hi(src, t0, t1):
        k.I("v_mov_b32 v%d, v%d" % (t0, src))
        k.I("v_mov_b32 v%d, v%d" % (t1, src))
        k.I("v_permlane32_swap_b32 v%d, v%d" % (t0, t1))
    def normalise(X, F, soff, eps):
        bcast_hi(X + 12, T, T + 2)
        if eps: k.I("v_add_f32 v%d, 0x%x, v%d" % (T + 2, f2u(1e-6), T + 2))
        k.I("v_rcp_f32 v%d, v%d" % (T + 2, T + 2))
        for i in range(8):
            k.I(pk("v_pk_mul_f32", X + 2 * i, X + 2 * i, T + 2, " op_sel_hi:[1,0]"))
        cvt8(k, F, X)
        exec_hi(k)
        k.I("v_mov_b32 v%d, 0" % (F + 6))
        k.I("v_mov_b32 v%d, 0" % (F + 7))
        k.I(EXEC_ALL)
        for f in range(2):
            k.I("buffer_store_dwordx4 v[%d:%d], v%d, s[%d:%d], s%d offen offset:%d" % (F + 4 * f, F + 4 * f + 3, vL16, S_WS, S_WS + 3, soff, 1024 * f))
            vm.add("store")

    def b_step1():
        assert not side
        vm.wait(["side"])
        for blk in range(1, 8):
            for q in range(4):
                k.I(pk("v_pk_add_f32", PART + 2 * q, PART + 2 * q, PART + 8 * blk + 2 * q))
        for q in range(4):
            k.I("v_cvt_pk_bf16_f32 v%d, v%d, v%d" % (T + q, PART + 2 * q, PART + 2 * q + 1))
        exec_both(k, 0x20000000)
        for q in range(4): k.I("v_mov_b32 v%d, 0x3f803f80" % (T + q))
        k.I(EXEC_ALL)
        k.I("ds_write_b128 v2, v[%d:%d] offset:16384" % (T, T + 3))
    def b_step2():
        k.I("s_waitcnt lgkmcnt(0)")
        k.I("s_barrier")
        for f in range(4):
            k.I("ds_read_b128 v[%d:%d], v%d offset:%d" % (KVF + 4 * f, KVF + 4 * f + 3, vL16, 16384 + 1024 * f))
    def b_step3():
        k.I("s_waitcnt lgkmcnt(0)")
        for f in range(4):
            k.I(mfma(vr(NP if f < 2 else NM, 16), vr(KVF + 4 * f, 4), ar(PHQ + 4 * f, 4), 0 if f % 2 == 0 else None))
    def b_step4():
        bcast_hi(NP + 13, T, T + 2)
        bcast_hi(NM + 13, T + 1, T + 4)
        k.I("v_rcp_f32 v%d, v%d" % (T + 2, T + 2))
        k.I("v_rcp_f32 v%d, v%d" % (T + 4, T + 4))
        for i in range(8):
            k.I(pk("v_pk_mul_f32", NP + 2 * i, NP + 2 * i, T + 2, " op_sel_hi:[1,0]"))
        for i in range(8):
            k.I("v_pk_fma_f32 v[%d:%d], v[%d:%d], v[%d:%d], v[%d:%d] op_sel_hi:[1,0,1]" %
                (NP + 2 * i, NP + 2 * i + 1, NM + 2 * i, NM + 2 * i + 1, T + 4, T + 5, NP + 2 * i, NP + 2 * i + 1))
        normalise(NP, FB, sOB, True)
    BT = opt("bt", 27)
    bsteps = {BT: b_step1, BT + 1: b_step2, BT + 2: b_step3, BT + 3: b_step4}

    st()
    vm.wait(["Qa", "K0"])
    st()
    for m in qk("a", 0): k.I(m)
    vm.wait(["Qb"])
    nop = lambda: None
    for i in range(NT):
        if i in (1, 4, 8, 16, 24): st()
        if i in bsteps: bsteps[i]()
        mfA = qk("b", i) + (pv("b", i - 1, first=(i == 1)) if i > 0 else [None, None])
        need = ["V%d" % i] + (["K%d" % (i + 1)] if i + 1 < NT else [])
        def a1():
            nonlocal freeK
            freeK = i + R
            slot_fill(False)
        def a3():
            nonlocal freeV
            if i > 0: freeV = i - 1 + R
            vm.wait(need)
        phase("a", mfA, [lambda: slot_fill(True), a1, lambda: slot_fill(False), a3])
        if i + 1 < NT:
            mfB = qk("a", i + 1) + pv("a", i, first=(i == 0))
            phase("b", mfB, [lambda: slot_fill(False), lambda: slot_fill(False), lambda: slot_fill(True), lambda: slot_fill(False)])
        else:
            mfB = pv("a", i) + [None, None]
            def send():
                for q in range(4):
                    k.I("ds_write_b128 v3, v[%d:%d] offset:%d" % (O["a"] + 4 * q, O["a"] + 4 * q + 3, 1024 * q))
            phase("b", mfB, [nop, nop, nop, send])
    assert not side and not ring
    for m in pv("b", NT - 1): k.I(m)
    st()
    k.I("s_waitcnt lgkmcnt(0)")
    k.I("s_barrier")
    for q in range(4):
        k.I("ds_read_b128 v[%d:%d], v%d offset:%d" % (O["a"] + 4 * q, O["a"] + 4 * q + 3, T + 15, 1024 * q))
    OB = O["b"]
    for q in range(4):
        k.I("s_waitcnt lgkmcnt(%d)" % (3 - q))
        k.I(pk("v_pk_add_f32", OB + 4 * q, OB + 4 * q, O["a"] + 4 * q))
        k.I(pk("v_pk_add_f32", OB + 4 * q + 2, OB + 4 * q + 2, O["a"] + 4 * q + 2))
    k.I("v_pk_mul_f32 v[%d:%d], v[%d:%d], 0" % (T, T + 1, OB, OB + 1))
    for i in range(1, 8):
        k.I("v_pk_fma_f32 v[%d:%d], v[%d:%d], 0, v[%d:%d]" % (T, T + 1, OB + 2 * i, OB + 2 * i + 1, T, T + 1))
    k.I("v_cmp_u_f32 vcc, v%d, v%d" % (T, T + 1))
    k.I("s_cbranch_vccnz L2_slow")
    k.label("L2_norm")
    normalise(OB, P["a"], sOA, False)
    st.dump(S_WS)
    k.label("L2_end")
    k.I("s_endpgm")

    k.label("L2_slow")
    SS, QQ = S["b"], Q["b"]
    exec_hi(k)
    k.I("v_mov_b32 v%d, 0" % (QQ + 6))
    k.I("v_mov_b32 v%d, 0" % (QQ + 7))
    k.I(EXEC_ALL)
    k.I("v_mov_b32 v%d, 0xff800000" % T)
    k.I("s_mov_b32 s%d, s%d" % (sP, sKVB))
    k.I("s_add_u32 s%d, s%d, 0x40000" % (sTMP, sKVB))
    k.label("L2_slow1")
    ld(ar(0, 4), sP, 0); ld(ar(4, 4), sP, 1024)
    k.I("s_waitcnt vmcnt(0)")
    k.I(mfma(vr(SS, 16), ar(0, 4), vr(QQ, 4), 0))
    k.I(mfma(vr(SS, 16), ar(4, 4), vr(QQ + 4, 4)))
    for i in range(0, 16, 2):
        k.I("v_max3_f32 v%d, v%d, v%d, v%d" % (T, T, SS + i, SS + i + 1))
    k.I("s_add_u32 s%d, s%d, 4096" % (sP, sP))
    k.I("s_cmp_lt_u32 s%d, s%d" % (sP, sTMP))
    k.I("s_cbranch_scc1 L2_slow1")
    xhalf(k, "v_max_f32", T, T + 1)
    neg_max_pieces(k, T, T + 1, T + 2, QQ + 6, QQ + 7, sMASK)
    for i in range(16): k.I("v_mov_b32 v%d, 0" % (OB + i))
    k.I("s_mov_b32 s%d, s%d" % (sP, sKVB))
    k.label("L2_slow2")
    for f in range(4): ld(ar(4 * f, 4), sP, 1024 * f)
    k.I("s_waitcnt vmcnt(0)")
    k.I(mfma(vr(SS, 16), ar(0, 4), vr(QQ, 4), 0))
    k.I(mfma(vr(SS, 16), ar(4, 4), vr(QQ + 4, 4)))
    for i in range(16): k.I("v_exp_f32 v%d, v%d" % (SS + i, SS + i))
    cvt8(k, P["a"], SS)
    k.I(mfma(vr(OB, 16), ar(8, 4), vr(P["a"], 4)))
    k.I(mfma(vr(OB, 16), ar(12, 4), vr(P["a"] + 4, 4)))
    k.I("s_add_u32 s%d, s%d, 4096" % (sP, sP))
    k.I("s_cmp_lt_u32 s%d, s%d" % (sP, sTMP))
    k.I("s_cbranch_scc1 L2_slow2")
    k.I("s_nop 7\ns_nop 7")
    k.I("s_branch L2_norm")
    return k, dict(grid=256, block=256, lds=20480, vgpr=256, agpr=16 * R + 16, sgpr=102 if STAMP else 64)

def gen_k3():
    k = Kernel("oproj_kernel")
    S_WO, S_WS, S_OUT = 8, 12, 16
    sW, sBR, sRB, sCG, sTMP, sWO, sO, sM = 20, 21, 22, 23, 24, 25, 26, 27
    vL, vL16, vWD, vWR, vWR1, vST = 1, 2, 3, 4, 5, 6
    ACC = (16, 32)
    WF = 48
    T = 80
    NR = 480
    vm = VmQueue(k)
    k.I("""
    s_cmp_ge_u32 s2, 224
    s_cbranch_scc1 L3_end
    s_and_b32 s3, s2, 7
    s_lshr_b32 s{br}, s3, 2
    s_lshl_b32 s{tmp}, s{br}, 5
    s_add_u32 s{tmp}, s{tmp}, 16
    s_load_dwordx2 s[4:5], s[0:1], s{tmp}
    s_load_dwordx2 s[6:7], s[0:1], 72
    s_load_dwordx2 s[0:1], s[0:1], 56
    v_lshrrev_b32 v2, 6, v0
    v_and_b32 v{l}, 63, v0
    v_readfirstlane_b32 s{w}, v2
    v_lshlrev_b32 v{l16}, 4, v{l}
    v_lshrrev_b32 v{a}, 3, v{l}
    v_mul_u32_u24 v{a}, 896, v{a}
    v_and_b32 v{b}, 7, v{l}
    v_bfe_u32 v{c}, v{l}, 4, 1
    v_lshlrev_b32 v{c}, 2, v{c}
    v_xor_b32 v{b}, v{b}, v{c}
    v_lshl_add_u32 v{wd}, v{b}, 4, v{a}
    s_and_b32 s{rb}, s3, 3
    s_lshl_b32 s{rb}, s{rb}, 2
    s_bfe_u32 s{tmp}, s2, 0x20003
    s_add_u32 s{rb}, s{rb}, s{tmp}
    s_lshr_b32 s{cg}, s2, 5
    s_mul_i32 s{wo}, s{w}, {r8}
    s_lshl_b32 s{m}, s{w}, 10
    s_lshl_b32 s{tmp}, s{cg}, 7
    s_add_u32 s{wo}, s{wo}, s{tmp}
    s_lshl_b32 s{o}, s{br}, 6
    s_lshl_b32 s{rb}, s{rb}, 2
    s_add_u32 s{rb}, s{rb}, s{w}
    s_add_u32 s{o}, s{o}, s{rb}
    s_lshl_b32 s{o}, s{o}, 15
    s_add_u32 s{o}, s{o}, 0x{ooff:x}
    s_waitcnt lgkmcnt(0)
    """.format(br=sBR, tmp=sTMP, l=vL, w=sW, l16=vL16, a=T, b=T + 1, c=T + 2, wd=vWD, rb=sRB, cg=sCG, wo=sWO, m=sM, r8=8 * 896,
               o=sO, ooff=O_OFF))
    st = Stamper(k, 2, 4, 94); st.start()
    srd(k, S_WO, 4, 5, 448 * 896)
    srd(k, S_WS, 6, 7, WS_USED)
    def wdma(n):
        k.I("s_add_u32 m0, s%d, %d" % (sM, n * 4096))
        k.I("s_add_u32 s%d, s%d, %d" % (sTMP, sWO, n * 32 * 896))
        k.I("buffer_load_dwordx4 v%d, s[%d:%d], s%d offen lds" % (vWD, S_WO, S_WO + 3, sTMP))
        vm.add("w%d" % n)
    def oload(h):
        if h % 2 == 0:
            k.I("s_add_u32 s%d, s%d, %d" % (28, sO, h * 2048))
        for f in range(2):
            k.I("buffer_load_dwordx4 a[%d:%d], v%d, s[%d:%d], s28 offen offset:%d" % (8 * h + 4 * f, 8 * h + 4 * f + 3, vL16, S_WS, S_WS + 3, (h % 2) * 2048 + 1024 * f))
            vm.add("o%d" % h)
    chunks = [(range(0, 2), range(0, 2)), (range(2, 4), range(2, 4)), (range(4, 8), range(4, 8)), (range(8, 15), range(8, 16))]
    for ci, (ws_, hs) in enumerate(chunks):
        for n in ws_: wdma(n)
        for h in hs: oload(h)
    srd(k, S_OUT, 0, 1, 2048 * 1792)
    k.I("""
    v_lshrrev_b32 v{h}, 5, v{l}
    v_lshlrev_b32 v{wr}, 9, v{h}
    v_bfe_u32 v{c}, v{l}, 2, 2
    v_lshl_add_u32 v{wr}, v{c}, 7, v{wr}
    v_bfe_u32 v{c}, v{l}, 3, 1
    v_lshl_add_u32 v{wr}, v{c}, 6, v{wr}
    v_bfe_u32 v{c}, v{l}, 4, 1
    v_lshl_add_u32 v{wr}, v{c}, 5, v{wr}
    v_and_b32 v{c}, 3, v{l}
    v_lshl_add_u32 v{wr}, v{c}, 3, v{wr}
    v_xor_b32 v{wr1}, 64, v{wr}
    v_and_b32 v{c}, 31, v{l}
    v_mul_u32_u24 v{c}, 1792, v{c}
    v_lshl_add_u32 v{st}, v{h}, 4, v{c}
    s_mul_i32 s{rb}, s{rb}, {r32}
    s_mul_i32 s{tmp}, s{br}, 896
    s_add_u32 s{rb}, s{rb}, s{tmp}
    s_lshl_b32 s{tmp}, s{cg}, 7
    s_add_u32 s{rb}, s{rb}, s{tmp}
    """.format(h=T, c=T + 1, l=vL, wr=vWR, wr1=vWR1, st=vST, rb=sRB, r32=32 * 1792, tmp=sTMP, br=sBR, cg=sCG))
    def wread(h):
        b = WF + 16 * (h & 1)
        for f in range(2):
            for c in range(2):
                for jj in range(2):
                    r = b + 8 * c + 4 * f + 2 * jj
                    k.I("ds_read_b64_tr_b16 v[%d:%d], v%d offset:%d" % (r, r + 1, vWR1 if c else vWR, (28 * h + 16 * f + 8 * jj) * 128))
    first_of_chunk = {0: 0, 2: 1, 4: 2, 8: 3}
    def sync(h):
        ws_, hs = chunks[first_of_chunk[h]]
        vm.wait(["w%d" % n for n in ws_])
        k.I("s_barrier")
    st()
    sync(0); st(); wread(0)
    for h in range(16):
        nl = 0
        if h + 1 < 16:
            if h + 1 in first_of_chunk: sync(h + 1); st()
            wread(h + 1); nl = 8
        vm.wait(["o%d" % h])
        k.I("s_waitcnt lgkmcnt(%d)" % nl)
        b = WF + 16 * (h & 1)
        for f in range(2):
            for c in range(2):
                k.I(mfma(vr(ACC[c], 16), vr(b + 8 * c + 4 * f, 4), ar(8 * h + 4 * f, 4), 0 if (h == 0 and f == 0) else None))
    st()
    for c in range(2):
        F = WF + 8 * c
        cvt8(k, F, ACC[c])
        for gp in range(2):
            k.I("v_permlane32_swap_b32 v%d, v%d" % (F + 4 * gp, F + 4 * gp + 2))
            k.I("v_permlane32_swap_b32 v%d, v%d" % (F + 4 * gp + 1, F + 4 * gp + 3))
            k.I("buffer_store_dwordx4 v[%d:%d], v%d, s[%d:%d], s%d offen offset:%d" % (F + 4 * gp, F + 4 * gp + 3, vST, S_OUT, S_OUT + 3, sRB, 64 * c + 32 * gp))
    st.dump(S_WS)
    k.label("L3_end")
    k.I("s_endpgm")
    return k, dict(grid=224, block=256, lds=NR * 128, vgpr=96, agpr=128, sgpr=102 if STAMP else 32)

HEADER = open("cdna_kernels/%s.s.ref" % NAME).read().split("; Override launch geometry")[0]

def build(kernels):
    out = [HEADER.rstrip("\n")]
    for k, cfg in kernels:
        out.append("; @launch kernel=%s grid=(%d,1,1) block=(%d,1,1) lds=%d" % (k.name, cfg["grid"], cfg["block"], cfg["lds"]))
    out.append('.amdgcn_target "amdgcn-amd-amdhsa--gfx950"')
    out.append(".text")
    for k, cfg in kernels:
        k.fix_hazards(verbose=("-v" in sys.argv))
        out += [".globl %s" % k.name, ".p2align 8", ".type %s,@function" % k.name, "%s:" % k.name, k.text()]
    out.append('.section .rodata,"a"')
    for k, cfg in kernels:
        acc = (cfg["vgpr"] + 3) // 4 * 4
        out += [".p2align 6", ".amdhsa_kernel %s" % k.name,
                "  .amdhsa_next_free_vgpr %d" % (acc + cfg["agpr"] if cfg["agpr"] else cfg["vgpr"]),
                "  .amdhsa_next_free_sgpr %d" % cfg["sgpr"],
                "  .amdhsa_accum_offset %d" % acc,
                "  .amdhsa_group_segment_fixed_size 0",
                "  .amdhsa_kernarg_size 80",
                "  .amdhsa_user_sgpr_count 2",
                "  .amdhsa_user_sgpr_kernarg_segment_ptr 1",
                "  .amdhsa_system_sgpr_workgroup_id_x 1",
                ".end_amdhsa_kernel"]
    return "\n".join(out) + "\n"

if __name__ == "__main__":
    txt = build([gen_k1(), gen_k2(opt("R", 8)), gen_k3()])
    path = "cdna_kernels/%s.s" % NAME
    for a in sys.argv[1:]:
        if a.endswith(".s"): path = a
    open(path, "w").write(txt)
    print("wrote", path, len(txt), "bytes")
```

```python
import sys, struct
from asmlib import Kernel, vr, ar, sr

NAME = "concat_heads__mha_block__linear_kernel_hedgehog__prompt"
def f2u(x): return struct.unpack("<I", struct.pack("<f", x))[0]
def opt(name, default):
    for a in sys.argv[1:]:
        if a.startswith(name + "="): return int(a.split("=")[1])
    return default

KV_OFF   = 0
Q_OFF    = 4 << 20
PHIQ_OFF = 6 << 20
KVP_OFF  = 10 << 20
O_OFF    = 11 << 20
WS_USED  = 15 << 20

LOG2E = 1.4426950408889634
QSCALE = 28 ** -0.5 * LOG2E
MOFF = 40.0
ROUND_PQ = opt("round", 0)
ROT = opt("rot", 1)
SC = ["", " sc1", " sc0 sc1", " nt", " sc1 nt"][opt("sc", 1)]

STAMP = "-stamp" in sys.argv
STAMP_OFF = 16 << 20
class Stamper:
    def __init__(self, k, kidx, nwaves, va):
        self.k, self.kidx, self.n, self.nw, self.va = k, kidx, 0, nwaves, va
    def start(self):
        if not STAMP: return
        self.k.I("s_memrealtime s[96:97]")
        self.k.I("s_mov_b32 s98, s2")
        self.k.I("v_mov_b32 v%d, v0" % (self.va + 1))
        self()
    def __call__(self):
        if not STAMP: return
        self.k.I("s_memtime s[%d:%d]" % (64 + 2 * self.n, 65 + 2 * self.n)); self.n += 1
        assert self.n <= 15
    def dump(self, S_WS):
        if not STAMP: return
        k, a, b = self.k, self.va, self.va + 1
        sv = self.n
        self()
        k.I("s_waitcnt vmcnt(0)")
        self()
        k.I("s_memrealtime s[94:95]")
        k.I("s_waitcnt lgkmcnt(0)")
        k.I("s_sub_u32 s94, s94, s96")
        k.I("s_mov_b32 s%d, 0x2000000" % (S_WS + 2))
        k.I("v_lshrrev_b32 v%d, 6, v%d" % (b, b))
        k.I("s_mul_i32 s98, s98, %d" % self.nw)
        k.I("v_add_u32 v%d, s98, v%d" % (b, b))
        k.I("v_lshlrev_b32 v%d, 6, v%d" % (b, b))
        k.I("s_mov_b32 s98, 0x%x" % (STAMP_OFF + (self.kidx << 20)))
        k.I("s_mov_b64 exec, 1")
        for i in range(15):
            k.I(("s_sub_u32 s99, s%d, s64" % (64 + 2 * i) if i else "s_mov_b32 s99, s96") if i < self.n else "s_mov_b32 s99, 0")
            k.I("v_mov_b32 v%d, s99" % a)
            k.I("buffer_store_dword v%d, v%d, s[%d:%d], s98 offen offset:%d" % (a, b, S_WS, S_WS + 3, 4 * i))
        k.I("v_mov_b32 v%d, s94" % a)
        k.I("buffer_store_dword v%d, v%d, s[%d:%d], s98 offen offset:60" % (a, b, S_WS, S_WS + 3))
        self.n = sv

MF = "v_mfma_f32_32x32x16_bf16"
def mfma(d, a, b, c=None):
    return "%s %s, %s, %s, %s" % (MF, d, a, b, d if c is None else "0")

EXEC_ALL = "s_mov_b64 exec, -1"
EXEC_LO = "s_mov_b64 exec, 0xffffffff"
def exec_hi(k): k.I("s_mov_b32 exec_lo, 0\ns_mov_b32 exec_hi, -1")
def exec_both(k, m): k.I("s_mov_b32 exec_lo, 0x%x\ns_mov_b32 exec_hi, 0x%x" % (m, m))

def srd(k, s, lo, hi, nbytes):
    k.I("s_mov_b32 s%d, s%d" % (s, lo))
    k.I("s_mov_b32 s%d, s%d" % (s + 1, hi))
    k.I("s_mov_b32 s%d, 0x%x" % (s + 2, nbytes))
    k.I("s_mov_b32 s%d, 0x00020000" % (s + 3))

def cvt8(k, dst, src):
    for i in range(8):
        k.I("v_cvt_pk_bf16_f32 v%d, v%d, v%d" % (dst + i, src + 2 * i, src + 2 * i + 1))
def pk(op, d, a, b, mods=""):
    return "%s v[%d:%d], v[%d:%d], v[%d:%d]%s" % (op, d, d + 1, a, a + 1, b, b + 1, mods)

def xhalf(k, op, x, t):
    k.I("v_mov_b32 v%d, v%d" % (t, x))
    k.I("v_permlane32_swap_b32 v%d, v%d" % (x, t))
    k.I("%s v%d, v%d, v%d" % (op, x, x, t))

def neg_max_pieces(k, m, t0, t1, d6, d7, s_mask):
    k.I("v_and_b32 v%d, s%d, v%d" % (t0, s_mask, m))
    k.I("v_sub_f32 v%d, v%d, v%d" % (m, m, t0))
    k.I("v_and_b32 v%d, s%d, v%d" % (t1, s_mask, m))
    k.I("v_sub_f32 v%d, v%d, v%d" % (m, m, t1))
    exec_hi(k)
    k.I("v_cvt_pk_bf16_f32 v%d, -v%d, -v%d" % (d6, t0, t1))
    k.I("v_cvt_pk_bf16_f32 v%d, -v%d, 0" % (d7, m))
    k.I(EXEC_ALL)

class VmQueue:
    def __init__(self, k): self.k, self.q = k, []
    def add(self, tag): self.q.append(tag)
    def count_for(self, tags):
        idx = max(i for i, t in enumerate(self.q) if t in tags)
        return len(self.q) - 1 - idx
    def wait(self, tags):
        n = self.count_for(tags)
        assert n <= 63
        self.k.I("s_waitcnt vmcnt(%d)" % n)

def gen_k1():
    k = Kernel("qkv_kernel")
    WPART = 28672
    XBASE = 3 * WPART
    PHIB = XBASE + 8 * 8192
    LDS = PHIB + 2048
    S_X, S_W, S_WS, S_PHI = 12, 16, 20, 24
    sW, sHEAD, sBLK, sT, sBR = 28, 29, 30, 31, 32
    sWOFF, sXOFF, sXL, sTMP, sM = 33, 34, 35, 36, 37
    sC, sL, sMASK, sKV = 38, 40, 42, 43
    sROT, sKB, sWH, sWL, sWG, sWM, sXG = 44, 45, 46, 47, 48, 49, 50
    vL, vWD, vXD, vXR, vWR, vWR2, vL16, vPADV, vPH = 1, 2, 3, 7, 11, 12, 13, 14, 15
    AQ, AK, AV = 16, 32, 48
    XF = (64, 80)
    WF = (96, 108)
    PHI, IDN = 112, 120
    T = 128
    EP, EM = 136, 152
    TOUCH = opt("touch", 0)
    TFL = ["", " sc1", " sc0 sc1", " nt"][opt("tfl", 0)]
    KVP_, KVM_ = 16, 32
    vm = VmQueue(k)
    k.I("""
    s_cmp_ge_u32 s2, 256
    s_cbranch_scc1 L1_end
    s_and_b32 s3, s2, 7
    s_lshr_b32 s{br}, s3, 2
    s_mul_i32 s{tmp}, s{br}, 24
    s_load_dwordx4 s[4:7], s[0:1], s{tmp}
    s_load_dwordx2 s[8:9], s[0:1], 72
    s_load_dwordx2 s[10:11], s[0:1], 40
    v_lshrrev_b32 v2, 6, v0
    v_and_b32 v{l}, 63, v0
    v_readfirstlane_b32 s{w}, v2
    """.format(br=sBR, tmp=sTMP, l=vL, w=sW))
    st = Stamper(k, 0, 8, 134); st.start()
    k.I("""
    s_lshr_b32 s{tmp}, s2, 3
    s_and_b32 s{head}, s{tmp}, 7
    s_and_b32 s{m}, s3, 1
    s_lshl_b32 s{m}, s{m}, 3
    s_add_u32 s{head}, s{head}, s{m}
    s_lshr_b32 s{blk}, s{tmp}, 3
    s_and_b32 s{m}, s3, 2
    s_lshl_b32 s{m}, s{m}, 1
    s_add_u32 s{blk}, s{blk}, s{m}
    s_lshl_b32 s{t}, s{blk}, 3
    s_add_u32 s{t}, s{t}, s{w}
    v_lshrrev_b32 v{a}, 2, v{l}
    v_mul_u32_u24 v{a}, 2688, v{a}
    v_and_b32 v{b}, 3, v{l}
    v_lshl_add_u32 v{wd}, v{b}, 4, v{a}
    v_lshrrev_b32 v{a}, 3, v{l}
    v_mul_u32_u24 v{a}, 896, v{a}
    v_and_b32 v{b}, 7, v{l}
    v_lshrrev_b32 v{c}, 4, v{l}
    v_xor_b32 v{b}, v{b}, v{c}
    v_lshl_add_u32 v{x0}, v{b}, 4, v{a}
    v_xor_b32 v{b}, 4, v{b}
    v_lshl_add_u32 v{x1}, v{b}, 4, v{a}
    v_add_u32 v{x1}, 7168, v{x1}
    v_add_u32 v{x2}, 14336, v{x0}
    v_add_u32 v{x3}, 14336, v{x1}
    v_lshlrev_b32 v{l16}, 4, v{l}
    s_mul_i32 s{xoff}, s{t}, {xrow32}
    s_lshl_b32 s{xl}, s{w}, 13
    s_add_u32 s{xl}, s{xl}, {xbase}
    s_lshl_b32 s{tmp}, s{blk}, 1
    s_add_u32 s{rot}, s{head}, s{tmp}
    s_mul_i32 s{tmp}, s{rot}, 37
    s_lshr_b32 s{tmp}, s{tmp}, 8
    s_mul_i32 s{tmp}, s{tmp}, 7
    s_sub_u32 s{rot}, s{rot}, s{tmp}
    s_lshr_b32 s{wh}, s{w}, 2
    s_and_b32 s{wl}, s{w}, 3
    s_mul_i32 s{woff}, s{wl}, {r16}
    s_mul_i32 s{tmp}, s{head}, 56
    s_add_u32 s{woff}, s{woff}, s{tmp}
    s_lshl_b32 s{wl}, s{wl}, 10
    """.format(tmp=sTMP, head=sHEAD, m=sM, blk=sBLK, t=sT, w=sW, a=T, b=T + 1, c=T + 2, l=vL, wd=vWD,
               x0=vXD, x1=vXD + 1, x2=vXD + 2, x3=vXD + 3, l16=vL16, xoff=sXOFF, xrow32=32 * 896, xl=sXL, xbase=XBASE,
               rot=sROT, wh=sWH, wl=sWL, woff=sWOFF, r16=16 * 2688))
    if ROT == 0: k.I("s_mov_b32 s%d, 0" % sROT)
    if ROT == 2:
        k.I("s_add_u32 s%d, s%d, s%d" % (sROT, sHEAD, sBLK))
        k.I("s_and_b32 s%d, s%d, 1" % (sROT, sROT))
        k.I("s_mul_i32 s%d, s%d, 3" % (sROT, sROT))
    if ROT == 3:
        k.I("s_add_u32 s%d, s%d, s%d" % (sROT, sHEAD, sBLK))
        k.I("s_and_b32 s%d, s%d, 3" % (sROT, sROT))
        k.I("s_lshl_b32 s%d, s%d, 1" % (sROT, sROT))
    k.I("s_waitcnt lgkmcnt(0)")
    srd(k, S_X, 4, 5, 2048 * 896)
    srd(k, S_W, 6, 7, 448 * 2688)
    srd(k, S_PHI, 10, 11, 16 * 1568)

    def kblock(o, extra=None):
        k.I("s_add_u32 s%d, s%d, %d" % (sKB, sROT, o))
        if extra is not None: k.I("s_add_u32 s%d, s%d, s%d" % (sKB, sKB, extra))
        k.I("s_sub_u32 s%d, s%d, 7" % (sTMP, sKB))
        k.I("s_cmp_ge_u32 s%d, 7" % sKB)
        k.I("s_cselect_b32 s%d, s%d, s%d" % (sKB, sTMP, sKB))
    def wload(soff, tag):
        k.I("buffer_load_dwordx4 v%d, s[%d:%d], s%d offen lds" % (vWD, S_W, S_W + 3, soff)); vm.add(tag)
    def wdma(pair):
        def one(p):
            def f():
                if p == 0:
                    kblock(2 * pair, sWH)
                    k.I("s_mul_i32 s%d, s%d, %d" % (sWG, sKB, 64 * 2688))
                    k.I("s_add_u32 s%d, s%d, s%d" % (sWG, sWG, sWOFF))
                    k.I("s_lshl_b32 s%d, s%d, 12" % (sWM, sWH))
                    k.I("s_add_u32 s%d, s%d, s%d" % (sWM, sWM, sWL))
                k.I("s_add_u32 m0, s%d, %d" % (sWM, p * WPART + pair * 8192))
                k.I("s_add_u32 s%d, s%d, %d" % (sTMP, sWG, p * 896))
                wload(sTMP, "W%d" % pair)
            return f
        return [one(p) for p in range(3)]
    def wdma_tail():
        def f0():
            kblock(6)
            k.I("s_mul_i32 s%d, s%d, %d" % (sWG, sKB, 64 * 2688))
            k.I("s_add_u32 s%d, s%d, s%d" % (sWG, sWG, sWOFF))
            k.I("s_mul_i32 s%d, s%d, %d" % (sWM, sWH, WPART))
            k.I("s_add_u32 s%d, s%d, s%d" % (sWM, sWM, sWL))
            k.I("s_add_u32 m0, s%d, %d" % (sWM, 6 * 4096))
            k.I("s_mul_i32 s%d, s%d, 896" % (sTMP, sWH))
            k.I("s_add_u32 s%d, s%d, s%d" % (sTMP, sTMP, sWG))
            wload(sTMP, "W3")
        def f1():
            k.I("s_add_u32 m0, s%d, %d" % (sWL, 2 * WPART + 6 * 4096))
            k.I("s_add_u32 s%d, s%d, 1792" % (sTMP, sWG))
            wload(sTMP, "W3")
        return [f0, f1]
    def xdma(j):
        def one(i):
            def f():
                if i == 0:
                    kblock(j)
                    k.I("s_lshl_b32 s%d, s%d, 7" % (sXG, sKB))
                    k.I("s_add_u32 s%d, s%d, s%d" % (sXG, sXG, sXOFF))
                k.I("s_add_u32 m0, s%d, %d" % (sXL, (j & 1) * 4096 + i * 1024))
                k.I("s_nop 0")
                k.I("buffer_load_dwordx4 v%d, s[%d:%d], s%d offen lds" % (vXD + i, S_X, S_X + 3, sXG)); vm.add("x%d" % j)
            return f
        return [one(i) for i in range(4)]
    def run(fs):
        for f in fs: f()

    if TOUCH:
        k.I("s_cmp_eq_u32 s%d, 8" % sW)
        k.I("s_cbranch_scc1 L1_touch")
    k.I("""
    s_cmp_ge_u32 s{w}, 2
    s_cbranch_scc1 L1_nophi
    s_lshl_b32 s{m}, s{w}, 10
    s_mul_i32 s{tmp}, s{head}, 1568
    s_add_u32 m0, s{m}, {phib}
    s_add_u32 s{tmp}, s{tmp}, s{m}
    buffer_load_dwordx4 v{l16}, s[{p}:{p3}], s{tmp} offen lds
    """.format(w=sW, m=sM, tmp=sTMP, head=sHEAD, phib=PHIB, l16=vL16, p=S_PHI, p3=S_PHI + 3))
    k.label("L1_nophi")
    run(wdma(0)); run(xdma(0))
    k.I("s_barrier")
    run(xdma(1))
    srd(k, S_WS, 8, 9, WS_USED)
    k.I("""
    v_and_b32 v{s}, 31, v{l}
    v_lshrrev_b32 v{h}, 5, v{l}
    v_bfe_u32 v{c}, v{l}, 1, 3
    v_xor_b32 v{c}, v{c}, v{h}
    v_lshlrev_b32 v{d}, 7, v{s}
    v_add_u32 v{d}, s{xl}, v{d}
    v_lshl_add_u32 v{r0}, v{c}, 4, v{d}
    v_xor_b32 v{e}, 2, v{c}
    v_lshl_add_u32 v{r1}, v{e}, 4, v{d}
    v_xor_b32 v{e}, 4, v{c}
    v_lshl_add_u32 v{r2}, v{e}, 4, v{d}
    v_xor_b32 v{e}, 6, v{c}
    v_lshl_add_u32 v{r3}, v{e}, 4, v{d}
    v_bfe_u32 v{c}, v{l}, 4, 1
    v_lshlrev_b32 v{d}, 5, v{c}
    v_and_b32 v{c}, 3, v{l}
    v_lshl_add_u32 v{d}, v{c}, 3, v{d}
    v_bfe_u32 v{c}, v{l}, 2, 2
    v_lshl_add_u32 v{wr}, v{c}, 6, v{d}
    v_lshl_add_u32 v{wr}, v{h}, 9, v{wr}
    v_add_u32 v{wr2}, {p2}, v{wr}
    v_lshl_add_u32 v{c}, v{h}, 2, v{c}
    v_mul_u32_u24 v{c}, 56, v{c}
    v_add3_u32 v{ph}, v{c}, v{d}, 0
    v_add_u32 v{ph}, {phib}, v{ph}
    v_mov_b32 v{c}, 0x3f803f80
    v_cmp_eq_u32 vcc, 28, v{s}
    s_mov_b32 s{c0}, 0x{qs:x}
    s_mov_b32 s{c1}, 0x{qs:x}
    v_cndmask_b32 v{padv}, 0, v{c}, vcc
    s_mov_b32 s{l0}, 0x{lg:x}
    s_mov_b32 s{l1}, 0x{lg:x}
    s_mov_b32 s{mask}, 0xffff0000
    s_lshl_b32 s{kv}, s{head}, 6
    s_add_u32 s{kv}, s{kv}, s{t}
    """.format(s=T, h=T + 1, c=T + 2, d=T + 3, e=T + 4, l=vL, xl=sXL, r0=vXR, r1=vXR + 1, r2=vXR + 2, r3=vXR + 3,
               wr=vWR, wr2=vWR2, p2=2 * WPART, padv=vPADV, c0=sC, c1=sC + 1, qs=f2u(QSCALE), ph=vPH, phib=PHIB,
               l0=sL, l1=sL + 1, lg=f2u(LOG2E), mask=sMASK, kv=sKV, head=sHEAD, t=sT))
    k.I("v_lshlrev_b32 v%d, 2, v%d" % (T + 2, T + 1))
    k.I("v_sub_u32 v%d, v%d, v%d" % (T + 2, T, T + 2))
    k.I("v_mov_b32 v%d, 0x3f80" % (T + 3))
    k.I("v_mov_b32 v%d, 0x3f800000" % (T + 4))
    for p in range(8):
        base = 8 * (p >> 1) + 2 * (p & 1)
        k.I("v_cmp_eq_u32 vcc, %d, v%d" % (base, T + 2))
        k.I("v_cmp_eq_u32 s[52:53], %d, v%d" % (base + 1, T + 2))
        k.I("v_cndmask_b32 v%d, 0, v%d, vcc" % (IDN + p, T + 3))
        k.I("v_cndmask_b32 v%d, v%d, v%d, s[52:53]" % (IDN + p, IDN + p, T + 4))
    for i in range(12, 16):
        k.I("v_mov_b32 v%d, 0" % (EP + i))
        k.I("v_mov_b32 v%d, 0" % (EM + i))

    def xread(j):
        for kk in range(4):
            b = XF[j & 1] + 4 * kk
            k.I("ds_read_b128 v[%d:%d], v%d offset:%d" % (b, b + 3, vXR + kk, (j & 1) * 4096))
    def wread_one(ks, p, jj):
        b = WF[ks & 1] + 4 * p
        off = (p * WPART if p < 2 else 0) + ks * 1024 + jj * 256
        k.I("ds_read_b64_tr_b16 v[%d:%d], v%d offset:%d" % (b + 2 * jj, b + 2 * jj + 1, vWR2 if p == 2 else vWR, off))
    def wread(ks):
        for p in range(3):
            for jj in range(2): wread_one(ks, p, jj)

    st()
    vm.wait(["W0", "x0"])
    k.I("s_barrier")
    st()
    xread(0); wread(0)
    pend = []
    for ks in range(28):
        j, kk = ks >> 2, ks & 3
        nl = 0
        if kk == 3 and j < 6:
            vm.wait(["x%d" % (j + 1)])
            if j in (1, 3, 5): k.I("s_barrier")
            st()
            xread(j + 1); nl += 4
        if ks < 27:
            wread(ks + 1); nl += 6
        k.I("s_waitcnt lgkmcnt(%d)" % nl)
        if kk == 0:
            if j == 0: pend += wdma(1)
            if j == 2: pend += wdma(2)
            if j == 4: pend += wdma_tail()
            if j + 2 <= 6: pend += xdma(j + 2)
        xf = vr(XF[j & 1] + 4 * kk, 4)
        wf = WF[ks & 1]
        c = 0 if ks == 0 else None
        for m in (mfma(vr(AQ, 16), vr(wf, 4), xf, c), mfma(vr(AK, 16), vr(wf + 4, 4), xf, c), mfma(vr(AV, 16), xf, vr(wf + 8, 4), c)):
            k.I(m)
            if pend: pend.pop(0)()
        if kk == 3: assert not pend

    QF, KF, VF = 64, 72, 80
    def vfrag():
        cvt8(k, VF, AV)
        exec_both(k, 0xf0000000)
        for i in range(8): k.I("v_mov_b32 v%d, v%d" % (VF + i, vPADV))
        k.I(EXEC_ALL)
    def store4(reg, soff, off):
        k.I("buffer_store_dwordx4 v[%d:%d], v%d, s[%d:%d], s%d offen offset:%d%s" % (reg, reg + 3, vL16, S_WS, S_WS + 3, soff, off, SC))

    st()
    k.I("s_cmp_eq_u32 s%d, 0" % sBR)
    k.I("s_cbranch_scc0 L1_epiB")
    for i in range(8):
        k.I("v_pk_mul_f32 v[%d:%d], v[%d:%d], s[%d:%d]" % (AQ + 2 * i, AQ + 2 * i + 1, AQ + 2 * i, AQ + 2 * i + 1, sC, sC + 1))
    cvt8(k, QF, AQ)
    cvt8(k, KF, AK)
    exec_hi(k)
    k.I("v_mov_b32 v%d, 0" % (QF + 6))
    k.I("v_mov_b32 v%d, 0" % (QF + 7))
    k.I("v_mov_b32 v%d, 0x3f803f80" % (KF + 6))
    k.I("v_mov_b32 v%d, 0x3f80" % (KF + 7))
    k.I(EXEC_ALL)
    k.I(mfma(vr(AQ, 16), vr(KF, 4), vr(QF, 4), 0))
    k.I(mfma(vr(AQ, 16), vr(KF + 4, 4), vr(QF + 4, 4)))
    k.I("s_lshl_b32 s%d, s%d, 12" % (sTMP, sKV))
    store4(KF, sTMP, 0); store4(KF + 4, sTMP, 1024)
    vfrag()
    store4(VF, sTMP, 2048); store4(VF + 4, sTMP, 3072)
    m = T
    k.I("v_max3_f32 v%d, v%d, v%d, v%d" % (m, AQ, AQ + 1, AQ + 2))
    for i in range(3, 15, 2):
        k.I("v_max3_f32 v%d, v%d, v%d, v%d" % (m, m, AQ + i, AQ + i + 1))
    k.I("v_max_f32 v%d, v%d, v%d" % (m, m, AQ + 15))
    xhalf(k, "v_max_f32", m, T + 1)
    k.I("v_add_f32 v%d, 0x%x, v%d" % (m, f2u(MOFF), m))
    neg_max_pieces(k, m, T + 1, T + 2, QF + 6, QF + 7, sMASK)
    k.I("s_lshl_b32 s%d, s%d, 11" % (sTMP, sKV))
    k.I("s_add_u32 s%d, s%d, 0x%x" % (sTMP, sTMP, Q_OFF))
    store4(QF, sTMP, 0); store4(QF + 4, sTMP, 1024)
    st.dump(S_WS)
    k.I("s_endpgm")

    k.label("L1_epiB")
    for ff in range(2):
        for jj in range(2):
            r = PHI + 4 * ff + 2 * jj
            k.I("ds_read_b64_tr_b16 v[%d:%d], v%d offset:%d" % (r, r + 1, vPH, (16 * ff + 8 * jj) * 56))
    k.I("s_nop 7")
    cvt8(k, KF, AK)
    cvt8(k, QF, AQ)
    exec_hi(k)
    for r in (KF + 6, KF + 7, QF + 6, QF + 7): k.I("v_mov_b32 v%d, 0" % r)
    k.I(EXEC_ALL)
    k.I("s_waitcnt lgkmcnt(0)")
    k.I(mfma(vr(AK, 16), vr(PHI, 4), vr(KF, 4), 0))
    k.I(mfma(vr(AK, 16), vr(PHI + 4, 4), vr(KF + 4, 4)))
    k.I(mfma(vr(AQ, 16), vr(PHI, 4), vr(QF, 4), 0))
    k.I(mfma(vr(AQ, 16), vr(PHI + 4, 4), vr(QF + 4, 4)))
    vfrag()
    MX, MN, TT = T, T + 2, T + 4
    def feature(D, FP, FM, norm):
        if ROUND_PQ:
            for i in range(8):
                k.I("v_cvt_pk_bf16_f32 v%d, v%d, v%d" % (FP + i, D + 2 * i, D + 2 * i + 1))
            for i in range(8):
                k.I("v_lshlrev_b32 v%d, 16, v%d" % (D + 2 * i, FP + i))
                k.I("v_and_b32 v%d, s%d, v%d" % (D + 2 * i + 1, sMASK, FP + i))
        for (op3, op2, r) in (("v_max3_f32", "v_max_f32", MX), ("v_min3_f32", "v_min_f32", MN)):
            k.I("%s v%d, v%d, v%d, v%d" % (op3, r, D, D + 1, D + 2))
            for i in range(3, 11, 2):
                k.I("%s v%d, v%d, v%d, v%d" % (op3, r, r, D + i, D + i + 1))
            k.I("%s v%d, v%d, v%d" % (op2, r, r, D + 11))
        k.I(EXEC_LO)
        for (op3, r) in (("v_max3_f32", MX), ("v_min3_f32", MN)):
            k.I("%s v%d, v%d, v%d, v%d" % (op3, r, r, D + 12, D + 13))
            k.I("%s v%d, v%d, v%d, v%d" % (op3, r, r, D + 14, D + 15))
        k.I(EXEC_ALL)
        k.I("v_mov_b32 v%d, v%d" % (TT, MX))
        k.I("v_mov_b32 v%d, v%d" % (TT + 1, MN))
        k.I("v_permlane32_swap_b32 v%d, v%d" % (MX, TT))
        k.I("v_permlane32_swap_b32 v%d, v%d" % (MN, TT + 1))
        k.I("v_max_f32 v%d, v%d, v%d" % (MX, MX, TT))
        k.I("v_min_f32 v%d, v%d, v%d" % (MN, MN, TT + 1))
        k.I("v_mul_f32 v%d, s%d, v%d" % (MX, sL, MX))
        k.I("v_mul_f32 v%d, s%d, v%d" % (MN, sL, MN))
        def args(i):
            k.I("v_pk_fma_f32 v[%d:%d], v[%d:%d], s[%d:%d], v[%d:%d] op_sel_hi:[1,1,0] neg_lo:[0,0,1] neg_hi:[0,0,1]" %
                (EP + 2 * i, EP + 2 * i + 1, D + 2 * i, D + 2 * i + 1, sL, sL + 1, MX, MX + 1))
            k.I("v_pk_fma_f32 v[%d:%d], v[%d:%d], s[%d:%d], v[%d:%d] op_sel_hi:[1,1,0] neg_lo:[1,0,0] neg_hi:[1,0,0]" %
                (EM + 2 * i, EM + 2 * i + 1, D + 2 * i, D + 2 * i + 1, sL, sL + 1, MN, MN + 1))
        def exps(lo, hi):
            for i in range(lo, hi):
                k.I("v_exp_f32 v%d, v%d" % (EP + i, EP + i))
                k.I("v_exp_f32 v%d, v%d" % (EM + i, EM + i))
        for i in range(6): args(i)
        k.I(EXEC_LO)
        args(6); args(7); exps(12, 16)
        k.I(EXEC_ALL)
        exps(0, 12)
        if norm:
            for (E, r) in ((EP, MX), (EM, MN)):
                k.I(pk("v_pk_add_f32", r, E + 12, E + 14))
                for i in range(6):
                    k.I(pk("v_pk_add_f32", r, r, E + 2 * i))
                k.I("v_add_f32 v%d, v%d, v%d" % (r, r, r + 1))
            k.I("v_mov_b32 v%d, v%d" % (TT, MX))
            k.I("v_mov_b32 v%d, v%d" % (TT + 1, MN))
            k.I("v_permlane32_swap_b32 v%d, v%d" % (MX, TT))
            k.I("v_permlane32_swap_b32 v%d, v%d" % (MN, TT + 1))
            k.I("v_add_f32 v%d, v%d, v%d" % (MX, MX, TT))
            k.I("v_add_f32 v%d, v%d, v%d" % (MN, MN, TT + 1))
            k.I("v_rcp_f32 v%d, v%d" % (MX, MX))
            k.I("v_rcp_f32 v%d, v%d" % (MN, MN))
            for (E, r, F) in ((EP, MX, FP), (EM, MN, FM)):
                for i in range(8):
                    k.I(pk("v_pk_mul_f32", E + 2 * i, E + 2 * i, r, " op_sel_hi:[1,0]"))
                cvt8(k, F, E)
        else:
            cvt8(k, FP, EP); cvt8(k, FM, EM)
    FKP, FKM = 96, 104
    feature(AK, FKP, FKM, True)
    TPD, TMD = AK, AV
    k.I(mfma(vr(TPD, 16), vr(FKP, 4), vr(IDN, 4), 0))
    k.I(mfma(vr(TPD, 16), vr(FKP + 4, 4), vr(IDN + 4, 4)))
    k.I(mfma(vr(TMD, 16), vr(FKM, 4), vr(IDN, 4), 0))
    k.I(mfma(vr(TMD, 16), vr(FKM + 4, 4), vr(IDN + 4, 4)))
    FQP, FQM = 64, 72
    feature(AQ, FQP, FQM, False)
    k.I("s_lshl_b32 s%d, s%d, 12" % (sTMP, sKV))
    k.I("s_add_u32 s%d, s%d, 0x%x" % (sTMP, sTMP, PHIQ_OFF))
    for i in range(4): store4(FQP + 4 * i, sTMP, 1024 * i)
    TP, TM = 96, 104
    cvt8(k, TP, TPD)
    k.I(mfma(vr(EP, 16), vr(TP, 4), vr(VF, 4), 0))
    k.I(mfma(vr(EP, 16), vr(TP + 4, 4), vr(VF + 4, 4)))
    cvt8(k, TM, TMD)
    k.I(mfma(vr(EM, 16), vr(TM, 4), vr(VF, 4), 0))
    k.I(mfma(vr(EM, 16), vr(TM + 4, 4), vr(VF + 4, 4)))
    k.I("v_add_u32 v%d, s%d, v%d" % (T, sXL, vL16))
    k.I("s_lshl_b32 s%d, s%d, 10" % (sM, sW))
    k.I("s_add_u32 s%d, s%d, %d" % (sTMP, sM, XBASE))
    k.I("v_add_u32 v%d, s%d, v%d" % (T + 1, sTMP, vL16))
    for q in range(8):
        k.I("ds_write_b128 v%d, v[%d:%d] offset:%d" % (T, EP + 4 * q, EP + 4 * q + 3, 1024 * q))
    k.I("""
    s_lshl_b32 s{tmp}, s{head}, 3
    s_add_u32 s{tmp}, s{tmp}, s{blk}
    s_lshl_b32 s{tmp}, s{tmp}, 13
    s_add_u32 s{tmp}, s{tmp}, s{m}
    s_add_u32 s{tmp}, s{tmp}, 0x{off:x}
    """.format(tmp=sTMP, head=sHEAD, blk=sBLK, m=sM, off=KVP_OFF))
    k.I("s_waitcnt lgkmcnt(0)")
    st()
    k.I("s_barrier")
    for w in range(8):
        k.I("ds_read_b128 v[%d:%d], v%d offset:%d" % (16 + 4 * w, 19 + 4 * w, T + 1, 8192 * w))
    for w in range(1, 8):
        k.I("s_waitcnt lgkmcnt(%d)" % (7 - w))
        k.I(pk("v_pk_add_f32", 16, 16, 16 + 4 * w))
        k.I(pk("v_pk_add_f32", 18, 18, 18 + 4 * w))
    store4(16, sTMP, 0)
    st.dump(S_WS)
    k.label("L1_end")
    k.I("s_endpgm")
    if TOUCH:
        k.label("L1_touch")
        k.I("""
        v_and_b32 v{a}, 31, v{l}
        v_mul_u32_u24 v{a}, 896, v{a}
        v_lshrrev_b32 v{b}, 5, v{l}
        v_lshl_add_u32 v{a}, v{b}, 7, v{a}
        s_lshl_b32 s{tmp}, s{blk}, 3
        s_and_b32 s{m}, s{head}, 7
        s_add_u32 s{tmp}, s{tmp}, s{m}
        s_mul_i32 s{tmp}, s{tmp}, {xr32}
        v_mul_u32_u24 v{b}, 2688, v{l}
        v_and_b32 v{c}, 15, v{l}
        v_add_u32 v{c}, 64, v{c}
        v_mul_u32_u24 v{c}, 2688, v{c}
        v_lshrrev_b32 v{d}, 4, v{l}
        v_mul_u32_u24 v{d}, 896, v{d}
        v_add_u32 v{c}, v{c}, v{d}
        s_and_b32 s{m}, s{blk}, 3
        s_mul_i32 s{m}, s{m}, {w80}
        s_mul_i32 s{g}, s{head}, 56
        s_add_u32 s{m}, s{m}, s{g}
        s_add_u32 s{m}, s{m}, {w128}
        s_barrier
        buffer_load_dword v16, v{a}, s[{x}:{x3}], s{tmp} offen offset:256{fl}
        buffer_load_dword v17, v{b}, s[{w}:{w3}], s{m} offen{fl}
        buffer_load_dword v18, v{b}, s[{w}:{w3}], s{m} offen offset:896{fl}
        buffer_load_dword v19, v{b}, s[{w}:{w3}], s{m} offen offset:1792{fl}
        buffer_load_dword v20, v{c}, s[{w}:{w3}], s{m} offen{fl}
        buffer_load_dword v21, v{a}, s[{x}:{x3}], s{tmp} offen offset:512{fl}
        buffer_load_dword v22, v{a}, s[{x}:{x3}], s{tmp} offen offset:768{fl}
        s_endpgm
        """.format(a=T, b=T + 1, c=T + 2, d=T + 3, l=vL, tmp=sTMP, blk=sBLK, m=sM, head=sHEAD, xr32=32 * 896, w80=80 * 2688, g=sWG,
                   w128=128 * 2688, x=S_X, x3=S_X + 3, w=S_W, w3=S_W + 3, fl=TFL))
    return k, dict(grid=256, block=576 if TOUCH else 512, lds=LDS, vgpr=168, agpr=0, sgpr=102 if STAMP else 56)

def gen_k2(R=8):
    k = Kernel("attn_kernel")
    S_WS = 4
    sW, sHEAD, sTMP, sT, sU, sKVB, sP, sMASK, sFLAG, sPB, sPQ, sOA, sOB, sQA = 8, 9, 10, 11, 12, 13, 14, 15, 16, 17, 18, 19, 20, 21
    SWO = 100 - 8 if STAMP else 64
    sTILE = 24
    vL16 = 1
    Q = {"a": 4, "b": 12}
    S = {"a": 20, "b": 36}
    P = {"a": 52, "b": 60}
    O = {"a": 68, "b": 84}
    PART = 100
    NP, NM = 100, 116
    T = 164
    KVF = 180
    FB = 196
    PHQ = 16 * R
    NT = 32
    def KR(i, f): return ar((i % R) * 16 + 4 * f, 4)
    def VR(i, f): return ar((i % R) * 16 + 8 + 4 * f, 4)
    vm = VmQueue(k)
    k.I("""
    s_cmp_ge_u32 s2, 256
    s_cbranch_scc1 L2_end
    s_and_b32 s3, s2, 4
    s_lshl_b32 s3, s3, 3
    s_add_u32 s3, s3, 16
    s_load_dwordx2 s[22:23], s[0:1], s3
    s_load_dwordx2 s[0:1], s[0:1], 72
    v_lshrrev_b32 v2, 6, v0
    v_and_b32 v1, 63, v0
    v_lshlrev_b32 v1, 4, v1
    v_readfirstlane_b32 s{w}, v2
    s_and_b32 s{head}, s2, 7
    s_lshl_b32 s{head}, s{head}, 1
    s_lshr_b32 s{tmp}, s2, 7
    s_add_u32 s{head}, s{head}, s{tmp}
    s_bfe_u32 s{t}, s2, 0x40003
    s_lshl_b32 s{t}, s{t}, 2
    s_lshr_b32 s{u}, s{w}, 1
    s_and_b32 s{tmp}, s{w}, 1
    s_lshl_b32 s{tmp}, s{tmp}, 1
    s_add_u32 s{t}, s{t}, s{tmp}
    s_add_u32 s{t}, s{t}, s{u}
    s_lshl_b32 s{tmp}, s{head}, 6
    s_add_u32 s{tmp}, s{t}, s{tmp}
    s_lshl_b32 s{pq}, s{tmp}, 12
    s_lshl_b32 s{tmp}, s{tmp}, 11
    s_add_u32 s{tmp}, s{tmp}, 0x{qoff:x}
    s_xor_b32 s{qa}, s{tmp}, 0x800
    s_lshl_b32 s{kvb}, s{head}, 18
    s_lshl_b32 s{p}, s{u}, 17
    s_add_u32 s{p}, s{kvb}, s{p}
    s_mov_b32 s{ws2}, 0x{used:x}
    s_mov_b32 s{ws3}, 0x00020000
    s_waitcnt lgkmcnt(0)
    s_mov_b32 s{ws0}, s0
    s_mov_b32 s{ws1}, s1
    """.format(w=sW, head=sHEAD, tmp=sTMP, u=sU, t=sT, kvb=sKVB, p=sP, qoff=Q_OFF, pq=sPQ, qa=sQA,
               ws0=S_WS, ws1=S_WS + 1, ws2=S_WS + 2, ws3=S_WS + 3, used=WS_USED))
    st = Stamper(k, 1, 4, 250); st.start()
    def ld(dst, soff, off):
        k.I("buffer_load_dwordx4 %s, v%d, s[%d:%d], s%d offen offset:%d" % (dst, vL16, S_WS, S_WS + 3, soff, off))
    def LD(tag, dst, soff, off):
        ld(dst, soff, off); vm.add(tag)
    def ldK(j, f): LD("K%d" % j, KR(j, f), sTILE + j if j else sP, 1024 * f)
    def ldV(j, f): LD("V%d" % j, VR(j, f), sTILE + j if j else sP, 2048 + 1024 * f)
    LD("Qa", vr(Q["a"], 4), sQA, 0); LD("Qa", vr(Q["a"] + 4, 4), sQA, 1024)
    ldK(0, 0); ldK(0, 1)
    LD("Qb", vr(Q["b"], 4), sTMP, 0); LD("Qb", vr(Q["b"] + 4, 4), sTMP, 1024)
    ldV(0, 0); ldV(0, 1)
    NPRE = opt("npre", 3)
    for j in range(1, NPRE):
        k.I("s_add_u32 s%d, s%d, %d" % (sTILE + j, sP, 4096 * j))
        ldK(j, 0); ldK(j, 1); ldV(j, 0); ldV(j, 1)
    for j in range(NPRE, NT):
        k.I("s_add_u32 s%d, s%d, %d" % (sTILE + j, sP, 4096 * j))
    k.I("""
    s_lshl_b32 s{pb}, s{head}, 16
    s_lshl_b32 s{tmp}, s{w}, 11
    s_add_u32 s{pb}, s{pb}, s{tmp}
    s_add_u32 s{pb}, s{pb}, 0x{kvp:x}
    s_add_u32 s{pq}, s{pq}, 0x{phq:x}
    s_mov_b32 s{mask}, 0xffff0000
    s_mov_b32 s{flag}, 0
    s_lshl_b32 s{tmp}, s{t}, 4
    s_add_u32 s{tmp}, s{tmp}, s{head}
    s_lshl_b32 s{tmp}, s{tmp}, 11
    s_add_u32 s{oa}, s{tmp}, 0x{ooff:x}
    s_add_u32 s{ob}, s{tmp}, 0x{ooffb:x}
    s_lshl_b32 s{tmp}, s{w}, 10
    v_add_u32 v2, s{tmp}, v1
    s_lshl_b32 s{tmp}, s{w}, 12
    v_add_u32 v3, s{tmp}, v1
    s_xor_b32 s{tmp}, s{tmp}, 0x2000
    v_add_u32 v{xr}, s{tmp}, v1
    """.format(pb=sPB, head=sHEAD, tmp=sTMP, w=sW, kvp=KVP_OFF, t=sT, pq=sPQ, phq=PHIQ_OFF, mask=sMASK, flag=sFLAG,
               oa=sOA, ob=sOB, ooff=O_OFF, ooffb=O_OFF + (2 << 20), xr=T + 15))
    for blk in range(8):
        k.I("s_add_u32 s%d, s%d, %d" % (56 + blk, sPB, 8192 * blk)) if not STAMP or True else None
    ring = []
    for j in range(NPRE, NT):
        for f in range(2): ring.append(("K", j, f))
        for f in range(2): ring.append(("V", j, f))
    side = [("part", blk, q) for blk in range(8) for q in range(2)] + [("phq", f, 0) for f in range(4)]
    if opt("wopf", 1):
        side.insert(0, ("wo", 0, 0))
        k.I("""
        s_lshr_b32 s{tmp}, s2, 3
        s_lshl_b32 s{tmp}, s{tmp}, 2
        s_add_u32 s{tmp}, s{tmp}, s{w}
        s_mul_i32 s3, s{tmp}, 3200
        v_lshlrev_b32 v{x}, 3, v1
        v_mov_b32 v{y}, 0x40000000
        v_cmp_gt_u32 vcc, 3200, v{x}
        s_mov_b32 s64, s22
        s_mov_b32 s65, s23
        v_cndmask_b32 v{x}, v{y}, v{x}, vcc
        s_mov_b32 s66, {nb}
        s_mov_b32 s67, 0x00020000
        """.format(tmp=sTMP, w=sW, x=T + 14, y=T + 13, nb=448 * 896).replace("s64", "s%d" % SWO).replace("s65", "s%d" % (SWO + 1)).replace("s66", "s%d" % (SWO + 2)).replace("s67", "s%d" % (SWO + 3)))
    freeK = R - 1
    freeV = R - 1
    def slot_fill(allow_side):
        if ring:
            kind, j, f = ring[0]
            if j <= (freeK if kind == "K" else freeV):
                ring.pop(0)
                (ldK if kind == "K" else ldV)(j, f)
                return
        if allow_side and side:
            kind, a, b = side.pop(0)
            if kind == "wo":
                k.I("buffer_load_dword v%d, v%d, s[%d:%d], s3 offen" % (T + 13, T + 14, SWO, SWO + 3)); vm.add("side")
            elif kind == "part": LD("side", vr(PART + 8 * a + 4 * b, 4), 56 + a, 1024 * b)
            else: LD("side", ar(PHQ + 4 * a, 4), sPQ, 1024 * a)

    def qk(x, i):
        return [mfma(vr(S[x], 16), KR(i, 0), vr(Q[x], 4), 0), mfma(vr(S[x], 16), KR(i, 1), vr(Q[x] + 4, 4))]
    def pv(x, i, first=False):
        return [mfma(vr(O[x], 16), VR(i, 0), vr(P[x], 4), 0 if first else None), mfma(vr(O[x], 16), VR(i, 1), vr(P[x] + 4, 4))]
    def phase(x, mf, after):
        def cv(n): return "v_cvt_pk_bf16_f32 v%d, v%d, v%d" % (P[x] + n, S[x] + 2 * n, S[x] + 2 * n + 1)
        def ex(n): return "v_exp_f32 v%d, v%d" % (S[x] + n, S[x] + n)
        for g in range(4):
            if mf[g] is not None: k.I(mf[g])
            after[g]()
            k.I(ex(4 * g)); k.I(ex(4 * g + 1))
            if g > 0: k.I(cv(2 * g - 1))
            k.I(ex(4 * g + 2)); k.I(ex(4 * g + 3))
            k.I(cv(2 * g))
        k.I(cv(7))
    def bcast_hi(src, t0, t1):
        k.I("v_mov_b32 v%d, v%d" % (t0, src))
        k.I("v_mov_b32 v%d, v%d" % (t1, src))
        k.I("v_permlane32_swap_b32 v%d, v%d" % (t0, t1))
    def normalise(X, F, soff, eps):
        bcast_hi(X + 12, T, T + 2)
        if eps: k.I("v_add_f32 v%d, 0x%x, v%d" % (T + 2, f2u(1e-6), T + 2))
        k.I("v_rcp_f32 v%d, v%d" % (T + 2, T + 2))
        for i in range(8):
            k.I(pk("v_pk_mul_f32", X + 2 * i, X + 2 * i, T + 2, " op_sel_hi:[1,0]"))
        cvt8(k, F, X)
        exec_hi(k)
        k.I("v_mov_b32 v%d, 0" % (F + 6))
        k.I("v_mov_b32 v%d, 0" % (F + 7))
        k.I(EXEC_ALL)
        for f in range(2):
            k.I("buffer_store_dwordx4 v[%d:%d], v%d, s[%d:%d], s%d offen offset:%d%s" % (F + 4 * f, F + 4 * f + 3, vL16, S_WS, S_WS + 3, soff, 1024 * f, SC))
            vm.add("store")

    def b_step1():
        assert not side
        vm.wait(["side"])
        for blk in range(1, 8):
            for q in range(4):
                k.I(pk("v_pk_add_f32", PART + 2 * q, PART + 2 * q, PART + 8 * blk + 2 * q))
        for q in range(4):
            k.I("v_cvt_pk_bf16_f32 v%d, v%d, v%d" % (T + q, PART + 2 * q, PART + 2 * q + 1))
        exec_both(k, 0x20000000)
        for q in range(4): k.I("v_mov_b32 v%d, 0x3f803f80" % (T + q))
        k.I(EXEC_ALL)
        k.I("ds_write_b128 v2, v[%d:%d] offset:16384" % (T, T + 3))
    def b_step2():
        k.I("s_waitcnt lgkmcnt(0)")
        k.I("s_barrier")
        for f in range(4):
            k.I("ds_read_b128 v[%d:%d], v%d offset:%d" % (KVF + 4 * f, KVF + 4 * f + 3, vL16, 16384 + 1024 * f))
    def b_step3():
        k.I("s_waitcnt lgkmcnt(0)")
        for f in range(4):
            k.I(mfma(vr(NP if f < 2 else NM, 16), vr(KVF + 4 * f, 4), ar(PHQ + 4 * f, 4), 0 if f % 2 == 0 else None))
    def b_step4():
        bcast_hi(NP + 13, T, T + 2)
        bcast_hi(NM + 13, T + 1, T + 4)
        k.I("v_rcp_f32 v%d, v%d" % (T + 2, T + 2))
        k.I("v_rcp_f32 v%d, v%d" % (T + 4, T + 4))
        for i in range(8):
            k.I(pk("v_pk_mul_f32", NP + 2 * i, NP + 2 * i, T + 2, " op_sel_hi:[1,0]"))
        for i in range(8):
            k.I("v_pk_fma_f32 v[%d:%d], v[%d:%d], v[%d:%d], v[%d:%d] op_sel_hi:[1,0,1]" %
                (NP + 2 * i, NP + 2 * i + 1, NM + 2 * i, NM + 2 * i + 1, T + 4, T + 5, NP + 2 * i, NP + 2 * i + 1))
        normalise(NP, FB, sOB, True)
    BT = opt("bt", 27)
    bsteps = {BT: b_step1, BT + 1: b_step2, BT + 2: b_step3, BT + 3: b_step4}

    st()
    vm.wait(["Qa", "K0"])
    st()
    for m in qk("a", 0): k.I(m)
    vm.wait(["Qb"])
    nop = lambda: None
    for i in range(NT):
        if i in (1, 4, 8, 16, 24): st()
        if i in bsteps: bsteps[i]()
        mfA = qk("b", i) + (pv("b", i - 1, first=(i == 1)) if i > 0 else [None, None])
        need = ["V%d" % i] + (["K%d" % (i + 1)] if i + 1 < NT else [])
        def a1():
            nonlocal freeK
            freeK = i + R
            slot_fill(False)
        def a3():
            nonlocal freeV
            if i > 0: freeV = i - 1 + R
            vm.wait(need)
        phase("a", mfA, [lambda: slot_fill(True), a1, lambda: slot_fill(False), a3])
        if i + 1 < NT:
            mfB = qk("a", i + 1) + pv("a", i, first=(i == 0))
            phase("b", mfB, [lambda: slot_fill(False), lambda: slot_fill(False), lambda: slot_fill(True), lambda: slot_fill(False)])
        else:
            mfB = pv("a", i) + [None, None]
            def send():
                for q in range(4):
                    k.I("ds_write_b128 v3, v[%d:%d] offset:%d" % (O["a"] + 4 * q, O["a"] + 4 * q + 3, 1024 * q))
            phase("b", mfB, [nop, nop, nop, send])
    assert not side and not ring
    for m in pv("b", NT - 1): k.I(m)
    st()
    k.I("s_waitcnt lgkmcnt(0)")
    k.I("s_barrier")
    for q in range(4):
        k.I("ds_read_b128 v[%d:%d], v%d offset:%d" % (O["a"] + 4 * q, O["a"] + 4 * q + 3, T + 15, 1024 * q))
    OB = O["b"]
    for q in range(4):
        k.I("s_waitcnt lgkmcnt(%d)" % (3 - q))
        k.I(pk("v_pk_add_f32", OB + 4 * q, OB + 4 * q, O["a"] + 4 * q))
        k.I(pk("v_pk_add_f32", OB + 4 * q + 2, OB + 4 * q + 2, O["a"] + 4 * q + 2))
    k.I("v_pk_mul_f32 v[%d:%d], v[%d:%d], 0" % (T, T + 1, OB, OB + 1))
    for i in range(1, 8):
        k.I("v_pk_fma_f32 v[%d:%d], v[%d:%d], 0, v[%d:%d]" % (T, T + 1, OB + 2 * i, OB + 2 * i + 1, T, T + 1))
    k.I("v_cmp_u_f32 vcc, v%d, v%d" % (T, T + 1))
    k.I("s_cbranch_vccnz L2_slow")
    k.label("L2_norm")
    normalise(OB, P["a"], sOA, False)
    st.dump(S_WS)
    k.label("L2_end")
    k.I("s_endpgm")

    k.label("L2_slow")
    SS, QQ = S["b"], Q["b"]
    exec_hi(k)
    k.I("v_mov_b32 v%d, 0" % (QQ + 6))
    k.I("v_mov_b32 v%d, 0" % (QQ + 7))
    k.I(EXEC_ALL)
    k.I("v_mov_b32 v%d, 0xff800000" % T)
    k.I("s_mov_b32 s%d, s%d" % (sP, sKVB))
    k.I("s_add_u32 s%d, s%d, 0x40000" % (sTMP, sKVB))
    k.label("L2_slow1")
    ld(ar(0, 4), sP, 0); ld(ar(4, 4), sP, 1024)
    k.I("s_waitcnt vmcnt(0)")
    k.I(mfma(vr(SS, 16), ar(0, 4), vr(QQ, 4), 0))
    k.I(mfma(vr(SS, 16), ar(4, 4), vr(QQ + 4, 4)))
    for i in range(0, 16, 2):
        k.I("v_max3_f32 v%d, v%d, v%d, v%d" % (T, T, SS + i, SS + i + 1))
    k.I("s_add_u32 s%d, s%d, 4096" % (sP, sP))
    k.I("s_cmp_lt_u32 s%d, s%d" % (sP, sTMP))
    k.I("s_cbranch_scc1 L2_slow1")
    xhalf(k, "v_max_f32", T, T + 1)
    neg_max_pieces(k, T, T + 1, T + 2, QQ + 6, QQ + 7, sMASK)
    for i in range(16): k.I("v_mov_b32 v%d, 0" % (OB + i))
    k.I("s_mov_b32 s%d, s%d" % (sP, sKVB))
    k.label("L2_slow2")
    for f in range(4): ld(ar(4 * f, 4), sP, 1024 * f)
    k.I("s_waitcnt vmcnt(0)")
    k.I(mfma(vr(SS, 16), ar(0, 4), vr(QQ, 4), 0))
    k.I(mfma(vr(SS, 16), ar(4, 4), vr(QQ + 4, 4)))
    for i in range(16): k.I("v_exp_f32 v%d, v%d" % (SS + i, SS + i))
    cvt8(k, P["a"], SS)
    k.I(mfma(vr(OB, 16), ar(8, 4), vr(P["a"], 4)))
    k.I(mfma(vr(OB, 16), ar(12, 4), vr(P["a"] + 4, 4)))
    k.I("s_add_u32 s%d, s%d, 4096" % (sP, sP))
    k.I("s_cmp_lt_u32 s%d, s%d" % (sP, sTMP))
    k.I("s_cbranch_scc1 L2_slow2")
    k.I("s_nop 7\ns_nop 7")
    k.I("s_branch L2_norm")
    return k, dict(grid=256, block=256, lds=20480, vgpr=256, agpr=16 * R + 16, sgpr=102 if STAMP else 68)

def gen_k3():
    k = Kernel("oproj_kernel")
    S_WO, S_WS, S_OUT = 8, 12, 16
    sW, sBR, sRB, sCG, sTMP, sWO, sO, sM = 20, 21, 22, 23, 24, 25, 26, 27
    vL, vL16, vWD, vWR, vWR1, vST = 1, 2, 3, 4, 5, 6
    ACC = (16, 32)
    WF = 48
    T = 80
    NR = 480
    vm = VmQueue(k)
    k.I("""
    s_cmp_ge_u32 s2, 224
    s_cbranch_scc1 L3_end
    s_and_b32 s3, s2, 7
    s_lshr_b32 s{br}, s3, 2
    s_lshl_b32 s{tmp}, s{br}, 5
    s_add_u32 s{tmp}, s{tmp}, 16
    s_load_dwordx2 s[4:5], s[0:1], s{tmp}
    s_load_dwordx2 s[6:7], s[0:1], 72
    s_load_dwordx2 s[0:1], s[0:1], 56
    v_lshrrev_b32 v2, 6, v0
    v_and_b32 v{l}, 63, v0
    v_readfirstlane_b32 s{w}, v2
    v_lshlrev_b32 v{l16}, 4, v{l}
    v_lshrrev_b32 v{a}, 3, v{l}
    v_mul_u32_u24 v{a}, 896, v{a}
    v_and_b32 v{b}, 7, v{l}
    v_bfe_u32 v{c}, v{l}, 4, 1
    v_lshlrev_b32 v{c}, 2, v{c}
    v_xor_b32 v{b}, v{b}, v{c}
    v_lshl_add_u32 v{wd}, v{b}, 4, v{a}
    s_and_b32 s{rb}, s3, 3
    s_lshl_b32 s{rb}, s{rb}, 2
    s_bfe_u32 s{tmp}, s2, 0x20003
    s_add_u32 s{rb}, s{rb}, s{tmp}
    s_lshr_b32 s{cg}, s2, 5
    s_mul_i32 s{wo}, s{w}, {r8}
    s_lshl_b32 s{m}, s{w}, 10
    s_lshl_b32 s{tmp}, s{cg}, 7
    s_add_u32 s{wo}, s{wo}, s{tmp}
    s_lshl_b32 s{o}, s{br}, 6
    s_lshl_b32 s{rb}, s{rb}, 2
    s_add_u32 s{rb}, s{rb}, s{w}
    s_add_u32 s{o}, s{o}, s{rb}
    s_lshl_b32 s{o}, s{o}, 15
    s_add_u32 s{o}, s{o}, 0x{ooff:x}
    s_waitcnt lgkmcnt(0)
    """.format(br=sBR, tmp=sTMP, l=vL, w=sW, l16=vL16, a=T, b=T + 1, c=T + 2, wd=vWD, rb=sRB, cg=sCG, wo=sWO, m=sM, r8=8 * 896,
               o=sO, ooff=O_OFF))
    st = Stamper(k, 2, 4, 94); st.start()
    srd(k, S_WO, 4, 5, 448 * 896)
    srd(k, S_WS, 6, 7, WS_USED)
    def wdma(n):
        k.I("s_add_u32 m0, s%d, %d" % (sM, n * 4096))
        k.I("s_add_u32 s%d, s%d, %d" % (sTMP, sWO, n * 32 * 896))
        k.I("buffer_load_dwordx4 v%d, s[%d:%d], s%d offen lds" % (vWD, S_WO, S_WO + 3, sTMP))
        vm.add("w%d" % n)
    def oload(h, f):
        if h % 2 == 0 and f == 0:
            k.I("s_add_u32 s%d, s%d, %d" % (28, sO, h * 2048))
        k.I("buffer_load_dwordx4 a[%d:%d], v%d, s[%d:%d], s28 offen offset:%d" % (8 * h + 4 * f, 8 * h + 4 * f + 3, vL16, S_WS, S_WS + 3, (h % 2) * 2048 + 1024 * f))
        vm.add("o%d" % h)
    AHEAD = opt("ahead", 5)
    wneed = lambda h: (28 * h + 31) // 32
    nextw = 0
    def issue_head(h):
        nonlocal nextw
        L = []
        while nextw <= wneed(h):
            L.append(lambda n=nextw: wdma(n)); nextw += 1
        L.append(lambda: oload(h, 0)); L.append(lambda: oload(h, 1))
        return L
    for h in range(AHEAD):
        for f in issue_head(h): f()
    srd(k, S_OUT, 0, 1, 2048 * 1792)
    k.I("""
    v_lshrrev_b32 v{h}, 5, v{l}
    v_lshlrev_b32 v{wr}, 9, v{h}
    v_bfe_u32 v{c}, v{l}, 2, 2
    v_lshl_add_u32 v{wr}, v{c}, 7, v{wr}
    v_bfe_u32 v{c}, v{l}, 3, 1
    v_lshl_add_u32 v{wr}, v{c}, 6, v{wr}
    v_bfe_u32 v{c}, v{l}, 4, 1
    v_lshl_add_u32 v{wr}, v{c}, 5, v{wr}
    v_and_b32 v{c}, 3, v{l}
    v_lshl_add_u32 v{wr}, v{c}, 3, v{wr}
    v_xor_b32 v{wr1}, 64, v{wr}
    v_and_b32 v{c}, 31, v{l}
    v_mul_u32_u24 v{c}, 1792, v{c}
    v_lshl_add_u32 v{st}, v{h}, 4, v{c}
    s_mul_i32 s{rb}, s{rb}, {r32}
    s_mul_i32 s{tmp}, s{br}, 896
    s_add_u32 s{rb}, s{rb}, s{tmp}
    s_lshl_b32 s{tmp}, s{cg}, 7
    s_add_u32 s{rb}, s{rb}, s{tmp}
    """.format(h=T, c=T + 1, l=vL, wr=vWR, wr1=vWR1, st=vST, rb=sRB, r32=32 * 1792, tmp=sTMP, br=sBR, cg=sCG))
    def wread(h):
        b = WF + 16 * (h & 1)
        for f in range(2):
            for c in range(2):
                for jj in range(2):
                    r = b + 8 * c + 4 * f + 2 * jj
                    k.I("ds_read_b64_tr_b16 v[%d:%d], v%d offset:%d" % (r, r + 1, vWR1 if c else vWR, (28 * h + 16 * f + 8 * jj) * 128))
    SYNC = opt("sync", 2)
    def sync(h):
        vm.wait(["w%d" % wneed(min(h + SYNC - 1, 15))])
        k.I("s_barrier")
    st()
    sync(0); st(); wread(0)
    for h in range(16):
        nl = 0
        if h + 1 < 16:
            if (h + 1) % SYNC == 0:
                sync(h + 1)
                if (h + 1) % 4 == 0: st()
            wread(h + 1); nl = 8
        vm.wait(["o%d" % h])
        k.I("s_waitcnt lgkmcnt(%d)" % nl)
        pend = issue_head(h + AHEAD) if h + AHEAD < 16 else []
        b = WF + 16 * (h & 1)
        for f in range(2):
            for c in range(2):
                k.I(mfma(vr(ACC[c], 16), vr(b + 8 * c + 4 * f, 4), ar(8 * h + 4 * f, 4), 0 if (h == 0 and f == 0) else None))
                if pend: pend.pop(0)()
        assert not pend
    st()
    for c in range(2):
        F = WF + 8 * c
        cvt8(k, F, ACC[c])
        for gp in range(2):
            k.I("v_permlane32_swap_b32 v%d, v%d" % (F + 4 * gp, F + 4 * gp + 2))
            k.I("v_permlane32_swap_b32 v%d, v%d" % (F + 4 * gp + 1, F + 4 * gp + 3))
            k.I("buffer_store_dwordx4 v[%d:%d], v%d, s[%d:%d], s%d offen offset:%d" % (F + 4 * gp, F + 4 * gp + 3, vST, S_OUT, S_OUT + 3, sRB, 64 * c + 32 * gp))
    st.dump(S_WS)
    k.label("L3_end")
    k.I("s_endpgm")
    return k, dict(grid=224, block=256, lds=NR * 128, vgpr=96, agpr=128, sgpr=102 if STAMP else 32)

HEADER = open("cdna_kernels/%s.s.ref" % NAME).read().split("; Override launch geometry")[0]

def build(kernels):
    out = [HEADER.rstrip("\n")]
    for k, cfg in kernels:
        out.append("; @launch kernel=%s grid=(%d,1,1) block=(%d,1,1) lds=%d" % (k.name, cfg["grid"], cfg["block"], cfg["lds"]))
    out.append('.amdgcn_target "amdgcn-amd-amdhsa--gfx950"')
    out.append(".text")
    for k, cfg in kernels:
        k.fix_hazards(verbose=("-v" in sys.argv))
        out += [".globl %s" % k.name, ".p2align 8", ".type %s,@function" % k.name, "%s:" % k.name, k.text()]
    out.append('.section .rodata,"a"')
    for k, cfg in kernels:
        acc = (cfg["vgpr"] + 3) // 4 * 4
        out += [".p2align 6", ".amdhsa_kernel %s" % k.name,
                "  .amdhsa_next_free_vgpr %d" % (acc + cfg["agpr"] if cfg["agpr"] else cfg["vgpr"]),
                "  .amdhsa_next_free_sgpr %d" % cfg["sgpr"],
                "  .amdhsa_accum_offset %d" % acc,
                "  .amdhsa_group_segment_fixed_size 0",
                "  .amdhsa_kernarg_size 80",
                "  .amdhsa_user_sgpr_count 2",
                "  .amdhsa_user_sgpr_kernarg_segment_ptr 1",
                "  .amdhsa_system_sgpr_workgroup_id_x 1",
                ".end_amdhsa_kernel"]
    return "\n".join(out) + "\n"

if __name__ == "__main__":
    txt = build([gen_k1(), gen_k2(opt("R", 8)), gen_k3()])
    path = "cdna_kernels/%s.s" % NAME
    for a in sys.argv[1:]:
        if a.endswith(".s"): path = a
    open(path, "w").write(txt)
    print("wrote", path, len(txt), "bytes")
```

```python
import sys, struct
from asmlib import Kernel, vr, ar, sr

NAME = "concat_heads__mha_block__linear_kernel_hedgehog__prompt"
def f2u(x): return struct.unpack("<I", struct.pack("<f", x))[0]
def opt(name, default):
    for a in sys.argv[1:]:
        if a.startswith(name + "="): return int(a.split("=")[1])
    return default

KV_OFF   = 0
Q_OFF    = 4 << 20
QB_OFF   = 6 << 20
KVP_OFF  = 8 << 20
O_OFF    = 10 << 20
WS_USED  = 14 << 20

LOG2E = 1.4426950408889634
QSCALE = 28 ** -0.5 * LOG2E
MOFF = 40.0
ROUND_PQ = opt("round", 0)
ROT = opt("rot", 1)
SC = ["", " sc1", " sc0 sc1", " nt", " sc1 nt"][opt("sc", 1)]

STAMP = "-stamp" in sys.argv
STAMP_OFF = 16 << 20
class Stamper:
    def __init__(self, k, kidx, nwaves, va):
        self.k, self.kidx, self.n, self.nw, self.va = k, kidx, 0, nwaves, va
    def start(self):
        if not STAMP: return
        self.k.I("s_memrealtime s[96:97]")
        self.k.I("s_mov_b32 s98, s2")
        self.k.I("v_mov_b32 v%d, v0" % (self.va + 1))
        self()
    def __call__(self):
        if not STAMP: return
        self.k.I("s_memtime s[%d:%d]" % (64 + 2 * self.n, 65 + 2 * self.n)); self.n += 1
        assert self.n <= 15
    def dump(self, S_WS):
        if not STAMP: return
        k, a, b = self.k, self.va, self.va + 1
        sv = self.n
        self()
        k.I("s_waitcnt vmcnt(0)")
        self()
        k.I("s_memrealtime s[94:95]")
        k.I("s_waitcnt lgkmcnt(0)")
        k.I("s_sub_u32 s94, s94, s96")
        k.I("s_mov_b32 s%d, 0x2000000" % (S_WS + 2))
        k.I("v_lshrrev_b32 v%d, 6, v%d" % (b, b))
        k.I("s_mul_i32 s98, s98, %d" % self.nw)
        k.I("v_add_u32 v%d, s98, v%d" % (b, b))
        k.I("v_lshlrev_b32 v%d, 6, v%d" % (b, b))
        k.I("s_mov_b32 s98, 0x%x" % (STAMP_OFF + (self.kidx << 20)))
        k.I("s_mov_b64 exec, 1")
        for i in range(15):
            k.I(("s_sub_u32 s99, s%d, s64" % (64 + 2 * i) if i else "s_mov_b32 s99, s96") if i < self.n else "s_mov_b32 s99, 0")
            k.I("v_mov_b32 v%d, s99" % a)
            k.I("buffer_store_dword v%d, v%d, s[%d:%d], s98 offen offset:%d" % (a, b, S_WS, S_WS + 3, 4 * i))
        k.I("v_mov_b32 v%d, s94" % a)
        k.I("buffer_store_dword v%d, v%d, s[%d:%d], s98 offen offset:60" % (a, b, S_WS, S_WS + 3))
        self.n = sv

MF = "v_mfma_f32_32x32x16_bf16"
def mfma(d, a, b, c=None):
    return "%s %s, %s, %s, %s" % (MF, d, a, b, d if c is None else "0")

EXEC_ALL = "s_mov_b64 exec, -1"
EXEC_LO = "s_mov_b64 exec, 0xffffffff"
def exec_hi(k): k.I("s_mov_b32 exec_lo, 0\ns_mov_b32 exec_hi, -1")
def exec_both(k, m): k.I("s_mov_b32 exec_lo, 0x%x\ns_mov_b32 exec_hi, 0x%x" % (m, m))

def srd(k, s, lo, hi, nbytes):
    k.I("s_mov_b32 s%d, s%d" % (s, lo))
    k.I("s_mov_b32 s%d, s%d" % (s + 1, hi))
    k.I("s_mov_b32 s%d, 0x%x" % (s + 2, nbytes))
    k.I("s_mov_b32 s%d, 0x00020000" % (s + 3))

def cvt8(k, dst, src):
    for i in range(8):
        k.I("v_cvt_pk_bf16_f32 v%d, v%d, v%d" % (dst + i, src + 2 * i, src + 2 * i + 1))
def pk(op, d, a, b, mods=""):
    return "%s v[%d:%d], v[%d:%d], v[%d:%d]%s" % (op, d, d + 1, a, a + 1, b, b + 1, mods)

def xhalf(k, op, x, t):
    k.I("v_mov_b32 v%d, v%d" % (t, x))
    k.I("v_permlane32_swap_b32 v%d, v%d" % (x, t))
    k.I("%s v%d, v%d, v%d" % (op, x, x, t))

def neg_max_pieces(k, m, t0, t1, d6, d7, s_mask):
    k.I("v_and_b32 v%d, s%d, v%d" % (t0, s_mask, m))
    k.I("v_sub_f32 v%d, v%d, v%d" % (m, m, t0))
    k.I("v_and_b32 v%d, s%d, v%d" % (t1, s_mask, m))
    k.I("v_sub_f32 v%d, v%d, v%d" % (m, m, t1))
    exec_hi(k)
    k.I("v_cvt_pk_bf16_f32 v%d, -v%d, -v%d" % (d6, t0, t1))
    k.I("v_cvt_pk_bf16_f32 v%d, -v%d, 0" % (d7, m))
    k.I(EXEC_ALL)

class VmQueue:
    def __init__(self, k): self.k, self.q = k, []
    def add(self, tag): self.q.append(tag)
    def count_for(self, tags):
        idx = max(i for i, t in enumerate(self.q) if t in tags)
        return len(self.q) - 1 - idx
    def wait(self, tags):
        n = self.count_for(tags)
        assert n <= 63
        self.k.I("s_waitcnt vmcnt(%d)" % n)

def feature_map(k, D, FP, FM, EP, EM, T, sL, norm):
    MX, MN, TT = T, T + 2, T + 4
    for (op3, op2, r) in (("v_max3_f32", "v_max_f32", MX), ("v_min3_f32", "v_min_f32", MN)):
        k.I("%s v%d, v%d, v%d, v%d" % (op3, r, D, D + 1, D + 2))
        for i in range(3, 11, 2):
            k.I("%s v%d, v%d, v%d, v%d" % (op3, r, r, D + i, D + i + 1))
        k.I("%s v%d, v%d, v%d" % (op2, r, r, D + 11))
    k.I(EXEC_LO)
    for (op3, r) in (("v_max3_f32", MX), ("v_min3_f32", MN)):
        k.I("%s v%d, v%d, v%d, v%d" % (op3, r, r, D + 12, D + 13))
        k.I("%s v%d, v%d, v%d, v%d" % (op3, r, r, D + 14, D + 15))
    k.I(EXEC_ALL)
    k.I("v_mov_b32 v%d, v%d" % (TT, MX))
    k.I("v_mov_b32 v%d, v%d" % (TT + 1, MN))
    k.I("v_permlane32_swap_b32 v%d, v%d" % (MX, TT))
    k.I("v_permlane32_swap_b32 v%d, v%d" % (MN, TT + 1))
    k.I("v_max_f32 v%d, v%d, v%d" % (MX, MX, TT))
    k.I("v_min_f32 v%d, v%d, v%d" % (MN, MN, TT + 1))
    k.I("v_mul_f32 v%d, s%d, v%d" % (MX, sL, MX))
    k.I("v_mul_f32 v%d, s%d, v%d" % (MN, sL, MN))
    def args(i):
        k.I("v_pk_fma_f32 v[%d:%d], v[%d:%d], s[%d:%d], v[%d:%d] op_sel_hi:[1,1,0] neg_lo:[0,0,1] neg_hi:[0,0,1]" %
            (EP + 2 * i, EP + 2 * i + 1, D + 2 * i, D + 2 * i + 1, sL, sL + 1, MX, MX + 1))
        k.I("v_pk_fma_f32 v[%d:%d], v[%d:%d], s[%d:%d], v[%d:%d] op_sel_hi:[1,1,0] neg_lo:[1,0,0] neg_hi:[1,0,0]" %
            (EM + 2 * i, EM + 2 * i + 1, D + 2 * i, D + 2 * i + 1, sL, sL + 1, MN, MN + 1))
    def exps(lo, hi):
        for i in range(lo, hi):
            k.I("v_exp_f32 v%d, v%d" % (EP + i, EP + i))
            k.I("v_exp_f32 v%d, v%d" % (EM + i, EM + i))
    for i in range(6): args(i)
    k.I(EXEC_LO)
    args(6); args(7); exps(12, 16)
    k.I(EXEC_ALL)
    exps(0, 12)
    if norm:
        for (E, r) in ((EP, MX), (EM, MN)):
            k.I(pk("v_pk_add_f32", r, E + 12, E + 14))
            for i in range(6):
                k.I(pk("v_pk_add_f32", r, r, E + 2 * i))
            k.I("v_add_f32 v%d, v%d, v%d" % (r, r, r + 1))
        k.I("v_mov_b32 v%d, v%d" % (TT, MX))
        k.I("v_mov_b32 v%d, v%d" % (TT + 1, MN))
        k.I("v_permlane32_swap_b32 v%d, v%d" % (MX, TT))
        k.I("v_permlane32_swap_b32 v%d, v%d" % (MN, TT + 1))
        k.I("v_add_f32 v%d, v%d, v%d" % (MX, MX, TT))
        k.I("v_add_f32 v%d, v%d, v%d" % (MN, MN, TT + 1))
        k.I("v_rcp_f32 v%d, v%d" % (MX, MX))
        k.I("v_rcp_f32 v%d, v%d" % (MN, MN))
        for (E, r, F) in ((EP, MX, FP), (EM, MN, FM)):
            for i in range(8):
                k.I(pk("v_pk_mul_f32", E + 2 * i, E + 2 * i, r, " op_sel_hi:[1,0]"))
            cvt8(k, F, E)
    else:
        cvt8(k, FP, EP); cvt8(k, FM, EM)

def gen_k1():
    k = Kernel("qkv_kernel")
    OOB = 0x40000000
    PSLOT, PX, PSCR = 48128, 28672, 45056
    KSLOT, KX, KPHI = 32768, 16384, 131072
    LDS = 3 * PSLOT
    S_SRC, S_WS, S_PHI = 12, 16, 20
    sW, sIDX, sG, sRB, sTMP, sM, sROT, sKB = 24, 25, 26, 27, 28, 29, 30, 31
    sSOF, sSTEP, sB1, sB2, sCUR, sL, sHEAD, sDST = 32, 33, 34, 35, 36, 38, 40, 41
    sC, sP6, sP7, sDSH = 42, 44, 45, 46
    vL, vL16, vD = 1, 2, 3
    vXR, vWR = 10, 22
    vPADV, vPH = 25, 26
    T = 28
    ACC = 36
    XF, WF = 100, 116
    k.I("""
    s_cmp_ge_u32 s2, 256
    s_cbranch_scc1 L1_end
    s_bfe_u32 s3, s2, 0x20003
    s_lshr_b32 s{tmp}, s2, 5
    s_and_b32 s{tmp}, s{tmp}, 4
    s_or_b32 s3, s3, s{tmp}
    s_cmp_ge_u32 s3, 3
    s_cselect_b32 s{tmp}, 24, 0
    s_load_dwordx4 s[4:7], s[0:1], s{tmp}
    s_load_dwordx2 s[8:9], s[0:1], 72
    s_load_dwordx2 s[10:11], s[0:1], 40
    v_lshrrev_b32 v2, 6, v0
    v_and_b32 v{l}, 63, v0
    v_readfirstlane_b32 s{w}, v2
    s_bfe_u32 s{rb}, s2, 0x20001
    s_lshl_b32 s{rb}, s{rb}, 2
    s_bfe_u32 s{idx}, s2, 0x20005
    s_add_u32 s{rb}, s{rb}, s{idx}
    s_and_b32 s{idx}, s2, 1
    """.format(tmp=sTMP, l=vL, w=sW, idx=sIDX, rb=sRB))
    st = Stamper(k, 0, 8, 190); st.start()
    k.I("v_lshlrev_b32 v%d, 4, v%d" % (vL16, vL))
    k.I("s_cmp_ge_u32 s3, 4")
    k.I("s_cbranch_scc1 L1_kv")

    def x_voffsets():
        k.I("""
        v_lshrrev_b32 v{a}, 3, v{l}
        v_mul_u32_u24 v{a}, 896, v{a}
        v_and_b32 v{b}, 7, v{l}
        v_lshrrev_b32 v{c}, 4, v{l}
        v_xor_b32 v{b}, v{b}, v{c}
        v_lshl_add_u32 v{x0}, v{b}, 4, v{a}
        v_xor_b32 v{b}, 4, v{b}
        v_lshl_add_u32 v{x1}, v{b}, 4, v{a}
        v_add_u32 v{x1}, 7168, v{x1}
        v_add_u32 v{x2}, 14336, v{x0}
        v_add_u32 v{x3}, 14336, v{x1}
        """.format(a=T, b=T + 1, c=T + 2, l=vL, x0=vD, x1=vD + 1, x2=vD + 2, x3=vD + 3))
    COM = opt("com", 0)
    NR = 7 - COM
    def rot_from(expr_regs):
        a, b = expr_regs
        if ROT and NR > 1:
            mg = -(-256 // NR)
            assert all((n * mg) >> 8 == n // NR for n in range(40))
            k.I("""
            s_lshl_b32 s{tmp}, s{b}, 1
            s_add_u32 s{rot}, s3, s{tmp}
            s_add_u32 s{rot}, s{rot}, s{b}
            s_mul_i32 s{tmp}, s{rot}, {mg}
            s_lshr_b32 s{tmp}, s{tmp}, 8
            s_mul_i32 s{tmp}, s{tmp}, {nr}
            s_sub_u32 s{rot}, s{rot}, s{tmp}
            """.format(tmp=sTMP, rot=sROT, a=a, b=b, mg=mg, nr=NR).replace("s_lshl_b32 s%d, s%d, 1" % (sTMP, b), "s_mov_b32 s%d, 0" % sTMP))
        else:
            k.I("s_mov_b32 s%d, 0" % sROT)
    def src_srd(is_x_label):
        pass
    def read_addrs(nslot, slot, xoff, wstride, wextra_sgpr, nbase):
        k.I("""
        v_and_b32 v{s}, 31, v{l}
        v_lshrrev_b32 v{h}, 5, v{l}
        v_bfe_u32 v{c}, v{l}, 1, 3
        v_xor_b32 v{c}, v{c}, v{h}
        v_lshlrev_b32 v{d}, 7, v{s}
        v_add_u32 v{d}, s{m}, v{d}
        v_lshl_add_u32 v{r0}, v{c}, 4, v{d}
        v_xor_b32 v{e}, 2, v{c}
        v_lshl_add_u32 v{r1}, v{e}, 4, v{d}
        v_xor_b32 v{e}, 4, v{c}
        v_lshl_add_u32 v{r2}, v{e}, 4, v{d}
        v_xor_b32 v{e}, 6, v{c}
        v_lshl_add_u32 v{r3}, v{e}, 4, v{d}
        v_bfe_u32 v{c}, v{l}, 4, 1
        v_lshlrev_b32 v{d}, 5, v{c}
        v_and_b32 v{c}, 3, v{l}
        v_lshl_add_u32 v{d}, v{c}, 3, v{d}
        v_bfe_u32 v{c}, v{l}, 2, 2
        v_lshl_add_u32 v{e}, v{h}, 3, v{c}
        v_mul_u32_u24 v{e}, {ws}, v{e}
        v_add3_u32 v{wr}, v{e}, v{d}, s{wx}
        v_mov_b32 v{f}, 0x3f803f80
        v_cmp_eq_u32 vcc, 28, v{s}
        """.format(s=T, h=T + 1, c=T + 2, d=T + 3, e=T + 4, f=T + 5, l=vL, m=sM, r0=vXR, r1=vXR + 1, r2=vXR + 2, r3=vXR + 3,
                   ws=wstride, wr=vWR, wx=wextra_sgpr))
        for b in range(1, nbase):
            for kk in range(4): k.I("v_add_u32 v%d, %d, v%d" % (vXR + 4 * b + kk, b * slot, vXR + kk))
            k.I("v_add_u32 v%d, %d, v%d" % (vWR + b, b * slot, vWR))
        k.I("v_cndmask_b32 v%d, 0, v%d, vcc" % (vPADV, T + 5))

    def gemm(NS, SLOT, NDMA, reads, mfmas, setup):
        vm = VmQueue(k)
        def dma(o):
            def one(i):
                def f():
                    if i == 0 and o == 0 and COM > 0:
                        k.I("s_mov_b32 s%d, s%d" % (sCUR, sSOF))
                    elif i == 0 and o < COM:
                        k.I("s_add_u32 s%d, s%d, s%d" % (sCUR, sCUR, sSTEP))
                    elif i == 0:
                        k.I("s_add_u32 s%d, s%d, %d" % (sKB, sROT, o))
                        k.I("s_sub_u32 s%d, s%d, %d" % (sTMP, sKB, NR))
                        k.I("s_cmp_ge_u32 s%d, 7" % sKB)
                        k.I("s_cselect_b32 s%d, s%d, s%d" % (sKB, sTMP, sKB))
                        k.I("s_mul_i32 s%d, s%d, s%d" % (sCUR, sKB, sSTEP))
                        k.I("s_add_u32 s%d, s%d, s%d" % (sCUR, sCUR, sSOF))
                    k.I("s_add_u32 m0, s%d, %d" % (sB1 if i < 4 else sB2, (o % NS) * SLOT + 1024 * (i % 4)))
                    k.I("s_nop 0")
                    k.I("buffer_load_dwordx4 v%d, s[%d:%d], s%d offen lds" % (vD + i, S_SRC, S_SRC + 3, sCUR)); vm.add(o)
                return f
            return [one(i) for i in range(NDMA)]
        for f in dma(0): f()
        PRE1 = opt("pre1", 1)
        if PRE1:
            k.I("s_barrier")
            for f in dma(1): f()
        setup()
        st()
        vm.wait([0])
        k.I("s_barrier")
        st()
        reads(0, 0)
        pend = []
        if not PRE1:
            for f in dma(1): f()
        for o in range(2, NS): pend += dma(o)
        for ks in range(28):
            o, kk = ks >> 2, ks & 3
            if kk == 3 and o < 6:
                assert vm.q.count(o + 1) == NDMA
                k.I("s_waitcnt lgkmcnt(0)")
                vm.wait([o + 1])
                k.I("s_barrier")
                st()
                reads(o + 1, 0)
                if o + NS <= 6: pend += dma(o + NS)
            elif ks < 27:
                n = reads(o, kk + 1)
                k.I("s_waitcnt lgkmcnt(%d)" % n)
            else:
                k.I("s_waitcnt lgkmcnt(0)")
            for m in mfmas(ks):
                k.I(m)
                if pend: pend.pop(0)()
        st()
    def store4(reg, soff, off):
        k.I("buffer_store_dwordx4 v[%d:%d], v%d, s[%d:%d], s%d offen offset:%d%s" % (reg, reg + 3, vL16, S_WS, S_WS + 3, soff, off, SC))

    k.I("""
    s_lshl_b32 s{g}, s3, 1
    s_cmp_eq_u32 s3, 3
    s_cselect_b32 s{g}, 0, s{g}
    s_add_u32 s{g}, s{g}, s{idx}
    s_cmp_ge_u32 s{w}, 4
    s_cbranch_scc1 L1_px
    """.format(g=sG, idx=sIDX, rb=sRB, tmp=sTMP, w=sW))
    for i in range(7):
        k.I("""
        v_add_u32 v{c}, {c0}, v{l}
        v_mul_u32_u24 v{r}, 2341, v{c}
        v_lshrrev_b32 v{r}, 16, v{r}
        v_mul_u32_u24 v{r}, {dl}, v{r}
        v_lshl_add_u32 v{d}, v{c}, 4, v{r}
        """.format(c=T, r=T + 1, c0=64 * i, l=vL, dl=2688 - 448, d=vD + i))
    k.I("""
    s_mul_i32 s{sof}, s{w}, {r16}
    s_mul_i32 s{tmp}, s{g}, 448
    s_add_u32 s{sof}, s{sof}, s{tmp}
    s_mov_b32 s{step}, {r64}
    s_mul_i32 s{b1}, s{w}, 7168
    s_add_u32 s{b2}, s{b1}, 4096
    s_waitcnt lgkmcnt(0)
    """.format(sof=sSOF, w=sW, r16=16 * 2688, tmp=sTMP, g=sG, step=sSTEP, r64=64 * 2688, b1=sB1, b2=sB2))
    srd(k, S_SRC, 6, 7, 448 * 2688)
    k.I("s_branch L1_pgo")
    k.label("L1_px")
    x_voffsets()
    for i in range(4, 7): k.I("v_mov_b32 v%d, 0x%x" % (vD + i, OOB))
    k.I("""
    s_lshl_b32 s{sof}, s{rb}, 2
    s_add_u32 s{sof}, s{sof}, s{w}
    s_sub_u32 s{sof}, s{sof}, 4
    s_mul_i32 s{sof}, s{sof}, {r32}
    s_mov_b32 s{step}, 128
    s_lshl_b32 s{b1}, s{w}, 12
    s_add_u32 s{b1}, s{b1}, {px}
    s_mov_b32 s{b2}, {scr}
    s_waitcnt lgkmcnt(0)
    """.format(sof=sSOF, rb=sRB, w=sW, r32=32 * 896, step=sSTEP, b1=sB1, b2=sB2, px=PX - 4 * 4096, scr=PSCR))
    srd(k, S_SRC, 4, 5, 2048 * 896)
    k.label("L1_pgo")
    rot_from((sG, sRB))
    def p_setup():
        srd(k, S_WS, 8, 9, WS_USED)
        k.I("""
        s_and_b32 s{m}, s{w}, 1
        s_lshl_b32 s{m}, s{m}, 13
        s_add_u32 s{m}, s{m}, {px}
        s_lshr_b32 s{tmp}, s{w}, 1
        s_mul_i32 s{tmp}, s{tmp}, 112
        """.format(m=sM, w=sW, px=PX, tmp=sTMP))
        read_addrs(3, PSLOT, PX, 448, sTMP, 3)
        k.I("""
        s_and_b32 s{head}, s{g}, 1
        s_lshl_b32 s{head}, s{head}, 3
        s_and_b32 s{tmp}, s{w}, 6
        s_add_u32 s{head}, s{head}, s{tmp}
        s_lshl_b32 s{dst}, s{head}, 6
        s_lshl_b32 s{tmp}, s{rb}, 2
        s_add_u32 s{dst}, s{dst}, s{tmp}
        s_and_b32 s{tmp}, s{w}, 1
        s_lshl_b32 s{tmp}, s{tmp}, 1
        s_add_u32 s{dst}, s{dst}, s{tmp}
        s_mov_b32 s{c0}, 0x{qs:x}
        s_mov_b32 s{c1}, 0x{qs:x}
        """.format(head=sHEAD, g=sG, tmp=sTMP, w=sW, dst=sDST, rb=sRB, c0=sC, c1=sC + 1, qs=f2u(QSCALE)))
    def p_reads(o, kk):
        b = (4 * o + kk) & 1
        for r in range(2):
            x = XF + 8 * b + 4 * r
            k.I("ds_read_b128 v[%d:%d], v%d offset:%d" % (x, x + 3, vXR + 4 * (o % 3) + kk, 4096 * r))
        for e in range(2):
            for jj in range(2):
                x = WF + 8 * b + 4 * e + 2 * jj
                k.I("ds_read_b64_tr_b16 v[%d:%d], v%d offset:%d" % (x, x + 1, vWR + (o % 3), (16 * kk + 4 * jj) * 448 + 56 * e))
        return 6
    def p_mfmas(swap):
        def f(ks):
            b = ks & 1
            L = []
            for r in range(2):
                for e in range(2):
                    xf, wf = vr(XF + 8 * b + 4 * r, 4), vr(WF + 8 * b + 4 * e, 4)
                    L.append(mfma(vr(ACC + 16 * (2 * e + r), 16), xf if swap else wf, wf if swap else xf, 0 if ks == 0 else None))
            return L
        return f
    k.I("s_cmp_eq_u32 s3, 2")
    k.I("s_cbranch_scc1 L1_pv")
    n0 = st.n
    gemm(3, PSLOT, 7, p_reads, p_mfmas(False), p_setup)
    k.I("""
    s_lshr_b32 s{tmp}, s{g}, 1
    s_cmp_eq_u32 s{tmp}, 1
    s_cselect_b32 s{p6}, 0x3f803f80, 0
    s_cselect_b32 s{p7}, 0x3f80, 0
    s_cselect_b32 s{dsh}, 12, 11
    s_cselect_b32 s{m}, {kvo}, {qo}
    s_cbranch_scc1 L1_pnoscale
    s_cmp_eq_u32 s3, 3
    s_cselect_b32 s{m}, {qbo}, s{m}
    s_cbranch_scc1 L1_pnoscale
    s_nop 3
    """.format(tmp=sTMP, g=sG, p6=sP6, p7=sP7, dsh=sDSH, m=sM, kvo=KV_OFF, qo=Q_OFF, qbo=QB_OFF))
    for i in range(32):
        k.I("v_pk_mul_f32 v[%d:%d], v[%d:%d], s[%d:%d]" % (ACC + 2 * i, ACC + 2 * i + 1, ACC + 2 * i, ACC + 2 * i + 1, sC, sC + 1))
    k.label("L1_pnoscale")
    k.I("s_nop 3")
    F = XF
    for tl in range(4):
        e, r = tl >> 1, tl & 1
        cvt8(k, F + 8 * tl, ACC + 16 * tl)
        exec_hi(k)
        k.I("v_mov_b32 v%d, s%d" % (F + 8 * tl + 6, sP6))
        k.I("v_mov_b32 v%d, s%d" % (F + 8 * tl + 7, sP7))
        k.I(EXEC_ALL)
        k.I("s_add_u32 s%d, s%d, %d" % (sTMP, sDST, 64 * e + r))
        k.I("s_lshl_b32 s%d, s%d, s%d" % (sTMP, sTMP, sDSH))
        k.I("s_add_u32 s%d, s%d, s%d" % (sTMP, sTMP, sM))
        store4(F + 8 * tl, sTMP, 0); store4(F + 8 * tl + 4, sTMP, 1024)
    st.dump(S_WS)
    k.I("s_endpgm")
    k.label("L1_pv")
    st.n = n0
    gemm(3, PSLOT, 7, p_reads, p_mfmas(True), p_setup)
    for tl in range(4):
        e, r = tl >> 1, tl & 1
        cvt8(k, F + 8 * tl, ACC + 16 * tl)
        exec_both(k, 0xf0000000)
        for i in range(8): k.I("v_mov_b32 v%d, v%d" % (F + 8 * tl + i, vPADV))
        k.I(EXEC_ALL)
        k.I("s_add_u32 s%d, s%d, %d" % (sTMP, sDST, 64 * e + r))
        k.I("s_lshl_b32 s%d, s%d, 12" % (sTMP, sTMP))
        store4(F + 8 * tl, sTMP, 2048); store4(F + 8 * tl + 4, sTMP, 3072)
    st.dump(S_WS)
    k.I("s_endpgm")

    k.label("L1_kv")
    st.n = n0
    AK, AV = ACC, ACC + 16
    IDN, PHI = ACC + 32, ACC + 40
    EP, EM = 132, 148
    k.I("""
    s_lshl_b32 s{g}, s{idx}, 2
    s_and_b32 s{tmp}, s3, 3
    s_add_u32 s{g}, s{g}, s{tmp}
    s_cmp_lt_u32 s{w}, 4
    s_cbranch_scc1 L1_kx
    s_lshl_b32 s{tmp}, s{w}, 8
    s_sub_u32 s{tmp}, s{tmp}, 1024
    v_add_u32 v{c0}, s{tmp}, v{l}
    v_mov_b32 v{oob}, 0x{oobv:x}
    """.format(g=sG, tmp=sTMP, idx=sIDX, rb=sRB, w=sW, c0=T + 4, l=vL, oob=T + 5, oobv=OOB))
    for i in range(4):
        k.I("""
        v_add_u32 v{c}, {c0}, v{cb}
        v_mul_u32_u24 v{r}, 9363, v{c}
        v_lshrrev_b32 v{r}, 16, v{r}
        v_lshlrev_b32 v{d}, 4, v{c}
        v_mul_u32_u24 v{q}, {d7}, v{r}
        v_add_u32 v{d}, v{d}, v{q}
        v_lshrrev_b32 v{r}, 1, v{r}
        v_mul_u32_u24 v{r}, 896, v{r}
        v_add_u32 v{d}, v{d}, v{r}
        v_cmp_gt_u32 vcc, 896, v{c}
        s_nop 1
        v_cndmask_b32 v{d}, v{oob}, v{d}, vcc
        """.format(c=T, r=T + 1, q=T + 2, c0=64 * i, cb=T + 4, d=vD + i, d7=896 - 112, oob=T + 5))
    k.I("""
    s_mul_i32 s{sof}, s{g}, 112
    s_add_u32 s{sof}, s{sof}, 896
    s_mov_b32 s{step}, {r64}
    s_lshl_b32 s{b1}, s{w}, 12
    s_sub_u32 s{b1}, s{b1}, 16384
    s_waitcnt lgkmcnt(0)
    """.format(sof=sSOF, g=sG, step=sSTEP, r64=64 * 2688, b1=sB1, w=sW))
    srd(k, S_SRC, 6, 7, 448 * 2688)
    k.I("s_branch L1_kgo")
    k.label("L1_kx")
    x_voffsets()
    k.I("""
    s_lshl_b32 s{sof}, s{rb}, 2
    s_add_u32 s{sof}, s{sof}, s{w}
    s_mul_i32 s{sof}, s{sof}, {r32}
    s_mov_b32 s{step}, 128
    s_lshl_b32 s{b1}, s{w}, 12
    s_add_u32 m0, s{b1}, 0
    s_add_u32 s{b1}, s{b1}, {kx}
    s_lshl_b32 s{m}, s{w}, 10
    s_mul_i32 s{tmp}, s{g}, 3136
    s_add_u32 s{tmp}, s{tmp}, s{m}
    s_add_u32 m0, s{m}, {kphi}
    s_waitcnt lgkmcnt(0)
    """.format(sof=sSOF, rb=sRB, w=sW, r32=32 * 896, step=sSTEP, b1=sB1, kx=KX, m=sM, tmp=sTMP, g=sG, kphi=KPHI))
    srd(k, S_PHI, 10, 11, 16 * 1568)
    srd(k, S_SRC, 4, 5, 2048 * 896)
    k.I("buffer_load_dwordx4 v%d, s[%d:%d], s%d offen lds" % (vL16, S_PHI, S_PHI + 3, sTMP))
    k.label("L1_kgo")
    rot_from((sG, sRB))
    def k_setup():
        srd(k, S_WS, 8, 9, WS_USED)
        k.I("""
        s_and_b32 s{m}, s{w}, 3
        s_lshl_b32 s{m}, s{m}, 12
        s_add_u32 s{m}, s{m}, {kx}
        s_lshr_b32 s{tmp}, s{w}, 2
        s_lshl_b32 s{head}, s{g}, 1
        s_add_u32 s{head}, s{head}, s{tmp}
        s_mul_i32 s{dst}, s{tmp}, 1568
        s_add_u32 s{dst}, s{dst}, {kphi}
        s_mul_i32 s{tmp}, s{tmp}, 56
        s_mov_b32 s{l0}, 0x{lg:x}
        s_mov_b32 s{l1}, 0x{lg:x}
        """.format(m=sM, w=sW, kx=KX, tmp=sTMP, head=sHEAD, g=sG, dst=sDST, kphi=KPHI, l0=sL, l1=sL + 1, lg=f2u(LOG2E)))
        read_addrs(4, 2 * KSLOT, KX, 224, sTMP, 2)
        k.I("v_lshl_add_u32 v%d, v%d, 2, v%d" % (T + 4, T + 1, T + 2))
        k.I("v_mul_u32_u24 v%d, 56, v%d" % (T + 4, T + 4))
        k.I("v_add3_u32 v%d, v%d, v%d, s%d" % (vPH, T + 4, T + 3, sDST))
        k.I("v_lshlrev_b32 v%d, 2, v%d" % (T + 2, T + 1))
        k.I("v_sub_u32 v%d, v%d, v%d" % (T + 2, T, T + 2))
        k.I("v_mov_b32 v%d, 0x3f80" % (T + 3))
        k.I("v_mov_b32 v%d, 0x3f800000" % (T + 4))
        for p in range(8):
            base = 8 * (p >> 1) + 2 * (p & 1)
            k.I("v_cmp_eq_u32 vcc, %d, v%d" % (base, T + 2))
            k.I("v_cmp_eq_u32 s[48:49], %d, v%d" % (base + 1, T + 2))
            k.I("v_cndmask_b32 v%d, 0, v%d, vcc" % (IDN + p, T + 3))
            k.I("v_cndmask_b32 v%d, v%d, v%d, s[48:49]" % (IDN + p, IDN + p, T + 4))
        for i in range(12, 16):
            k.I("v_mov_b32 v%d, 0" % (EP + i))
            k.I("v_mov_b32 v%d, 0" % (EM + i))
    def k_reads(o, kk):
        b = (4 * o + kk) & 1
        hi, lo = (o % 4) >> 1, ((o % 4) & 1) * KSLOT
        x = XF + 8 * b
        k.I("ds_read_b128 v[%d:%d], v%d offset:%d" % (x, x + 3, vXR + 4 * hi + kk, lo))
        for e in range(2):
            for jj in range(2):
                x = WF + 8 * b + 4 * e + 2 * jj
                k.I("ds_read_b64_tr_b16 v[%d:%d], v%d offset:%d" % (x, x + 1, vWR + hi, lo + (16 * kk + 4 * jj) * 224 + 112 * e))
        return 5
    def k_mfmas(ks):
        b = ks & 1
        xf = vr(XF + 8 * b, 4)
        c = 0 if ks == 0 else None
        return [mfma(vr(AK, 16), vr(WF + 8 * b, 4), xf, c), mfma(vr(AV, 16), xf, vr(WF + 8 * b + 4, 4), c)]
    gemm(4, KSLOT, 4, k_reads, k_mfmas, k_setup)
    for ff in range(2):
        for jj in range(2):
            r = PHI + 4 * ff + 2 * jj
            k.I("ds_read_b64_tr_b16 v[%d:%d], v%d offset:%d" % (r, r + 1, vPH, (16 * ff + 8 * jj) * 56))
    KF, VF, FKP, FKM = 100, 108, 116, 124
    cvt8(k, KF, AK)
    exec_hi(k)
    for r in (KF + 6, KF + 7): k.I("v_mov_b32 v%d, 0" % r)
    k.I(EXEC_ALL)
    k.I("s_waitcnt lgkmcnt(0)")
    k.I(mfma(vr(AK, 16), vr(PHI, 4), vr(KF, 4), 0))
    k.I(mfma(vr(AK, 16), vr(PHI + 4, 4), vr(KF + 4, 4)))
    cvt8(k, VF, AV)
    exec_both(k, 0xf0000000)
    for i in range(8): k.I("v_mov_b32 v%d, v%d" % (VF + i, vPADV))
    k.I(EXEC_ALL)
    feature_map(k, AK, FKP, FKM, EP, EM, T, sL, True)
    k.I(mfma(vr(AK, 16), vr(FKP, 4), vr(IDN, 4), 0))
    k.I(mfma(vr(AK, 16), vr(FKP + 4, 4), vr(IDN + 4, 4)))
    k.I(mfma(vr(AV, 16), vr(FKM, 4), vr(IDN, 4), 0))
    k.I(mfma(vr(AV, 16), vr(FKM + 4, 4), vr(IDN + 4, 4)))
    k.I("s_lshl_b32 s%d, s%d, 13" % (sTMP, sW))
    k.I("v_add_u32 v%d, s%d, v%d" % (T, sTMP, vL16))
    k.I("""
    s_and_b32 s{m}, s{w}, 3
    s_lshl_b32 s{m}, s{m}, 11
    s_and_b32 s{tmp}, s{w}, 4
    s_lshl_b32 s{tmp}, s{tmp}, 13
    s_add_u32 s{tmp}, s{tmp}, s{m}
    v_add_u32 v{t1}, s{tmp}, v{l16}
    s_lshl_b32 s{tmp}, s{head}, 4
    s_add_u32 s{tmp}, s{tmp}, s{rb}
    s_lshl_b32 s{tmp}, s{tmp}, 13
    s_add_u32 s{tmp}, s{tmp}, s{m}
    s_add_u32 s{tmp}, s{tmp}, 0x{off:x}
    """.format(m=sM, w=sW, tmp=sTMP, t1=T + 1, l16=vL16, head=sHEAD, rb=sRB, off=KVP_OFF))
    cvt8(k, FKP, AK)
    k.I(mfma(vr(EP, 16), vr(FKP, 4), vr(VF, 4), 0))
    k.I(mfma(vr(EP, 16), vr(FKP + 4, 4), vr(VF + 4, 4)))
    cvt8(k, FKM, AV)
    k.I(mfma(vr(EM, 16), vr(FKM, 4), vr(VF, 4), 0))
    k.I(mfma(vr(EM, 16), vr(FKM + 4, 4), vr(VF + 4, 4)))
    for q in range(8):
        k.I("ds_write_b128 v%d, v[%d:%d] offset:%d" % (T, EP + 4 * q, EP + 4 * q + 3, 1024 * q))
    k.I("s_waitcnt lgkmcnt(0)")
    st()
    k.I("s_barrier")
    for w in range(4):
        for q in range(2):
            r = ACC + 8 * w + 4 * q
            k.I("ds_read_b128 v[%d:%d], v%d offset:%d" % (r, r + 3, T + 1, 8192 * w + 1024 * q))
    for w in range(1, 4):
        k.I("s_waitcnt lgkmcnt(%d)" % (6 - 2 * w))
        for q in range(4):
            k.I(pk("v_pk_add_f32", ACC + 2 * q, ACC + 2 * q, ACC + 8 * w + 2 * q))
    store4(ACC, sTMP, 0); store4(ACC + 4, sTMP, 1024)
    st.dump(S_WS)
    k.label("L1_end")
    k.I("s_endpgm")
    return k, dict(grid=256, block=512, lds=LDS, vgpr=192 if STAMP else 164, agpr=0, sgpr=102 if STAMP else 56)

def gen_k2(R=8):
    k = Kernel("attn_kernel")
    S_WS = 4
    sW, sHEAD, sTMP, sT, sU, sKVB, sP, sMASK, sPB, sPQ, sOA, sQA = 8, 9, 10, 11, 12, 13, 14, 15, 17, 18, 19, 21
    sTILE = 24
    vL16 = 1
    Q = {"a": 4, "b": 12}
    S = {"a": 20, "b": 36}
    P = {"a": 52, "b": 60}
    O = {"a": 68, "b": 84}
    T = 100
    NT = 32
    LKV, LPHI = 16384, 20480
    def KR(i, f): return ar((i % R) * 16 + 4 * f, 4)
    def VR(i, f): return ar((i % R) * 16 + 8 + 4 * f, 4)
    vm = VmQueue(k)
    k.I("""
    s_cmp_ge_u32 s2, 256
    s_cbranch_scc1 L2_end
    s_load_dwordx2 s[{ws0}:{ws1}], s[0:1], 72
    v_lshrrev_b32 v2, 6, v0
    v_and_b32 v1, 63, v0
    v_lshlrev_b32 v1, 4, v1
    v_readfirstlane_b32 s{w}, v2
    s_and_b32 s{head}, s2, 7
    s_lshl_b32 s{head}, s{head}, 1
    s_lshr_b32 s{tmp}, s2, 7
    s_add_u32 s{head}, s{head}, s{tmp}
    s_bfe_u32 s{t}, s2, 0x40003
    s_lshl_b32 s{t}, s{t}, 2
    s_mov_b32 s{ws2}, 0x{used:x}
    s_mov_b32 s{ws3}, 0x00020000
    s_cmp_ge_u32 s{w}, 4
    s_cbranch_scc1 L2_help
    s_lshr_b32 s{u}, s{w}, 1
    s_and_b32 s{tmp}, s{w}, 1
    s_lshl_b32 s{tmp}, s{tmp}, 1
    s_add_u32 s{t}, s{t}, s{tmp}
    s_add_u32 s{t}, s{t}, s{u}
    s_lshl_b32 s{tmp}, s{head}, 6
    s_add_u32 s{tmp}, s{t}, s{tmp}
    s_lshl_b32 s{tmp}, s{tmp}, 11
    s_add_u32 s{tmp}, s{tmp}, 0x{qoff:x}
    s_xor_b32 s{qa}, s{tmp}, 0x800
    s_lshl_b32 s{kvb}, s{head}, 18
    s_lshl_b32 s{p}, s{u}, 17
    s_add_u32 s{p}, s{kvb}, s{p}
    s_waitcnt lgkmcnt(0)
    """.format(w=sW, head=sHEAD, tmp=sTMP, u=sU, t=sT, kvb=sKVB, p=sP, qoff=Q_OFF, qa=sQA,
               ws0=S_WS, ws1=S_WS + 1, ws2=S_WS + 2, ws3=S_WS + 3, used=WS_USED))
    st = Stamper(k, 1, 4, 126); st.start()
    def ld(dst, soff, off):
        k.I("buffer_load_dwordx4 %s, v%d, s[%d:%d], s%d offen offset:%d" % (dst, vL16, S_WS, S_WS + 3, soff, off))
    def LD(tag, dst, soff, off):
        ld(dst, soff, off); vm.add(tag)
    def ldK(j, f): LD("K%d" % j, KR(j, f), sTILE + j if j else sP, 1024 * f)
    def ldV(j, f): LD("V%d" % j, VR(j, f), sTILE + j if j else sP, 2048 + 1024 * f)
    LD("Kref", KR(R - 1, 0), sKVB, 0); LD("Kref", KR(R - 1, 1), sKVB, 1024)
    LD("Qa", vr(Q["a"], 4), sQA, 0); LD("Qa", vr(Q["a"] + 4, 4), sQA, 1024)
    LD("Qb", vr(Q["b"], 4), sTMP, 0); LD("Qb", vr(Q["b"] + 4, 4), sTMP, 1024)
    ldK(0, 0); ldK(0, 1); ldV(0, 0); ldV(0, 1)
    NPRE = opt("npre", 3)
    for j in range(1, NPRE):
        k.I("s_add_u32 s%d, s%d, %d" % (sTILE + j, sP, 4096 * j))
        ldK(j, 0); ldK(j, 1); ldV(j, 0); ldV(j, 1)
    for j in range(NPRE, NT):
        k.I("s_add_u32 s%d, s%d, %d" % (sTILE + j, sP, 4096 * j))
    k.I("""
    s_mov_b32 s{mask}, 0xffff0000
    s_lshl_b32 s{tmp}, s{t}, 4
    s_add_u32 s{tmp}, s{tmp}, s{head}
    s_lshl_b32 s{tmp}, s{tmp}, 11
    s_add_u32 s{oa}, s{tmp}, 0x{ooff:x}
    s_lshl_b32 s{tmp}, s{w}, 12
    v_add_u32 v3, s{tmp}, v1
    s_xor_b32 s{tmp}, s{tmp}, 0x2000
    v_add_u32 v2, s{tmp}, v1
    """.format(head=sHEAD, tmp=sTMP, w=sW, t=sT, mask=sMASK, oa=sOA, ooff=O_OFF))
    ring = []
    for j in range(NPRE, NT):
        for f in range(2): ring.append(("K", j, f))
        for f in range(2): ring.append(("V", j, f))
    freeK = R - 1
    freeV = R - 1
    def fill():
        if ring:
            kind, j, f = ring[0]
            if j <= (freeK if kind == "K" else freeV):
                ring.pop(0)
                (ldK if kind == "K" else ldV)(j, f)

    def qk(x, i):
        return [mfma(vr(S[x], 16), KR(i, 0), vr(Q[x], 4), 0), mfma(vr(S[x], 16), KR(i, 1), vr(Q[x] + 4, 4))]
    def pv(x, i, first=False):
        return [mfma(vr(O[x], 16), VR(i, 0), vr(P[x], 4), 0 if first else None), mfma(vr(O[x], 16), VR(i, 1), vr(P[x] + 4, 4))]
    def phase(x, mf, after):
        def cv(n): return "v_cvt_pk_bf16_f32 v%d, v%d, v%d" % (P[x] + n, S[x] + 2 * n, S[x] + 2 * n + 1)
        def ex(n): return "v_exp_f32 v%d, v%d" % (S[x] + n, S[x] + n)
        for g in range(4):
            if mf[g] is not None: k.I(mf[g])
            after[g]()
            k.I(ex(4 * g)); k.I(ex(4 * g + 1))
            if g > 0: k.I(cv(2 * g - 1))
            k.I(ex(4 * g + 2)); k.I(ex(4 * g + 3))
            k.I(cv(2 * g))
        k.I(cv(7))
    def bcast_hi(src, t0, t1):
        k.I("v_mov_b32 v%d, v%d" % (t0, src))
        k.I("v_mov_b32 v%d, v%d" % (t1, src))
        k.I("v_permlane32_swap_b32 v%d, v%d" % (t0, t1))
    def normalise(X, F, soff, eps):
        bcast_hi(X + 12, T, T + 2)
        if eps: k.I("v_add_f32 v%d, 0x%x, v%d" % (T + 2, f2u(1e-6), T + 2))
        k.I("v_rcp_f32 v%d, v%d" % (T + 2, T + 2))
        for i in range(8):
            k.I(pk("v_pk_mul_f32", X + 2 * i, X + 2 * i, T + 2, " op_sel_hi:[1,0]"))
        cvt8(k, F, X)
        exec_hi(k)
        k.I("v_mov_b32 v%d, 0" % (F + 6))
        k.I("v_mov_b32 v%d, 0" % (F + 7))
        k.I(EXEC_ALL)
        for f in range(2):
            k.I("buffer_store_dwordx4 v[%d:%d], v%d, s[%d:%d], s%d offen offset:%d%s" % (F + 4 * f, F + 4 * f + 3, vL16, S_WS, S_WS + 3, soff, 1024 * f, SC))

    st()
    vm.wait(["Kref", "Qa", "Qb"])
    st()
    for m in qk("a", R - 1) + qk("b", R - 1): k.I(m)
    for x, m in (("a", T), ("b", T + 4)):
        k.I("v_max3_f32 v%d, v%d, v%d, v%d" % (m, S[x], S[x] + 1, S[x] + 2))
        for i in range(3, 15, 2):
            k.I("v_max3_f32 v%d, v%d, v%d, v%d" % (m, m, S[x] + i, S[x] + i + 1))
        k.I("v_max_f32 v%d, v%d, v%d" % (m, m, S[x] + 15))
        xhalf(k, "v_max_f32", m, m + 1)
        k.I("v_add_f32 v%d, 0x%x, v%d" % (m, f2u(MOFF), m))
        neg_max_pieces(k, m, m + 1, m + 2, Q[x] + 6, Q[x] + 7, sMASK)
        if x == "a":
            vm.wait(["K0"])
            for mm in qk("a", 0): k.I(mm)
    nop = lambda: None
    B0, BX = opt("b0", 4), opt("bx", 26)
    for i in range(NT):
        if i in (1, 4, 8, 16, 24): st()
        mfA = qk("b", i) + (pv("b", i - 1, first=(i == 1)) if i > 0 else [None, None])
        need = ["V%d" % i] + (["K%d" % (i + 1)] if i + 1 < NT else [])
        def a0():
            if i in (B0, BX): k.I("s_barrier")
            else: fill()
        def a1():
            nonlocal freeK
            freeK = i + R
            fill()
        def a3():
            nonlocal freeV
            if i > 0: freeV = i - 1 + R
            vm.wait(need)
        phase("a", mfA, [a0, a1, fill, a3])
        if i + 1 < NT:
            phase("b", qk("a", i + 1) + pv("a", i, first=(i == 0)), [fill] * 4)
        else:
            def send():
                for q in range(4):
                    k.I("ds_write_b128 v3, v[%d:%d] offset:%d" % (O["a"] + 4 * q, O["a"] + 4 * q + 3, 1024 * q))
            phase("b", pv("a", i) + [None, None], [nop, nop, nop, send])
    assert not ring
    for m in pv("b", NT - 1): k.I(m)
    st()
    k.I("s_waitcnt lgkmcnt(0)")
    k.I("s_barrier")
    for q in range(4):
        k.I("ds_read_b128 v[%d:%d], v2 offset:%d" % (O["a"] + 4 * q, O["a"] + 4 * q + 3, 1024 * q))
    OB = O["b"]
    for q in range(4):
        k.I("s_waitcnt lgkmcnt(%d)" % (3 - q))
        k.I(pk("v_pk_add_f32", OB + 4 * q, OB + 4 * q, O["a"] + 4 * q))
        k.I(pk("v_pk_add_f32", OB + 4 * q + 2, OB + 4 * q + 2, O["a"] + 4 * q + 2))
    k.I("v_pk_mul_f32 v[%d:%d], v[%d:%d], 0" % (T, T + 1, OB, OB + 1))
    for i in range(1, 8):
        k.I("v_pk_fma_f32 v[%d:%d], v[%d:%d], 0, v[%d:%d]" % (T, T + 1, OB + 2 * i, OB + 2 * i + 1, T, T + 1))
    k.I("v_cmp_u_f32 vcc, v%d, v%d" % (T, T + 1))
    k.I("s_cbranch_vccnz L2_slow")
    k.label("L2_norm")
    normalise(OB, P["a"], sOA, False)
    st.dump(S_WS)
    k.label("L2_end")
    k.I("s_endpgm")

    k.label("L2_slow")
    SS, QQ = S["b"], Q["b"]
    exec_hi(k)
    k.I("v_mov_b32 v%d, 0" % (QQ + 6))
    k.I("v_mov_b32 v%d, 0" % (QQ + 7))
    k.I(EXEC_ALL)
    k.I("v_mov_b32 v%d, 0xff800000" % T)
    k.I("s_mov_b32 s%d, s%d" % (sP, sKVB))
    k.I("s_add_u32 s%d, s%d, 0x40000" % (sTMP, sKVB))
    k.label("L2_slow1")
    ld(ar(0, 4), sP, 0); ld(ar(4, 4), sP, 1024)
    k.I("s_waitcnt vmcnt(0)")
    k.I(mfma(vr(SS, 16), ar(0, 4), vr(QQ, 4), 0))
    k.I(mfma(vr(SS, 16), ar(4, 4), vr(QQ + 4, 4)))
    for i in range(0, 16, 2):
        k.I("v_max3_f32 v%d, v%d, v%d, v%d" % (T, T, SS + i, SS + i + 1))
    k.I("s_add_u32 s%d, s%d, 4096" % (sP, sP))
    k.I("s_cmp_lt_u32 s%d, s%d" % (sP, sTMP))
    k.I("s_cbranch_scc1 L2_slow1")
    xhalf(k, "v_max_f32", T, T + 1)
    neg_max_pieces(k, T, T + 1, T + 2, QQ + 6, QQ + 7, sMASK)
    for i in range(16): k.I("v_mov_b32 v%d, 0" % (OB + i))
    k.I("s_mov_b32 s%d, s%d" % (sP, sKVB))
    k.label("L2_slow2")
    for f in range(4): ld(ar(4 * f, 4), sP, 1024 * f)
    k.I("s_waitcnt vmcnt(0)")
    k.I(mfma(vr(SS, 16), ar(0, 4), vr(QQ, 4), 0))
    k.I(mfma(vr(SS, 16), ar(4, 4), vr(QQ + 4, 4)))
    for i in range(16): k.I("v_exp_f32 v%d, v%d" % (SS + i, SS + i))
    cvt8(k, P["a"], SS)
    k.I(mfma(vr(OB, 16), ar(8, 4), vr(P["a"], 4)))
    k.I(mfma(vr(OB, 16), ar(12, 4), vr(P["a"] + 4, 4)))
    k.I("s_add_u32 s%d, s%d, 4096" % (sP, sP))
    k.I("s_cmp_lt_u32 s%d, s%d" % (sP, sTMP))
    k.I("s_cbranch_scc1 L2_slow2")
    k.I("s_nop 7\ns_nop 7")
    k.I("s_branch L2_norm")

    k.label("L2_help")
    PART = 4
    NP, NM, PQ, FQ = 12, 28, 44, 60
    EP, EM = 76, 112
    EM = 112
    EP = 84
    FB = 76
    KVF, PHI, QB = 0, 16, 24
    SWO, SPHI, sL = 24, 28, 32
    k.I("""
    s_and_b32 s3, s2, 4
    s_lshl_b32 s3, s3, 3
    s_add_u32 s3, s3, 16
    s_load_dwordx2 s[22:23], s[0:1], s3
    s_load_dwordx2 s[20:21], s[0:1], 40
    s_and_b32 s{w}, s{w}, 3
    s_add_u32 s{t}, s{t}, s{w}
    s_lshl_b32 s{tmp}, s{head}, 6
    s_add_u32 s{tmp}, s{t}, s{tmp}
    s_lshl_b32 s{pq}, s{tmp}, 11
    s_add_u32 s{pq}, s{pq}, 0x{qbo:x}
    s_lshl_b32 s{pb}, s{head}, 17
    s_lshl_b32 s{tmp}, s{w}, 11
    s_add_u32 s{pb}, s{pb}, s{tmp}
    s_add_u32 s{pb}, s{pb}, 0x{kvp:x}
    s_mov_b32 s{l0}, 0x{lg:x}
    s_mov_b32 s{l1}, 0x{lg:x}
    s_lshl_b32 s{tmp}, s{t}, 4
    s_add_u32 s{tmp}, s{tmp}, s{head}
    s_lshl_b32 s{tmp}, s{tmp}, 11
    s_add_u32 s{oa}, s{tmp}, 0x{ooffb:x}
    s_lshl_b32 s{tmp}, s{w}, 10
    v_add_u32 v2, s{tmp}, v1
    v_lshrrev_b32 v{a}, 9, v1
    v_bfe_u32 v{b}, v1, 6, 2
    v_lshl_add_u32 v{a}, v{a}, 2, v{b}
    v_mul_u32_u24 v{a}, 56, v{a}
    v_bfe_u32 v{b}, v1, 8, 1
    v_lshl_add_u32 v{a}, v{b}, 5, v{a}
    v_bfe_u32 v{b}, v1, 4, 2
    v_lshl_add_u32 v3, v{b}, 3, v{a}
    s_lshr_b32 s{tmp}, s2, 3
    s_lshl_b32 s{tmp}, s{tmp}, 2
    s_add_u32 s{tmp}, s{tmp}, s{w}
    s_mul_i32 s3, s{tmp}, 3200
    v_lshlrev_b32 v{x}, 3, v1
    v_mov_b32 v{y}, 0x40000000
    v_cmp_gt_u32 vcc, 3200, v{x}
    s_and_b32 s16, s{w}, 1
    s_lshl_b32 s16, s16, 10
    v_cndmask_b32 v{x}, v{y}, v{x}, vcc
    s_add_u32 m0, s16, {lphi}
    s_mul_i32 s{tmp}, s{head}, 1568
    s_add_u32 s16, s16, s{tmp}
    s_setprio {prio}
    s_barrier
    s_waitcnt lgkmcnt(0)
    """.format(pb=sPB, head=sHEAD, tmp=sTMP, w=sW, kvp=KVP_OFF, t=sT, pq=sPQ, qbo=QB_OFF, oa=sOA, ooffb=O_OFF + (2 << 20),
               a=T, b=T + 1, x=T + 10, y=T + 11, l0=sL, l1=sL + 1, lg=f2u(LOG2E), lphi=LPHI, prio=opt("hprio", 1)))
    srd(k, SWO, 22, 23, 448 * 896)
    srd(k, SPHI, 20, 21, 16 * 1568)
    k.I("buffer_load_dwordx4 v%d, s[%d:%d], s16 offen lds" % (vL16, SPHI, SPHI + 3))
    for f in range(2): ld(ar(QB + 4 * f, 4), sPQ, 1024 * f)
    def pload(blk, pos):
        for q in range(2): ld(vr(PART + 8 * pos + 4 * q, 4), sPB, 1024 * q)
        k.I("s_add_u32 s%d, s%d, 8192" % (sPB, sPB))
    def psum(lo, hi, outstanding):
        for pos in range(lo, hi):
            k.I("s_waitcnt vmcnt(%d)" % (2 * (hi - 1 - pos) + outstanding))
            for q in range(4):
                k.I(pk("v_pk_add_f32", PART + 2 * q, PART + 2 * q, PART + 8 * pos + 2 * q))
    DEPTH = opt("hdepth", 1)
    for i in range(12, 16):
        k.I("v_mov_b32 v%d, 0" % (EP + i))
        k.I("v_mov_b32 v%d, 0" % (EM + i))
    pos = lambda blk: 0 if blk == 0 else 1 + (blk - 1) % 8
    for blk in range(DEPTH): pload(blk, pos(blk))
    for blk in range(16):
        if blk + DEPTH < 16: pload(blk + DEPTH, pos(blk + DEPTH))
        if blk == 0: continue
        k.I("s_waitcnt vmcnt(%d)" % (2 * min(DEPTH, 15 - blk)))
        for q in range(4):
            k.I(pk("v_pk_add_f32", PART + 2 * q, PART + 2 * q, PART + 8 * pos(blk) + 2 * q))
    for q in range(4):
        k.I("v_cvt_pk_bf16_f32 v%d, v%d, v%d" % (T + q, PART + 2 * q, PART + 2 * q + 1))
    exec_both(k, 0x20000000)
    for q in range(4): k.I("v_mov_b32 v%d, 0x3f803f80" % (T + q))
    k.I(EXEC_ALL)
    k.I("ds_write_b128 v2, v[%d:%d] offset:%d" % (T, T + 3, LKV))
    k.I("s_waitcnt lgkmcnt(0)")
    k.I("s_barrier")
    for ff in range(2):
        for jj in range(2):
            r = PHI + 4 * ff + 2 * jj
            k.I("ds_read_b64_tr_b16 a[%d:%d], v3 offset:%d" % (r, r + 1, LPHI + (16 * ff + 8 * jj) * 56))
    for f in range(4):
        k.I("ds_read_b128 a[%d:%d], v%d offset:%d" % (KVF + 4 * f, KVF + 4 * f + 3, vL16, LKV + 1024 * f))
    if opt("wopf", 1):
        k.I("buffer_load_dword v%d, v%d, s[%d:%d], s3 offen" % (T + 11, T + 10, SWO, SWO + 3))
    k.I("s_waitcnt lgkmcnt(0)")
    k.I(mfma(vr(PQ, 16), ar(PHI, 4), ar(QB, 4), 0))
    k.I(mfma(vr(PQ, 16), ar(PHI + 4, 4), ar(QB + 4, 4)))
    feature_map(k, PQ, FQ, FQ + 8, EP, EM, T, sL, False)
    for f in range(4):
        k.I(mfma(vr(NP if f < 2 else NM, 16), ar(KVF + 4 * f, 4), vr(FQ + 4 * f, 4), 0 if f % 2 == 0 else None))
    bcast_hi(NP + 13, T, T + 2)
    bcast_hi(NM + 13, T + 1, T + 4)
    k.I("v_rcp_f32 v%d, v%d" % (T + 2, T + 2))
    k.I("v_rcp_f32 v%d, v%d" % (T + 4, T + 4))
    for i in range(8):
        k.I(pk("v_pk_mul_f32", NP + 2 * i, NP + 2 * i, T + 2, " op_sel_hi:[1,0]"))
    for i in range(8):
        k.I("v_pk_fma_f32 v[%d:%d], v[%d:%d], v[%d:%d], v[%d:%d] op_sel_hi:[1,0,1]" %
            (NP + 2 * i, NP + 2 * i + 1, NM + 2 * i, NM + 2 * i + 1, T + 4, T + 5, NP + 2 * i, NP + 2 * i + 1))
    normalise(NP, FB, sOA, True)
    k.I("s_endpgm")
    return k, dict(grid=256, block=512, lds=22528, vgpr=128, agpr=128, sgpr=102 if STAMP else 56)

def gen_k3():
    k = Kernel("oproj_kernel")
    S_WO, S_WS, S_OUT = 8, 12, 16
    sW, sBR, sRB, sCG, sTMP, sWO, sO, sM = 20, 21, 22, 23, 24, 25, 26, 27
    vL, vL16, vWD, vWR, vWR1, vST = 1, 2, 3, 4, 5, 6
    ACC = (16, 32)
    WF = 48
    T = 80
    NR = 480
    vm = VmQueue(k)
    k.I("""
    s_cmp_ge_u32 s2, 224
    s_cbranch_scc1 L3_end
    s_and_b32 s3, s2, 7
    s_lshr_b32 s{br}, s3, 2
    s_lshl_b32 s{tmp}, s{br}, 5
    s_add_u32 s{tmp}, s{tmp}, 16
    s_load_dwordx2 s[4:5], s[0:1], s{tmp}
    s_load_dwordx2 s[6:7], s[0:1], 72
    s_load_dwordx2 s[0:1], s[0:1], 56
    v_lshrrev_b32 v2, 6, v0
    v_and_b32 v{l}, 63, v0
    v_readfirstlane_b32 s{w}, v2
    v_lshlrev_b32 v{l16}, 4, v{l}
    v_lshrrev_b32 v{a}, 3, v{l}
    v_mul_u32_u24 v{a}, 896, v{a}
    v_and_b32 v{b}, 7, v{l}
    v_bfe_u32 v{c}, v{l}, 4, 1
    v_lshlrev_b32 v{c}, 2, v{c}
    v_xor_b32 v{b}, v{b}, v{c}
    v_lshl_add_u32 v{wd}, v{b}, 4, v{a}
    s_and_b32 s{rb}, s3, 3
    s_lshl_b32 s{rb}, s{rb}, 2
    s_bfe_u32 s{tmp}, s2, 0x20003
    s_add_u32 s{rb}, s{rb}, s{tmp}
    s_lshr_b32 s{cg}, s2, 5
    s_mul_i32 s{wo}, s{w}, {r8}
    s_lshl_b32 s{m}, s{w}, 10
    s_lshl_b32 s{tmp}, s{cg}, 7
    s_add_u32 s{wo}, s{wo}, s{tmp}
    s_lshl_b32 s{o}, s{br}, 6
    s_lshl_b32 s{rb}, s{rb}, 2
    s_add_u32 s{rb}, s{rb}, s{w}
    s_add_u32 s{o}, s{o}, s{rb}
    s_lshl_b32 s{o}, s{o}, 15
    s_add_u32 s{o}, s{o}, 0x{ooff:x}
    s_waitcnt lgkmcnt(0)
    """.format(br=sBR, tmp=sTMP, l=vL, w=sW, l16=vL16, a=T, b=T + 1, c=T + 2, wd=vWD, rb=sRB, cg=sCG, wo=sWO, m=sM, r8=8 * 896,
               o=sO, ooff=O_OFF))
    st = Stamper(k, 2, 4, 94); st.start()
    srd(k, S_WO, 4, 5, 448 * 896)
    srd(k, S_WS, 6, 7, WS_USED)
    def wdma(n):
        k.I("s_add_u32 m0, s%d, %d" % (sM, n * 4096))
        k.I("s_add_u32 s%d, s%d, %d" % (sTMP, sWO, n * 32 * 896))
        k.I("buffer_load_dwordx4 v%d, s[%d:%d], s%d offen lds" % (vWD, S_WO, S_WO + 3, sTMP))
        vm.add("w%d" % n)
    def oload(h, f):
        if h % 2 == 0 and f == 0:
            k.I("s_add_u32 s%d, s%d, %d" % (28, sO, h * 2048))
        k.I("buffer_load_dwordx4 a[%d:%d], v%d, s[%d:%d], s28 offen offset:%d" % (8 * h + 4 * f, 8 * h + 4 * f + 3, vL16, S_WS, S_WS + 3, (h % 2) * 2048 + 1024 * f))
        vm.add("o%d" % h)
    AHEAD = opt("ahead", 5)
    wneed = lambda h: (28 * h + 31) // 32
    nextw = 0
    def issue_head(h):
        nonlocal nextw
        L = []
        while nextw <= wneed(h):
            L.append(lambda n=nextw: wdma(n)); nextw += 1
        L.append(lambda: oload(h, 0)); L.append(lambda: oload(h, 1))
        return L
    for h in range(AHEAD):
        for f in issue_head(h): f()
    srd(k, S_OUT, 0, 1, 2048 * 1792)
    k.I("""
    v_lshrrev_b32 v{h}, 5, v{l}
    v_lshlrev_b32 v{wr}, 9, v{h}
    v_bfe_u32 v{c}, v{l}, 2, 2
    v_lshl_add_u32 v{wr}, v{c}, 7, v{wr}
    v_bfe_u32 v{c}, v{l}, 3, 1
    v_lshl_add_u32 v{wr}, v{c}, 6, v{wr}
    v_bfe_u32 v{c}, v{l}, 4, 1
    v_lshl_add_u32 v{wr}, v{c}, 5, v{wr}
    v_and_b32 v{c}, 3, v{l}
    v_lshl_add_u32 v{wr}, v{c}, 3, v{wr}
    v_xor_b32 v{wr1}, 64, v{wr}
    v_and_b32 v{c}, 31, v{l}
    v_mul_u32_u24 v{c}, 1792, v{c}
    v_lshl_add_u32 v{st}, v{h}, 4, v{c}
    s_mul_i32 s{rb}, s{rb}, {r32}
    s_mul_i32 s{tmp}, s{br}, 896
    s_add_u32 s{rb}, s{rb}, s{tmp}
    s_lshl_b32 s{tmp}, s{cg}, 7
    s_add_u32 s{rb}, s{rb}, s{tmp}
    """.format(h=T, c=T + 1, l=vL, wr=vWR, wr1=vWR1, st=vST, rb=sRB, r32=32 * 1792, tmp=sTMP, br=sBR, cg=sCG))
    def wread(h):
        b = WF + 16 * (h & 1)
        for f in range(2):
            for c in range(2):
                for jj in range(2):
                    r = b + 8 * c + 4 * f + 2 * jj
                    k.I("ds_read_b64_tr_b16 v[%d:%d], v%d offset:%d" % (r, r + 1, vWR1 if c else vWR, (28 * h + 16 * f + 8 * jj) * 128))
    SYNC = opt("sync", 2)
    def sync(h):
        vm.wait(["w%d" % wneed(min(h + SYNC - 1, 15))])
        k.I("s_barrier")
    st()
    sync(0); st(); wread(0)
    for h in range(16):
        nl = 0
        if h + 1 < 16:
            if (h + 1) % SYNC == 0:
                sync(h + 1)
                if (h + 1) % 4 == 0: st()
            wread(h + 1); nl = 8
        vm.wait(["o%d" % h])
        k.I("s_waitcnt lgkmcnt(%d)" % nl)
        pend = issue_head(h + AHEAD) if h + AHEAD < 16 else []
        b = WF + 16 * (h & 1)
        for f in range(2):
            for c in range(2):
                k.I(mfma(vr(ACC[c], 16), vr(b + 8 * c + 4 * f, 4), ar(8 * h + 4 * f, 4), 0 if (h == 0 and f == 0) else None))
                if pend: pend.pop(0)()
        assert not pend
    st()
    for c in range(2):
        F = WF + 8 * c
        cvt8(k, F, ACC[c])
        for gp in range(2):
            k.I("v_permlane32_swap_b32 v%d, v%d" % (F + 4 * gp, F + 4 * gp + 2))
            k.I("v_permlane32_swap_b32 v%d, v%d" % (F + 4 * gp + 1, F + 4 * gp + 3))
            k.I("buffer_store_dwordx4 v[%d:%d], v%d, s[%d:%d], s%d offen offset:%d" % (F + 4 * gp, F + 4 * gp + 3, vST, S_OUT, S_OUT + 3, sRB, 64 * c + 32 * gp))
    st.dump(S_WS)
    k.label("L3_end")
    k.I("s_endpgm")
    return k, dict(grid=224, block=256, lds=NR * 128, vgpr=96, agpr=128, sgpr=102 if STAMP else 32)

HEADER = open("cdna_kernels/%s.s.ref" % NAME).read().split("; Override launch geometry")[0]

def build(kernels):
    out = [HEADER.rstrip("\n")]
    for k, cfg in kernels:
        out.append("; @launch kernel=%s grid=(%d,1,1) block=(%d,1,1) lds=%d" % (k.name, cfg["grid"], cfg["block"], cfg["lds"]))
    out.append('.amdgcn_target "amdgcn-amd-amdhsa--gfx950"')
    out.append(".text")
    for k, cfg in kernels:
        k.fix_hazards(verbose=("-v" in sys.argv))
        out += [".globl %s" % k.name, ".p2align 8", ".type %s,@function" % k.name, "%s:" % k.name, k.text()]
    out.append('.section .rodata,"a"')
    for k, cfg in kernels:
        acc = (cfg["vgpr"] + 3) // 4 * 4
        out += [".p2align 6", ".amdhsa_kernel %s" % k.name,
                "  .amdhsa_next_free_vgpr %d" % (acc + cfg["agpr"] if cfg["agpr"] else cfg["vgpr"]),
                "  .amdhsa_next_free_sgpr %d" % cfg["sgpr"],
                "  .amdhsa_accum_offset %d" % acc,
                "  .amdhsa_group_segment_fixed_size 0",
                "  .amdhsa_kernarg_size 80",
                "  .amdhsa_user_sgpr_count 2",
                "  .amdhsa_user_sgpr_kernarg_segment_ptr 1",
                "  .amdhsa_system_sgpr_workgroup_id_x 1",
                ".end_amdhsa_kernel"]
    return "\n".join(out) + "\n"

if __name__ == "__main__":
    txt = build([gen_k1(), gen_k2(opt("R", 8)), gen_k3()])
    path = "cdna_kernels/%s.s" % NAME
    for a in sys.argv[1:]:
        if a.endswith(".s"): path = a
    open(path, "w").write(txt)
    print("wrote", path, len(txt), "bytes")
```

```python
import sys, struct
from asmlib import Kernel, vr, ar, sr

NAME = "concat_heads__mha_block__linear_kernel_hedgehog__prompt"
def f2u(x): return struct.unpack("<I", struct.pack("<f", x))[0]
def opt(name, default):
    for a in sys.argv[1:]:
        if a.startswith(name + "="): return int(a.split("=")[1])
    return default

KV_OFF   = 0
Q_OFF    = 4 << 20
QB_OFF   = 6 << 20
KVP_OFF  = 8 << 20
O_OFF    = 10 << 20
WS_USED  = 14 << 20

LOG2E = 1.4426950408889634
QSCALE = 28 ** -0.5 * LOG2E
MOFF = 40.0
ROUND_PQ = opt("round", 0)
ROT = opt("rot", 1)
SC = ["", " sc1", " sc0 sc1", " nt", " sc1 nt"][opt("sc", 1)]

STAMP = "-stamp" in sys.argv
STAMP_OFF = 16 << 20
class Stamper:
    def __init__(self, k, kidx, nwaves, va):
        self.k, self.kidx, self.n, self.nw, self.va = k, kidx, 0, nwaves, va
    def start(self):
        if not STAMP: return
        self.k.I("s_memrealtime s[96:97]")
        self.k.I("s_mov_b32 s98, s2")
        self.k.I("v_mov_b32 v%d, v0" % (self.va + 1))
        self()
    def __call__(self):
        if not STAMP: return
        self.k.I("s_memtime s[%d:%d]" % (64 + 2 * self.n, 65 + 2 * self.n)); self.n += 1
        assert self.n <= 15
    def dump(self, S_WS):
        if not STAMP: return
        k, a, b = self.k, self.va, self.va + 1
        sv = self.n
        self()
        k.I("s_waitcnt vmcnt(0)")
        self()
        k.I("s_memrealtime s[94:95]")
        k.I("s_waitcnt lgkmcnt(0)")
        k.I("s_sub_u32 s94, s94, s96")
        k.I("s_mov_b32 s%d, 0x2000000" % (S_WS + 2))
        k.I("v_lshrrev_b32 v%d, 6, v%d" % (b, b))
        k.I("s_mul_i32 s98, s98, %d" % self.nw)
        k.I("v_add_u32 v%d, s98, v%d" % (b, b))
        k.I("v_lshlrev_b32 v%d, 6, v%d" % (b, b))
        k.I("s_mov_b32 s98, 0x%x" % (STAMP_OFF + (self.kidx << 20)))
        k.I("s_mov_b64 exec, 1")
        for i in range(15):
            k.I(("s_sub_u32 s99, s%d, s64" % (64 + 2 * i) if i else "s_mov_b32 s99, s96") if i < self.n else "s_mov_b32 s99, 0")
            k.I("v_mov_b32 v%d, s99" % a)
            k.I("buffer_store_dword v%d, v%d, s[%d:%d], s98 offen offset:%d" % (a, b, S_WS, S_WS + 3, 4 * i))
        k.I("v_mov_b32 v%d, s94" % a)
        k.I("buffer_store_dword v%d, v%d, s[%d:%d], s98 offen offset:60" % (a, b, S_WS, S_WS + 3))
        self.n = sv

MF = "v_mfma_f32_32x32x16_bf16"
def mfma(d, a, b, c=None):
    return "%s %s, %s, %s, %s" % (MF, d, a, b, d if c is None else "0")

EXEC_ALL = "s_mov_b64 exec, -1"
EXEC_LO = "s_mov_b64 exec, 0xffffffff"
def exec_hi(k): k.I("s_mov_b32 exec_lo, 0\ns_mov_b32 exec_hi, -1")
def exec_both(k, m): k.I("s_mov_b32 exec_lo, 0x%x\ns_mov_b32 exec_hi, 0x%x" % (m, m))

def srd(k, s, lo, hi, nbytes):
    k.I("s_mov_b32 s%d, s%d" % (s, lo))
    k.I("s_mov_b32 s%d, s%d" % (s + 1, hi))
    k.I("s_mov_b32 s%d, 0x%x" % (s + 2, nbytes))
    k.I("s_mov_b32 s%d, 0x00020000" % (s + 3))

def cvt8(k, dst, src):
    for i in range(8):
        k.I("v_cvt_pk_bf16_f32 v%d, v%d, v%d" % (dst + i, src + 2 * i, src + 2 * i + 1))
def pk(op, d, a, b, mods=""):
    return "%s v[%d:%d], v[%d:%d], v[%d:%d]%s" % (op, d, d + 1, a, a + 1, b, b + 1, mods)

def xhalf(k, op, x, t):
    k.I("v_mov_b32 v%d, v%d" % (t, x))
    k.I("v_permlane32_swap_b32 v%d, v%d" % (x, t))
    k.I("%s v%d, v%d, v%d" % (op, x, x, t))

def neg_max_pieces(k, m, t0, t1, d6, d7, s_mask):
    k.I("v_and_b32 v%d, s%d, v%d" % (t0, s_mask, m))
    k.I("v_sub_f32 v%d, v%d, v%d" % (m, m, t0))
    k.I("v_and_b32 v%d, s%d, v%d" % (t1, s_mask, m))
    k.I("v_sub_f32 v%d, v%d, v%d" % (m, m, t1))
    exec_hi(k)
    k.I("v_cvt_pk_bf16_f32 v%d, -v%d, -v%d" % (d6, t0, t1))
    k.I("v_cvt_pk_bf16_f32 v%d, -v%d, 0" % (d7, m))
    k.I(EXEC_ALL)

_cp = [0]
def code_prefetch(k, s0, vt, vlane, swave, start, end, nwaves):
    _cp[0] += 1
    lab = "Lcp%d" % _cp[0]
    k.I("s_getpc_b64 s[%d:%d]" % (s0, s0 + 1))
    k.label(lab)
    k.I("s_add_u32 s%d, s%d, %s-%s" % (s0, s0, start, lab))
    k.I("s_addc_u32 s%d, s%d, %s" % (s0 + 1, s0 + 1, "0"))
    k.I("s_mov_b32 s%d, %s-%s" % (s0 + 2, end, start))
    k.I("s_mov_b32 s%d, 0x00020000" % (s0 + 3))
    k.I("v_mul_u32_u24 v%d, %d, v%d" % (vt, 128 * nwaves, vlane))
    k.I("s_lshl_b32 s%d, s%d, 7" % (s0 + 4, swave))
    k.I("buffer_load_dword v%d, v%d, s[%d:%d], s%d offen" % (vt, vt, s0, s0 + 3, s0 + 4))

class VmQueue:
    def __init__(self, k): self.k, self.q = k, []
    def add(self, tag): self.q.append(tag)
    def count_for(self, tags):
        idx = max(i for i, t in enumerate(self.q) if t in tags)
        return len(self.q) - 1 - idx
    def wait(self, tags):
        n = self.count_for(tags)
        assert n <= 63
        self.k.I("s_waitcnt vmcnt(%d)" % n)

def feature_map(k, D, FP, FM, EP, EM, T, sL, norm):
    MX, MN, TT = T, T + 2, T + 4
    for (op3, op2, r) in (("v_max3_f32", "v_max_f32", MX), ("v_min3_f32", "v_min_f32", MN)):
        k.I("%s v%d, v%d, v%d, v%d" % (op3, r, D, D + 1, D + 2))
        for i in range(3, 11, 2):
            k.I("%s v%d, v%d, v%d, v%d" % (op3, r, r, D + i, D + i + 1))
        k.I("%s v%d, v%d, v%d" % (op2, r, r, D + 11))
    k.I(EXEC_LO)
    for (op3, r) in (("v_max3_f32", MX), ("v_min3_f32", MN)):
        k.I("%s v%d, v%d, v%d, v%d" % (op3, r, r, D + 12, D + 13))
        k.I("%s v%d, v%d, v%d, v%d" % (op3, r, r, D + 14, D + 15))
    k.I(EXEC_ALL)
    k.I("v_mov_b32 v%d, v%d" % (TT, MX))
    k.I("v_mov_b32 v%d, v%d" % (TT + 1, MN))
    k.I("v_permlane32_swap_b32 v%d, v%d" % (MX, TT))
    k.I("v_permlane32_swap_b32 v%d, v%d" % (MN, TT + 1))
    k.I("v_max_f32 v%d, v%d, v%d" % (MX, MX, TT))
    k.I("v_min_f32 v%d, v%d, v%d" % (MN, MN, TT + 1))
    k.I("v_mul_f32 v%d, s%d, v%d" % (MX, sL, MX))
    k.I("v_mul_f32 v%d, s%d, v%d" % (MN, sL, MN))
    def args(i):
        k.I("v_pk_fma_f32 v[%d:%d], v[%d:%d], s[%d:%d], v[%d:%d] op_sel_hi:[1,1,0] neg_lo:[0,0,1] neg_hi:[0,0,1]" %
            (EP + 2 * i, EP + 2 * i + 1, D + 2 * i, D + 2 * i + 1, sL, sL + 1, MX, MX + 1))
        k.I("v_pk_fma_f32 v[%d:%d], v[%d:%d], s[%d:%d], v[%d:%d] op_sel_hi:[1,1,0] neg_lo:[1,0,0] neg_hi:[1,0,0]" %
            (EM + 2 * i, EM + 2 * i + 1, D + 2 * i, D + 2 * i + 1, sL, sL + 1, MN, MN + 1))
    def exps(lo, hi):
        for i in range(lo, hi):
            k.I("v_exp_f32 v%d, v%d" % (EP + i, EP + i))
            k.I("v_exp_f32 v%d, v%d" % (EM + i, EM + i))
    for i in range(6): args(i)
    k.I(EXEC_LO)
    args(6); args(7); exps(12, 16)
    k.I(EXEC_ALL)
    exps(0, 12)
    if norm:
        for (E, r) in ((EP, MX), (EM, MN)):
            k.I(pk("v_pk_add_f32", r, E + 12, E + 14))
            for i in range(6):
                k.I(pk("v_pk_add_f32", r, r, E + 2 * i))
            k.I("v_add_f32 v%d, v%d, v%d" % (r, r, r + 1))
        k.I("v_mov_b32 v%d, v%d" % (TT, MX))
        k.I("v_mov_b32 v%d, v%d" % (TT + 1, MN))
        k.I("v_permlane32_swap_b32 v%d, v%d" % (MX, TT))
        k.I("v_permlane32_swap_b32 v%d, v%d" % (MN, TT + 1))
        k.I("v_add_f32 v%d, v%d, v%d" % (MX, MX, TT))
        k.I("v_add_f32 v%d, v%d, v%d" % (MN, MN, TT + 1))
        k.I("v_rcp_f32 v%d, v%d" % (MX, MX))
        k.I("v_rcp_f32 v%d, v%d" % (MN, MN))
        for (E, r, F) in ((EP, MX, FP), (EM, MN, FM)):
            for i in range(8):
                k.I(pk("v_pk_mul_f32", E + 2 * i, E + 2 * i, r, " op_sel_hi:[1,0]"))
            cvt8(k, F, E)
    else:
        cvt8(k, FP, EP); cvt8(k, FM, EM)

def gen_k1():
    k = Kernel("qkv_kernel")
    OOB = 0x40000000
    PSLOT, PX, PSCR = 48128, 28672, 45056
    KSLOT, KX, KPHI = 32768, 16384, 131072
    LDS = 3 * PSLOT
    S_SRC, S_WS, S_PHI = 12, 16, 20
    sW, sIDX, sG, sRB, sTMP, sM, sROT, sKB = 24, 25, 26, 27, 28, 29, 30, 31
    sSOF, sSTEP, sB1, sB2, sCUR, sL, sHEAD, sDST = 32, 33, 34, 35, 36, 38, 40, 41
    sC, sP6, sP7, sDSH = 42, 44, 45, 46
    vL, vL16, vD = 1, 2, 3
    vXR, vWR = 10, 22
    vPADV, vPH = 25, 26
    T = 28
    ACC = 36
    XF, WF = 100, 116
    k.I("""
    s_cmp_ge_u32 s2, 256
    s_cbranch_scc1 L1_end
    s_bfe_u32 s3, s2, 0x20003
    s_lshr_b32 s{tmp}, s2, 5
    s_and_b32 s{tmp}, s{tmp}, 4
    s_or_b32 s3, s3, s{tmp}
    s_cmp_ge_u32 s3, 3
    s_cselect_b32 s{tmp}, 24, 0
    s_load_dwordx4 s[4:7], s[0:1], s{tmp}
    s_load_dwordx2 s[8:9], s[0:1], 72
    s_load_dwordx2 s[10:11], s[0:1], 40
    v_lshrrev_b32 v2, 6, v0
    v_and_b32 v{l}, 63, v0
    v_readfirstlane_b32 s{w}, v2
    s_bfe_u32 s{rb}, s2, 0x20001
    s_lshl_b32 s{rb}, s{rb}, 2
    s_bfe_u32 s{idx}, s2, 0x20005
    s_add_u32 s{rb}, s{rb}, s{idx}
    s_and_b32 s{idx}, s2, 1
    """.format(tmp=sTMP, l=vL, w=sW, idx=sIDX, rb=sRB))
    st = Stamper(k, 0, 8, 190); st.start()
    k.I("v_lshlrev_b32 v%d, 4, v%d" % (vL16, vL))
    k.I("s_cmp_ge_u32 s3, 4")
    k.I("s_cbranch_scc1 L1_kv")

    def x_voffsets():
        k.I("""
        v_lshrrev_b32 v{a}, 3, v{l}
        v_mul_u32_u24 v{a}, 896, v{a}
        v_and_b32 v{b}, 7, v{l}
        v_lshrrev_b32 v{c}, 4, v{l}
        v_xor_b32 v{b}, v{b}, v{c}
        v_lshl_add_u32 v{x0}, v{b}, 4, v{a}
        v_xor_b32 v{b}, 4, v{b}
        v_lshl_add_u32 v{x1}, v{b}, 4, v{a}
        v_add_u32 v{x1}, 7168, v{x1}
        v_add_u32 v{x2}, 14336, v{x0}
        v_add_u32 v{x3}, 14336, v{x1}
        """.format(a=T, b=T + 1, c=T + 2, l=vL, x0=vD, x1=vD + 1, x2=vD + 2, x3=vD + 3))
    COM = opt("com", 0)
    NR = 7 - COM
    def rot_from(expr_regs):
        a, b = expr_regs
        if ROT and NR > 1:
            mg = -(-256 // NR)
            assert all((n * mg) >> 8 == n // NR for n in range(40))
            k.I("""
            s_lshl_b32 s{tmp}, s{b}, 1
            s_add_u32 s{rot}, s3, s{tmp}
            s_add_u32 s{rot}, s{rot}, s{b}
            s_mul_i32 s{tmp}, s{rot}, {mg}
            s_lshr_b32 s{tmp}, s{tmp}, 8
            s_mul_i32 s{tmp}, s{tmp}, {nr}
            s_sub_u32 s{rot}, s{rot}, s{tmp}
            """.format(tmp=sTMP, rot=sROT, a=a, b=b, mg=mg, nr=NR).replace("s_lshl_b32 s%d, s%d, 1" % (sTMP, b), "s_mov_b32 s%d, 0" % sTMP))
        else:
            k.I("s_mov_b32 s%d, 0" % sROT)
    def src_srd(is_x_label):
        pass
    def read_addrs(nslot, slot, xoff, wstride, wextra_sgpr, nbase):
        k.I("""
        v_and_b32 v{s}, 31, v{l}
        v_lshrrev_b32 v{h}, 5, v{l}
        v_bfe_u32 v{c}, v{l}, 1, 3
        v_xor_b32 v{c}, v{c}, v{h}
        v_lshlrev_b32 v{d}, 7, v{s}
        v_add_u32 v{d}, s{m}, v{d}
        v_lshl_add_u32 v{r0}, v{c}, 4, v{d}
        v_xor_b32 v{e}, 2, v{c}
        v_lshl_add_u32 v{r1}, v{e}, 4, v{d}
        v_xor_b32 v{e}, 4, v{c}
        v_lshl_add_u32 v{r2}, v{e}, 4, v{d}
        v_xor_b32 v{e}, 6, v{c}
        v_lshl_add_u32 v{r3}, v{e}, 4, v{d}
        v_bfe_u32 v{c}, v{l}, 4, 1
        v_lshlrev_b32 v{d}, 5, v{c}
        v_and_b32 v{c}, 3, v{l}
        v_lshl_add_u32 v{d}, v{c}, 3, v{d}
        v_bfe_u32 v{c}, v{l}, 2, 2
        v_lshl_add_u32 v{e}, v{h}, 3, v{c}
        v_mul_u32_u24 v{e}, {ws}, v{e}
        v_add3_u32 v{wr}, v{e}, v{d}, s{wx}
        v_mov_b32 v{f}, 0x3f803f80
        v_cmp_eq_u32 vcc, 28, v{s}
        """.format(s=T, h=T + 1, c=T + 2, d=T + 3, e=T + 4, f=T + 5, l=vL, m=sM, r0=vXR, r1=vXR + 1, r2=vXR + 2, r3=vXR + 3,
                   ws=wstride, wr=vWR, wx=wextra_sgpr))
        for b in range(1, nbase):
            for kk in range(4): k.I("v_add_u32 v%d, %d, v%d" % (vXR + 4 * b + kk, b * slot, vXR + kk))
            k.I("v_add_u32 v%d, %d, v%d" % (vWR + b, b * slot, vWR))
        k.I("v_cndmask_b32 v%d, 0, v%d, vcc" % (vPADV, T + 5))

    def gemm(NS, SLOT, NDMA, reads, mfmas, setup):
        vm = VmQueue(k)
        def dma(o):
            def one(i):
                def f():
                    if i == 0 and o == 0 and COM > 0:
                        k.I("s_mov_b32 s%d, s%d" % (sCUR, sSOF))
                    elif i == 0 and o < COM:
                        k.I("s_add_u32 s%d, s%d, s%d" % (sCUR, sCUR, sSTEP))
                    elif i == 0:
                        k.I("s_add_u32 s%d, s%d, %d" % (sKB, sROT, o))
                        k.I("s_sub_u32 s%d, s%d, %d" % (sTMP, sKB, NR))
                        k.I("s_cmp_ge_u32 s%d, 7" % sKB)
                        k.I("s_cselect_b32 s%d, s%d, s%d" % (sKB, sTMP, sKB))
                        k.I("s_mul_i32 s%d, s%d, s%d" % (sCUR, sKB, sSTEP))
                        k.I("s_add_u32 s%d, s%d, s%d" % (sCUR, sCUR, sSOF))
                    k.I("s_add_u32 m0, s%d, %d" % (sB1 if i < 4 else sB2, (o % NS) * SLOT + 1024 * (i % 4)))
                    k.I("s_nop 0")
                    k.I("buffer_load_dwordx4 v%d, s[%d:%d], s%d offen lds" % (vD + i, S_SRC, S_SRC + 3, sCUR)); vm.add(o)
                return f
            return [one(i) for i in range(NDMA)]
        for f in dma(0): f()
        PRE1 = opt("pre1", 1)
        if PRE1:
            k.I("s_barrier")
            for f in dma(1): f()
        if opt("cpf", 1):
            code_prefetch(k, 48, 27, vL, sW, "attn_kernel", "L3_end", 8); vm.add("code")
        setup()
        st()
        vm.wait([0])
        k.I("s_barrier")
        st()
        reads(0, 0)
        pend = []
        if not PRE1:
            for f in dma(1): f()
        for o in range(2, NS): pend += dma(o)
        for ks in range(28):
            o, kk = ks >> 2, ks & 3
            if kk == 3 and o < 6:
                assert vm.q.count(o + 1) == NDMA
                k.I("s_waitcnt lgkmcnt(0)")
                vm.wait([o + 1])
                k.I("s_barrier")
                st()
                reads(o + 1, 0)
                if o + NS <= 6: pend += dma(o + NS)
            elif ks < 27:
                n = reads(o, kk + 1)
                k.I("s_waitcnt lgkmcnt(%d)" % n)
            else:
                k.I("s_waitcnt lgkmcnt(0)")
            for m in mfmas(ks):
                k.I(m)
                if pend: pend.pop(0)()
        st()
    def store4(reg, soff, off):
        k.I("buffer_store_dwordx4 v[%d:%d], v%d, s[%d:%d], s%d offen offset:%d%s" % (reg, reg + 3, vL16, S_WS, S_WS + 3, soff, off, SC))

    k.I("""
    s_lshl_b32 s{g}, s3, 1
    s_cmp_eq_u32 s3, 3
    s_cselect_b32 s{g}, 0, s{g}
    s_add_u32 s{g}, s{g}, s{idx}
    s_cmp_ge_u32 s{w}, 4
    s_cbranch_scc1 L1_px
    """.format(g=sG, idx=sIDX, rb=sRB, tmp=sTMP, w=sW))
    for i in range(7):
        k.I("""
        v_add_u32 v{c}, {c0}, v{l}
        v_mul_u32_u24 v{r}, 2341, v{c}
        v_lshrrev_b32 v{r}, 16, v{r}
        v_mul_u32_u24 v{r}, {dl}, v{r}
        v_lshl_add_u32 v{d}, v{c}, 4, v{r}
        """.format(c=T, r=T + 1, c0=64 * i, l=vL, dl=2688 - 448, d=vD + i))
    k.I("""
    s_mul_i32 s{sof}, s{w}, {r16}
    s_mul_i32 s{tmp}, s{g}, 448
    s_add_u32 s{sof}, s{sof}, s{tmp}
    s_mov_b32 s{step}, {r64}
    s_mul_i32 s{b1}, s{w}, 7168
    s_add_u32 s{b2}, s{b1}, 4096
    s_waitcnt lgkmcnt(0)
    """.format(sof=sSOF, w=sW, r16=16 * 2688, tmp=sTMP, g=sG, step=sSTEP, r64=64 * 2688, b1=sB1, b2=sB2))
    srd(k, S_SRC, 6, 7, 448 * 2688)
    k.I("s_branch L1_pgo")
    k.label("L1_px")
    x_voffsets()
    for i in range(4, 7): k.I("v_mov_b32 v%d, 0x%x" % (vD + i, OOB))
    k.I("""
    s_lshl_b32 s{sof}, s{rb}, 2
    s_add_u32 s{sof}, s{sof}, s{w}
    s_sub_u32 s{sof}, s{sof}, 4
    s_mul_i32 s{sof}, s{sof}, {r32}
    s_mov_b32 s{step}, 128
    s_lshl_b32 s{b1}, s{w}, 12
    s_add_u32 s{b1}, s{b1}, {px}
    s_mov_b32 s{b2}, {scr}
    s_waitcnt lgkmcnt(0)
    """.format(sof=sSOF, rb=sRB, w=sW, r32=32 * 896, step=sSTEP, b1=sB1, b2=sB2, px=PX - 4 * 4096, scr=PSCR))
    srd(k, S_SRC, 4, 5, 2048 * 896)
    k.label("L1_pgo")
    rot_from((sG, sRB))
    def p_setup():
        srd(k, S_WS, 8, 9, WS_USED)
        k.I("""
        s_and_b32 s{m}, s{w}, 1
        s_lshl_b32 s{m}, s{m}, 13
        s_add_u32 s{m}, s{m}, {px}
        s_lshr_b32 s{tmp}, s{w}, 1
        s_mul_i32 s{tmp}, s{tmp}, 112
        """.format(m=sM, w=sW, px=PX, tmp=sTMP))
        read_addrs(3, PSLOT, PX, 448, sTMP, 3)
        k.I("""
        s_and_b32 s{head}, s{g}, 1
        s_lshl_b32 s{head}, s{head}, 3
        s_and_b32 s{tmp}, s{w}, 6
        s_add_u32 s{head}, s{head}, s{tmp}
        s_lshl_b32 s{dst}, s{head}, 6
        s_lshl_b32 s{tmp}, s{rb}, 2
        s_add_u32 s{dst}, s{dst}, s{tmp}
        s_and_b32 s{tmp}, s{w}, 1
        s_lshl_b32 s{tmp}, s{tmp}, 1
        s_add_u32 s{dst}, s{dst}, s{tmp}
        s_mov_b32 s{c0}, 0x{qs:x}
        s_mov_b32 s{c1}, 0x{qs:x}
        """.format(head=sHEAD, g=sG, tmp=sTMP, w=sW, dst=sDST, rb=sRB, c0=sC, c1=sC + 1, qs=f2u(QSCALE)))
    def p_reads(o, kk):
        b = (4 * o + kk) & 1
        for r in range(2):
            x = XF + 8 * b + 4 * r
            k.I("ds_read_b128 v[%d:%d], v%d offset:%d" % (x, x + 3, vXR + 4 * (o % 3) + kk, 4096 * r))
        for e in range(2):
            for jj in range(2):
                x = WF + 8 * b + 4 * e + 2 * jj
                k.I("ds_read_b64_tr_b16 v[%d:%d], v%d offset:%d" % (x, x + 1, vWR + (o % 3), (16 * kk + 4 * jj) * 448 + 56 * e))
        return 6
    def p_mfmas(swap):
        def f(ks):
            b = ks & 1
            L = []
            for r in range(2):
                for e in range(2):
                    xf, wf = vr(XF + 8 * b + 4 * r, 4), vr(WF + 8 * b + 4 * e, 4)
                    L.append(mfma(vr(ACC + 16 * (2 * e + r), 16), xf if swap else wf, wf if swap else xf, 0 if ks == 0 else None))
            return L
        return f
    k.I("s_cmp_eq_u32 s3, 2")
    k.I("s_cbranch_scc1 L1_pv")
    n0 = st.n
    gemm(3, PSLOT, 7, p_reads, p_mfmas(False), p_setup)
    k.I("""
    s_lshr_b32 s{tmp}, s{g}, 1
    s_cmp_eq_u32 s{tmp}, 1
    s_cselect_b32 s{p6}, 0x3f803f80, 0
    s_cselect_b32 s{p7}, 0x3f80, 0
    s_cselect_b32 s{dsh}, 12, 11
    s_cselect_b32 s{m}, {kvo}, {qo}
    s_cbranch_scc1 L1_pnoscale
    s_cmp_eq_u32 s3, 3
    s_cselect_b32 s{m}, {qbo}, s{m}
    s_cbranch_scc1 L1_pnoscale
    s_nop 3
    """.format(tmp=sTMP, g=sG, p6=sP6, p7=sP7, dsh=sDSH, m=sM, kvo=KV_OFF, qo=Q_OFF, qbo=QB_OFF))
    for i in range(32):
        k.I("v_pk_mul_f32 v[%d:%d], v[%d:%d], s[%d:%d]" % (ACC + 2 * i, ACC + 2 * i + 1, ACC + 2 * i, ACC + 2 * i + 1, sC, sC + 1))
    k.label("L1_pnoscale")
    k.I("s_nop 3")
    F = XF
    for tl in range(4):
        e, r = tl >> 1, tl & 1
        cvt8(k, F + 8 * tl, ACC + 16 * tl)
        exec_hi(k)
        k.I("v_mov_b32 v%d, s%d" % (F + 8 * tl + 6, sP6))
        k.I("v_mov_b32 v%d, s%d" % (F + 8 * tl + 7, sP7))
        k.I(EXEC_ALL)
        k.I("s_add_u32 s%d, s%d, %d" % (sTMP, sDST, 64 * e + r))
        k.I("s_lshl_b32 s%d, s%d, s%d" % (sTMP, sTMP, sDSH))
        k.I("s_add_u32 s%d, s%d, s%d" % (sTMP, sTMP, sM))
        store4(F + 8 * tl, sTMP, 0); store4(F + 8 * tl + 4, sTMP, 1024)
    st.dump(S_WS)
    k.I("s_endpgm")
    k.label("L1_pv")
    st.n = n0
    gemm(3, PSLOT, 7, p_reads, p_mfmas(True), p_setup)
    for tl in range(4):
        e, r = tl >> 1, tl & 1
        cvt8(k, F + 8 * tl, ACC + 16 * tl)
        exec_both(k, 0xf0000000)
        for i in range(8): k.I("v_mov_b32 v%d, v%d" % (F + 8 * tl + i, vPADV))
        k.I(EXEC_ALL)
        k.I("s_add_u32 s%d, s%d, %d" % (sTMP, sDST, 64 * e + r))
        k.I("s_lshl_b32 s%d, s%d, 12" % (sTMP, sTMP))
        store4(F + 8 * tl, sTMP, 2048); store4(F + 8 * tl + 4, sTMP, 3072)
    st.dump(S_WS)
    k.I("s_endpgm")

    k.label("L1_kv")
    st.n = n0
    AK, AV = ACC, ACC + 16
    IDN, PHI = ACC + 32, ACC + 40
    EP, EM = 132, 148
    k.I("""
    s_lshl_b32 s{g}, s{idx}, 2
    s_and_b32 s{tmp}, s3, 3
    s_add_u32 s{g}, s{g}, s{tmp}
    s_cmp_lt_u32 s{w}, 4
    s_cbranch_scc1 L1_kx
    s_lshl_b32 s{tmp}, s{w}, 8
    s_sub_u32 s{tmp}, s{tmp}, 1024
    v_add_u32 v{c0}, s{tmp}, v{l}
    v_mov_b32 v{oob}, 0x{oobv:x}
    """.format(g=sG, tmp=sTMP, idx=sIDX, rb=sRB, w=sW, c0=T + 4, l=vL, oob=T + 5, oobv=OOB))
    for i in range(4):
        k.I("""
        v_add_u32 v{c}, {c0}, v{cb}
        v_mul_u32_u24 v{r}, 9363, v{c}
        v_lshrrev_b32 v{r}, 16, v{r}
        v_lshlrev_b32 v{d}, 4, v{c}
        v_mul_u32_u24 v{q}, {d7}, v{r}
        v_add_u32 v{d}, v{d}, v{q}
        v_lshrrev_b32 v{r}, 1, v{r}
        v_mul_u32_u24 v{r}, 896, v{r}
        v_add_u32 v{d}, v{d}, v{r}
        v_cmp_gt_u32 vcc, 896, v{c}
        s_nop 1
        v_cndmask_b32 v{d}, v{oob}, v{d}, vcc
        """.format(c=T, r=T + 1, q=T + 2, c0=64 * i, cb=T + 4, d=vD + i, d7=896 - 112, oob=T + 5))
    k.I("""
    s_mul_i32 s{sof}, s{g}, 112
    s_add_u32 s{sof}, s{sof}, 896
    s_mov_b32 s{step}, {r64}
    s_lshl_b32 s{b1}, s{w}, 12
    s_sub_u32 s{b1}, s{b1}, 16384
    s_waitcnt lgkmcnt(0)
    """.format(sof=sSOF, g=sG, step=sSTEP, r64=64 * 2688, b1=sB1, w=sW))
    srd(k, S_SRC, 6, 7, 448 * 2688)
    k.I("s_branch L1_kgo")
    k.label("L1_kx")
    x_voffsets()
    k.I("""
    s_lshl_b32 s{sof}, s{rb}, 2
    s_add_u32 s{sof}, s{sof}, s{w}
    s_mul_i32 s{sof}, s{sof}, {r32}
    s_mov_b32 s{step}, 128
    s_lshl_b32 s{b1}, s{w}, 12
    s_add_u32 m0, s{b1}, 0
    s_add_u32 s{b1}, s{b1}, {kx}
    s_lshl_b32 s{m}, s{w}, 10
    s_mul_i32 s{tmp}, s{g}, 3136
    s_add_u32 s{tmp}, s{tmp}, s{m}
    s_add_u32 m0, s{m}, {kphi}
    s_waitcnt lgkmcnt(0)
    """.format(sof=sSOF, rb=sRB, w=sW, r32=32 * 896, step=sSTEP, b1=sB1, kx=KX, m=sM, tmp=sTMP, g=sG, kphi=KPHI))
    srd(k, S_PHI, 10, 11, 16 * 1568)
    srd(k, S_SRC, 4, 5, 2048 * 896)
    k.I("buffer_load_dwordx4 v%d, s[%d:%d], s%d offen lds" % (vL16, S_PHI, S_PHI + 3, sTMP))
    k.label("L1_kgo")
    rot_from((sG, sRB))
    def k_setup():
        srd(k, S_WS, 8, 9, WS_USED)
        k.I("""
        s_and_b32 s{m}, s{w}, 3
        s_lshl_b32 s{m}, s{m}, 12
        s_add_u32 s{m}, s{m}, {kx}
        s_lshr_b32 s{tmp}, s{w}, 2
        s_lshl_b32 s{head}, s{g}, 1
        s_add_u32 s{head}, s{head}, s{tmp}
        s_mul_i32 s{dst}, s{tmp}, 1568
        s_add_u32 s{dst}, s{dst}, {kphi}
        s_mul_i32 s{tmp}, s{tmp}, 56
        s_mov_b32 s{l0}, 0x{lg:x}
        s_mov_b32 s{l1}, 0x{lg:x}
        """.format(m=sM, w=sW, kx=KX, tmp=sTMP, head=sHEAD, g=sG, dst=sDST, kphi=KPHI, l0=sL, l1=sL + 1, lg=f2u(LOG2E)))
        read_addrs(4, 2 * KSLOT, KX, 224, sTMP, 2)
        k.I("v_lshl_add_u32 v%d, v%d, 2, v%d" % (T + 4, T + 1, T + 2))
        k.I("v_mul_u32_u24 v%d, 56, v%d" % (T + 4, T + 4))
        k.I("v_add3_u32 v%d, v%d, v%d, s%d" % (vPH, T + 4, T + 3, sDST))
        k.I("v_lshlrev_b32 v%d, 2, v%d" % (T + 2, T + 1))
        k.I("v_sub_u32 v%d, v%d, v%d" % (T + 2, T, T + 2))
        k.I("v_mov_b32 v%d, 0x3f80" % (T + 3))
        k.I("v_mov_b32 v%d, 0x3f800000" % (T + 4))
        for p in range(8):
            base = 8 * (p >> 1) + 2 * (p & 1)
            k.I("v_cmp_eq_u32 vcc, %d, v%d" % (base, T + 2))
            k.I("v_cmp_eq_u32 s[48:49], %d, v%d" % (base + 1, T + 2))
            k.I("v_cndmask_b32 v%d, 0, v%d, vcc" % (IDN + p, T + 3))
            k.I("v_cndmask_b32 v%d, v%d, v%d, s[48:49]" % (IDN + p, IDN + p, T + 4))
        for i in range(12, 16):
            k.I("v_mov_b32 v%d, 0" % (EP + i))
            k.I("v_mov_b32 v%d, 0" % (EM + i))
    def k_reads(o, kk):
        b = (4 * o + kk) & 1
        hi, lo = (o % 4) >> 1, ((o % 4) & 1) * KSLOT
        x = XF + 8 * b
        k.I("ds_read_b128 v[%d:%d], v%d offset:%d" % (x, x + 3, vXR + 4 * hi + kk, lo))
        for e in range(2):
            for jj in range(2):
                x = WF + 8 * b + 4 * e + 2 * jj
                k.I("ds_read_b64_tr_b16 v[%d:%d], v%d offset:%d" % (x, x + 1, vWR + hi, lo + (16 * kk + 4 * jj) * 224 + 112 * e))
        return 5
    def k_mfmas(ks):
        b = ks & 1
        xf = vr(XF + 8 * b, 4)
        c = 0 if ks == 0 else None
        return [mfma(vr(AK, 16), vr(WF + 8 * b, 4), xf, c), mfma(vr(AV, 16), xf, vr(WF + 8 * b + 4, 4), c)]
    gemm(4, KSLOT, 4, k_reads, k_mfmas, k_setup)
    for ff in range(2):
        for jj in range(2):
            r = PHI + 4 * ff + 2 * jj
            k.I("ds_read_b64_tr_b16 v[%d:%d], v%d offset:%d" % (r, r + 1, vPH, (16 * ff + 8 * jj) * 56))
    KF, VF, FKP, FKM = 100, 108, 116, 124
    cvt8(k, KF, AK)
    exec_hi(k)
    for r in (KF + 6, KF + 7): k.I("v_mov_b32 v%d, 0" % r)
    k.I(EXEC_ALL)
    k.I("s_waitcnt lgkmcnt(0)")
    k.I(mfma(vr(AK, 16), vr(PHI, 4), vr(KF, 4), 0))
    k.I(mfma(vr(AK, 16), vr(PHI + 4, 4), vr(KF + 4, 4)))
    cvt8(k, VF, AV)
    exec_both(k, 0xf0000000)
    for i in range(8): k.I("v_mov_b32 v%d, v%d" % (VF + i, vPADV))
    k.I(EXEC_ALL)
    feature_map(k, AK, FKP, FKM, EP, EM, T, sL, True)
    k.I(mfma(vr(AK, 16), vr(FKP, 4), vr(IDN, 4), 0))
    k.I(mfma(vr(AK, 16), vr(FKP + 4, 4), vr(IDN + 4, 4)))
    k.I(mfma(vr(AV, 16), vr(FKM, 4), vr(IDN, 4), 0))
    k.I(mfma(vr(AV, 16), vr(FKM + 4, 4), vr(IDN + 4, 4)))
    k.I("s_lshl_b32 s%d, s%d, 13" % (sTMP, sW))
    k.I("v_add_u32 v%d, s%d, v%d" % (T, sTMP, vL16))
    k.I("""
    s_and_b32 s{m}, s{w}, 3
    s_lshl_b32 s{m}, s{m}, 11
    s_and_b32 s{tmp}, s{w}, 4
    s_lshl_b32 s{tmp}, s{tmp}, 13
    s_add_u32 s{tmp}, s{tmp}, s{m}
    v_add_u32 v{t1}, s{tmp}, v{l16}
    s_lshl_b32 s{tmp}, s{head}, 4
    s_add_u32 s{tmp}, s{tmp}, s{rb}
    s_lshl_b32 s{tmp}, s{tmp}, 13
    s_add_u32 s{tmp}, s{tmp}, s{m}
    s_add_u32 s{tmp}, s{tmp}, 0x{off:x}
    """.format(m=sM, w=sW, tmp=sTMP, t1=T + 1, l16=vL16, head=sHEAD, rb=sRB, off=KVP_OFF))
    cvt8(k, FKP, AK)
    k.I(mfma(vr(EP, 16), vr(FKP, 4), vr(VF, 4), 0))
    k.I(mfma(vr(EP, 16), vr(FKP + 4, 4), vr(VF + 4, 4)))
    cvt8(k, FKM, AV)
    k.I(mfma(vr(EM, 16), vr(FKM, 4), vr(VF, 4), 0))
    k.I(mfma(vr(EM, 16), vr(FKM + 4, 4), vr(VF + 4, 4)))
    for q in range(8):
        k.I("ds_write_b128 v%d, v[%d:%d] offset:%d" % (T, EP + 4 * q, EP + 4 * q + 3, 1024 * q))
    k.I("s_waitcnt lgkmcnt(0)")
    st()
    k.I("s_barrier")
    for w in range(4):
        for q in range(2):
            r = ACC + 8 * w + 4 * q
            k.I("ds_read_b128 v[%d:%d], v%d offset:%d" % (r, r + 3, T + 1, 8192 * w + 1024 * q))
    for w in range(1, 4):
        k.I("s_waitcnt lgkmcnt(%d)" % (6 - 2 * w))
        for q in range(4):
            k.I(pk("v_pk_add_f32", ACC + 2 * q, ACC + 2 * q, ACC + 8 * w + 2 * q))
    store4(ACC, sTMP, 0); store4(ACC + 4, sTMP, 1024)
    st.dump(S_WS)
    k.label("L1_end")
    k.I("s_endpgm")
    return k, dict(grid=256, block=512, lds=LDS, vgpr=192 if STAMP else 164, agpr=0, sgpr=102 if STAMP else 56)

def gen_k2():
    k = Kernel("attn_kernel")
    R = 4
    S_WS = 4
    sW, sHEAD, sTMP, sT, sU, sKVB, sP, sMASK, sPB, sPQ, sOA, sQA, sCNT = 8, 9, 10, 11, 12, 13, 14, 15, 17, 18, 19, 21, 16
    vL16 = 1
    Q = {"a": 4, "b": 12}
    S = {"a": 20, "b": 36}
    P = {"a": 52, "b": 60}
    O = {"a": 68, "b": 84}
    T = 100
    LKV, LPHI, LCNT = 16384, 20480, 22528
    def KR(i, f): return ar((i % R) * 16 + 4 * f, 4)
    def VR(i, f): return ar((i % R) * 16 + 8 + 4 * f, 4)
    k.I("""
    s_cmp_ge_u32 s2, 256
    s_cbranch_scc1 L2_end
    s_load_dwordx2 s[{ws0}:{ws1}], s[0:1], 72
    v_lshrrev_b32 v2, 6, v0
    v_and_b32 v1, 63, v0
    v_lshlrev_b32 v1, 4, v1
    v_readfirstlane_b32 s{w}, v2
    s_and_b32 s{head}, s2, 7
    s_lshl_b32 s{head}, s{head}, 1
    s_lshr_b32 s{tmp}, s2, 7
    s_add_u32 s{head}, s{head}, s{tmp}
    s_bfe_u32 s{t}, s2, 0x40003
    s_lshl_b32 s{t}, s{t}, 2
    s_mov_b32 s{ws2}, 0x{used:x}
    s_mov_b32 s{ws3}, 0x00020000
    s_cmp_ge_u32 s{w}, 4
    s_cbranch_scc1 L2_help
    s_lshr_b32 s{u}, s{w}, 1
    s_and_b32 s{tmp}, s{w}, 1
    s_lshl_b32 s{tmp}, s{tmp}, 1
    s_add_u32 s{t}, s{t}, s{tmp}
    s_add_u32 s{t}, s{t}, s{u}
    s_lshl_b32 s{tmp}, s{head}, 6
    s_add_u32 s{tmp}, s{t}, s{tmp}
    s_lshl_b32 s{tmp}, s{tmp}, 11
    s_add_u32 s{tmp}, s{tmp}, 0x{qoff:x}
    s_xor_b32 s{qa}, s{tmp}, 0x800
    s_lshl_b32 s{kvb}, s{head}, 18
    s_lshl_b32 s{p}, s{u}, 17
    s_add_u32 s{p}, s{kvb}, s{p}
    s_waitcnt lgkmcnt(0)
    """.format(w=sW, head=sHEAD, tmp=sTMP, u=sU, t=sT, kvb=sKVB, p=sP, qoff=Q_OFF, qa=sQA,
               ws0=S_WS, ws1=S_WS + 1, ws2=S_WS + 2, ws3=S_WS + 3, used=WS_USED))
    st = Stamper(k, 1, 4, 126); st.start()
    def ld(dst, soff, off):
        k.I("buffer_load_dwordx4 %s, v%d, s[%d:%d], s%d offen offset:%d" % (dst, vL16, S_WS, S_WS + 3, soff, off))
    ld(KR(3, 0), sKVB, 0); ld(KR(3, 1), sKVB, 1024)
    ld(vr(Q["a"], 4), sQA, 0); ld(vr(Q["a"] + 4, 4), sQA, 1024)
    ld(vr(Q["b"], 4), sTMP, 0); ld(vr(Q["b"] + 4, 4), sTMP, 1024)
    for j in range(3):
        ld(KR(j, 0), sP, 0); ld(KR(j, 1), sP, 1024); ld(VR(j, 0), sP, 2048); ld(VR(j, 1), sP, 3072)
        k.I("s_add_u32 s%d, s%d, 4096" % (sP, sP))
    for i in range(8): k.I("v_mov_b32 v%d, 0" % (P["b"] + i))
    for i in range(8): k.I("v_accvgpr_write_b32 a%d, 0" % (56 + i))
    for x in "ab": k.I(mfma(vr(O[x], 16), vr(P["b"], 4), vr(P["b"], 4), 0))
    k.I("s_barrier")
    k.I("""
    s_mov_b32 s{mask}, 0xffff0000
    s_lshl_b32 s{tmp}, s{t}, 4
    s_add_u32 s{tmp}, s{tmp}, s{head}
    s_lshl_b32 s{tmp}, s{tmp}, 11
    s_add_u32 s{oa}, s{tmp}, 0x{ooff:x}
    s_lshl_b32 s{tmp}, s{w}, 12
    v_add_u32 v3, s{tmp}, v1
    s_xor_b32 s{tmp}, s{tmp}, 0x2000
    v_add_u32 v2, s{tmp}, v1
    s_mov_b32 s{cnt}, 7
    """.format(head=sHEAD, tmp=sTMP, w=sW, t=sT, mask=sMASK, oa=sOA, ooff=O_OFF, cnt=sCNT))

    def qk(x, i):
        return [mfma(vr(S[x], 16), KR(i, 0), vr(Q[x], 4), 0), mfma(vr(S[x], 16), KR(i, 1), vr(Q[x] + 4, 4))]
    def pv(x, i):
        return [mfma(vr(O[x], 16), VR(i, 0), vr(P[x], 4)), mfma(vr(O[x], 16), VR(i, 1), vr(P[x] + 4, 4))]
    def phase(x, mf, after):
        def cv(n): return "v_cvt_pk_bf16_f32 v%d, v%d, v%d" % (P[x] + n, S[x] + 2 * n, S[x] + 2 * n + 1)
        def ex(n): return "v_exp_f32 v%d, v%d" % (S[x] + n, S[x] + n)
        for g in range(4):
            if mf[g] is not None: k.I(mf[g])
            if after[g] is not None: after[g]()
            k.I(ex(4 * g)); k.I(ex(4 * g + 1))
            if g > 0: k.I(cv(2 * g - 1))
            k.I(ex(4 * g + 2)); k.I(ex(4 * g + 3))
            k.I(cv(2 * g))
        k.I(cv(7))
    def bcast_hi(src, t0, t1):
        k.I("v_mov_b32 v%d, v%d" % (t0, src))
        k.I("v_mov_b32 v%d, v%d" % (t1, src))
        k.I("v_permlane32_swap_b32 v%d, v%d" % (t0, t1))
    def normalise(X, F, soff, eps):
        bcast_hi(X + 12, T, T + 2)
        if eps: k.I("v_add_f32 v%d, 0x%x, v%d" % (T + 2, f2u(1e-6), T + 2))
        k.I("v_rcp_f32 v%d, v%d" % (T + 2, T + 2))
        for i in range(8):
            k.I(pk("v_pk_mul_f32", X + 2 * i, X + 2 * i, T + 2, " op_sel_hi:[1,0]"))
        cvt8(k, F, X)
        exec_hi(k)
        k.I("v_mov_b32 v%d, 0" % (F + 6))
        k.I("v_mov_b32 v%d, 0" % (F + 7))
        k.I(EXEC_ALL)
        for f in range(2):
            k.I("buffer_store_dwordx4 v[%d:%d], v%d, s[%d:%d], s%d offen offset:%d%s" % (F + 4 * f, F + 4 * f + 3, vL16, S_WS, S_WS + 3, soff, 1024 * f, SC))

    st()
    k.I("s_waitcnt vmcnt(12)")
    st()
    for m in qk("a", 3) + qk("b", 3): k.I(m)
    ld(KR(3, 0), sP, 0)
    k.I("s_add_u32 s%d, s%d, %d" % (sP, sP, 2048 - 4096))
    for x, m in (("a", T), ("b", T + 4)):
        k.I("v_max3_f32 v%d, v%d, v%d, v%d" % (m, S[x], S[x] + 1, S[x] + 2))
        for i in range(3, 15, 2):
            k.I("v_max3_f32 v%d, v%d, v%d, v%d" % (m, m, S[x] + i, S[x] + i + 1))
        k.I("v_max_f32 v%d, v%d, v%d" % (m, m, S[x] + 15))
        xhalf(k, "v_max_f32", m, m + 1)
        k.I("v_add_f32 v%d, 0x%x, v%d" % (m, f2u(MOFF), m))
        neg_max_pieces(k, m, m + 1, m + 2, Q[x] + 6, Q[x] + 7, sMASK)
        if x == "a":
            k.I("s_waitcnt vmcnt(11)")
            for mm in qk("a", 0): k.I(mm)
    st()
    I = lambda t: (lambda: k.I(t))
    def tile(i, wait, loads, last=False, b1=None):
        L = [lambda: ld(KR(i + 3, 1), sP, 3072), lambda: ld(KR(i + 4, 0), sP, 2048), lambda: ld(VR(i + 3, 0), sP, 0), lambda: ld(VR(i + 3, 1), sP, 1024)]
        L = [f if u else None for f, u in zip(L, loads)]
        phase("a", qk("b", i) + pv("b", i - 1),
              [L[0], I("s_add_u32 s%d, s%d, 4096" % (sP, sP)) if any(loads) else None, L[1], I("s_waitcnt vmcnt(%d)" % wait)])
        if not last:
            phase("b", qk("a", i + 1) + pv("a", i), [L[2], b1, L[3], None])
        else:
            def send():
                for q in range(4):
                    k.I("ds_write_b128 v3, v[%d:%d] offset:%d" % (O["a"] + 4 * q, O["a"] + 4 * q + 3, 1024 * q))
            phase("b", pv("a", i) + [None, None], [None, None, None, send])
    k.label("L2_loop")
    for j in range(4):
        tile(j, 9, (1, 1, 1, 1), b1=I("s_sub_u32 s%d, s%d, 1" % (sCNT, sCNT)) if j == 3 else None)
    k.I("s_cmp_lg_u32 s%d, 0" % sCNT)
    k.I("s_cbranch_scc1 L2_loop")
    st()
    tile(28, 8, (1, 0, 1, 1)); tile(29, 6, (0, 0, 0, 0)); tile(30, 2, (0, 0, 0, 0)); tile(31, 0, (0, 0, 0, 0), last=True)
    for m in pv("b", 31): k.I(m)
    st()
    k.I("s_waitcnt lgkmcnt(0)")
    k.I("s_barrier")
    for q in range(4):
        k.I("ds_read_b128 v[%d:%d], v2 offset:%d" % (O["a"] + 4 * q, O["a"] + 4 * q + 3, 1024 * q))
    OB = O["b"]
    for q in range(4):
        k.I("s_waitcnt lgkmcnt(%d)" % (3 - q))
        k.I(pk("v_pk_add_f32", OB + 4 * q, OB + 4 * q, O["a"] + 4 * q))
        k.I(pk("v_pk_add_f32", OB + 4 * q + 2, OB + 4 * q + 2, O["a"] + 4 * q + 2))
    k.I("v_pk_mul_f32 v[%d:%d], v[%d:%d], 0" % (T, T + 1, OB, OB + 1))
    for i in range(1, 8):
        k.I("v_pk_fma_f32 v[%d:%d], v[%d:%d], 0, v[%d:%d]" % (T, T + 1, OB + 2 * i, OB + 2 * i + 1, T, T + 1))
    k.I("v_cmp_u_f32 vcc, v%d, v%d" % (T, T + 1))
    k.I("s_cbranch_vccnz L2_slow")
    k.label("L2_norm")
    normalise(OB, P["a"], sOA, False)
    st.dump(S_WS)
    k.label("L2_end")
    k.I("s_endpgm")

    k.label("L2_help")
    HM = opt("hmode", 0)
    if HM == 1: k.I("s_endpgm")
    PART = 4
    NP, NM, PQ, FQ = 12, 28, 44, 60
    FB, EP, EM = 76, 84, 112
    KVF, PHI, QB = 0, 16, 24
    SWO, SPHI, sL = 24, 28, 32
    k.I("""
    s_and_b32 s3, s2, 4
    s_lshl_b32 s3, s3, 3
    s_add_u32 s3, s3, 16
    s_load_dwordx2 s[22:23], s[0:1], s3
    s_load_dwordx2 s[20:21], s[0:1], 40
    v_mov_b32 v{a}, {lcnt}
    v_mov_b32 v{b}, 0
    ds_write_b32 v{a}, v{b}
    s_and_b32 s{w}, s{w}, 3
    s_add_u32 s{t}, s{t}, s{w}
    s_lshl_b32 s{tmp}, s{head}, 6
    s_add_u32 s{tmp}, s{t}, s{tmp}
    s_lshl_b32 s{pq}, s{tmp}, 11
    s_add_u32 s{pq}, s{pq}, 0x{qbo:x}
    s_lshl_b32 s{pb}, s{head}, 17
    s_lshl_b32 s{tmp}, s{w}, 11
    s_add_u32 s{pb}, s{pb}, s{tmp}
    s_add_u32 s{pb}, s{pb}, 0x{kvp:x}
    s_mov_b32 s{l0}, 0x{lg:x}
    s_mov_b32 s{l1}, 0x{lg:x}
    s_lshl_b32 s{tmp}, s{t}, 4
    s_add_u32 s{tmp}, s{tmp}, s{head}
    s_lshl_b32 s{tmp}, s{tmp}, 11
    s_add_u32 s{oa}, s{tmp}, 0x{ooffb:x}
    s_add_u32 s{qa}, s{tmp}, 0x{ooff:x}
    s_lshl_b32 s{tmp}, s{w}, 10
    v_add_u32 v2, s{tmp}, v1
    v_lshrrev_b32 v{a}, 9, v1
    v_bfe_u32 v{b}, v1, 6, 2
    v_lshl_add_u32 v{a}, v{a}, 2, v{b}
    v_mul_u32_u24 v{a}, 56, v{a}
    v_bfe_u32 v{b}, v1, 8, 1
    v_lshl_add_u32 v{a}, v{b}, 5, v{a}
    v_bfe_u32 v{b}, v1, 4, 2
    v_lshl_add_u32 v3, v{b}, 3, v{a}
    s_lshr_b32 s{tmp}, s2, 3
    s_lshl_b32 s{tmp}, s{tmp}, 2
    s_add_u32 s{tmp}, s{tmp}, s{w}
    s_mul_i32 s3, s{tmp}, 3200
    v_lshlrev_b32 v{x}, 3, v1
    v_mov_b32 v{y}, 0x40000000
    v_cmp_gt_u32 vcc, 3200, v{x}
    s_and_b32 s16, s{w}, 1
    s_lshl_b32 s16, s16, 10
    v_cndmask_b32 v{x}, v{y}, v{x}, vcc
    s_add_u32 m0, s16, {lphi}
    s_mul_i32 s{tmp}, s{head}, 1568
    s_add_u32 s16, s16, s{tmp}
    s_setprio {prio}
    s_waitcnt lgkmcnt(0)
    s_barrier
    """.format(pb=sPB, head=sHEAD, tmp=sTMP, w=sW, kvp=KVP_OFF, t=sT, pq=sPQ, qbo=QB_OFF, oa=sOA, ooffb=O_OFF + (2 << 20), qa=sKVB, ooff=O_OFF,
               a=T, b=T + 1, x=T + 10, y=T + 11, l0=sL, l1=sL + 1, lg=f2u(LOG2E), lphi=LPHI, prio=opt("hprio", 1), lcnt=LCNT))
    srd(k, SWO, 22, 23, 448 * 896)
    srd(k, SPHI, 20, 21, 16 * 1568)
    k.I("buffer_load_dwordx4 v%d, s[%d:%d], s16 offen lds" % (vL16, SPHI, SPHI + 3))
    for f in range(2): ld(ar(QB + 4 * f, 4), sPQ, 1024 * f)
    def pload(blk, pos):
        for q in range(2): ld(vr(PART + 8 * pos + 4 * q, 4), sPB, 1024 * q)
        k.I("s_add_u32 s%d, s%d, 8192" % (sPB, sPB))
    DEPTH = opt("hdepth", 1)
    pos = lambda blk: 0 if blk == 0 else 1 + (blk - 1) % 8
    BAT = opt("hbat", 1)
    nb = 16 // BAT
    for blk in range(BAT): pload(blk, pos(blk))
    for i in range(12, 16):
        k.I("v_mov_b32 v%d, 0" % (EP + i))
        k.I("v_mov_b32 v%d, 0" % (EM + i))
    for bt in range(nb):
        if DEPTH and bt + 1 < nb:
            for blk in range(BAT * (bt + 1), BAT * (bt + 2)): pload(blk, pos(blk))
        k.I("s_waitcnt vmcnt(%d)" % (2 * BAT if (DEPTH and bt + 1 < nb) else 0))
        for blk in range(max(BAT * bt, 1), BAT * (bt + 1)):
            for q in range(4):
                k.I(pk("v_pk_add_f32", PART + 2 * q, PART + 2 * q, PART + 8 * pos(blk) + 2 * q))
        if not DEPTH and bt + 1 < nb:
            for blk in range(BAT * (bt + 1), BAT * (bt + 2)): pload(blk, pos(blk))
    for q in range(4):
        k.I("v_cvt_pk_bf16_f32 v%d, v%d, v%d" % (T + q, PART + 2 * q, PART + 2 * q + 1))
    exec_both(k, 0x20000000)
    for q in range(4): k.I("v_mov_b32 v%d, 0x3f803f80" % (T + q))
    k.I(EXEC_ALL)
    k.I("ds_write_b128 v2, v[%d:%d] offset:%d" % (T, T + 3, LKV))
    if opt("wopf", 1):
        k.I("buffer_load_dword v%d, v%d, s[%d:%d], s3 offen" % (T + 11, T + 10, SWO, SWO + 3))
    k.I("""
    v_mov_b32 v{a}, {lcnt}
    v_mov_b32 v{b}, 1
    s_mov_b64 exec, 1
    s_waitcnt lgkmcnt(0)
    ds_add_u32 v{a}, v{b}
    L2_poll:
    ds_read_b32 v{b}, v{a}
    s_waitcnt lgkmcnt(0)
    v_cmp_ne_u32 vcc, 4, v{b}
    s_cbranch_vccnz L2_poll
    s_mov_b64 exec, -1
    """.format(a=T + 4, b=T + 5, lcnt=LCNT))
    for ff in range(2):
        for jj in range(2):
            r = PHI + 4 * ff + 2 * jj
            k.I("ds_read_b64_tr_b16 a[%d:%d], v3 offset:%d" % (r, r + 1, LPHI + (16 * ff + 8 * jj) * 56))
    for f in range(4):
        k.I("ds_read_b128 a[%d:%d], v%d offset:%d" % (KVF + 4 * f, KVF + 4 * f + 3, vL16, LKV + 1024 * f))
    if HM == 3: k.I("s_endpgm")
    k.I("s_setprio %d" % opt("hprio2", 1))
    k.I("s_waitcnt lgkmcnt(4)")
    k.I(mfma(vr(PQ, 16), ar(PHI, 4), ar(QB, 4), 0))
    k.I(mfma(vr(PQ, 16), ar(PHI + 4, 4), ar(QB + 4, 4)))
    feature_map(k, PQ, FQ, FQ + 8, EP, EM, T, sL, False)
    k.I("s_waitcnt lgkmcnt(0)")
    for f in range(4):
        k.I(mfma(vr(NP if f < 2 else NM, 16), ar(KVF + 4 * f, 4), vr(FQ + 4 * f, 4), 0 if f % 2 == 0 else None))
    bcast_hi(NP + 13, T, T + 2)
    bcast_hi(NM + 13, T + 1, T + 4)
    k.I("v_rcp_f32 v%d, v%d" % (T + 2, T + 2))
    k.I("v_rcp_f32 v%d, v%d" % (T + 4, T + 4))
    for i in range(8):
        k.I(pk("v_pk_mul_f32", NP + 2 * i, NP + 2 * i, T + 2, " op_sel_hi:[1,0]"))
    for i in range(8):
        k.I("v_pk_fma_f32 v[%d:%d], v[%d:%d], v[%d:%d], v[%d:%d] op_sel_hi:[1,0,1]" %
            (NP + 2 * i, NP + 2 * i + 1, NM + 2 * i, NM + 2 * i + 1, T + 4, T + 5, NP + 2 * i, NP + 2 * i + 1))
    normalise(NP, FB, sOA, True)
    k.I("s_endpgm")

    k.label("L2_slow")
    SS, QQ = S["b"], Q["b"]
    exec_hi(k)
    k.I("v_mov_b32 v%d, 0" % (QQ + 6))
    k.I("v_mov_b32 v%d, 0" % (QQ + 7))
    k.I(EXEC_ALL)
    k.I("v_mov_b32 v%d, 0xff800000" % T)
    k.I("s_mov_b32 s%d, s%d" % (sP, sKVB))
    k.I("s_add_u32 s%d, s%d, 0x40000" % (sTMP, sKVB))
    k.label("L2_slow1")
    ld(ar(0, 4), sP, 0); ld(ar(4, 4), sP, 1024)
    k.I("s_waitcnt vmcnt(0)")
    k.I(mfma(vr(SS, 16), ar(0, 4), vr(QQ, 4), 0))
    k.I(mfma(vr(SS, 16), ar(4, 4), vr(QQ + 4, 4)))
    for i in range(0, 16, 2):
        k.I("v_max3_f32 v%d, v%d, v%d, v%d" % (T, T, SS + i, SS + i + 1))
    k.I("s_add_u32 s%d, s%d, 4096" % (sP, sP))
    k.I("s_cmp_lt_u32 s%d, s%d" % (sP, sTMP))
    k.I("s_cbranch_scc1 L2_slow1")
    xhalf(k, "v_max_f32", T, T + 1)
    neg_max_pieces(k, T, T + 1, T + 2, QQ + 6, QQ + 7, sMASK)
    for i in range(16): k.I("v_mov_b32 v%d, 0" % (OB + i))
    k.I("s_mov_b32 s%d, s%d" % (sP, sKVB))
    k.label("L2_slow2")
    for f in range(4): ld(ar(4 * f, 4), sP, 1024 * f)
    k.I("s_waitcnt vmcnt(0)")
    k.I(mfma(vr(SS, 16), ar(0, 4), vr(QQ, 4), 0))
    k.I(mfma(vr(SS, 16), ar(4, 4), vr(QQ + 4, 4)))
    for i in range(16): k.I("v_exp_f32 v%d, v%d" % (SS + i, SS + i))
    cvt8(k, P["a"], SS)
    k.I(mfma(vr(OB, 16), ar(8, 4), vr(P["a"], 4)))
    k.I(mfma(vr(OB, 16), ar(12, 4), vr(P["a"] + 4, 4)))
    k.I("s_add_u32 s%d, s%d, 4096" % (sP, sP))
    k.I("s_cmp_lt_u32 s%d, s%d" % (sP, sTMP))
    k.I("s_cbranch_scc1 L2_slow2")
    k.I("s_nop 7\ns_nop 7")
    k.I("s_branch L2_norm")
    return k, dict(grid=256, block=512, lds=LCNT + 64, vgpr=128, agpr=opt("k2agpr", 128), sgpr=102 if STAMP else 40)

def gen_k3():
    k = Kernel("oproj_kernel")
    S_WO, S_WS, S_OUT = 8, 12, 16
    sW, sBR, sRB, sCG, sTMP, sWO, sO, sM = 20, 21, 22, 23, 24, 25, 26, 27
    vL, vL16, vWD, vWR, vWR1, vST = 1, 2, 3, 4, 5, 6
    ACC = (16, 32)
    WF = 48
    T = 80
    NR = 480
    vm = VmQueue(k)
    k.I("""
    s_cmp_ge_u32 s2, 224
    s_cbranch_scc1 L3_end
    s_and_b32 s3, s2, 7
    s_lshr_b32 s{br}, s3, 2
    s_lshl_b32 s{tmp}, s{br}, 5
    s_add_u32 s{tmp}, s{tmp}, 16
    s_load_dwordx2 s[4:5], s[0:1], s{tmp}
    s_load_dwordx2 s[6:7], s[0:1], 72
    s_load_dwordx2 s[0:1], s[0:1], 56
    v_lshrrev_b32 v2, 6, v0
    v_and_b32 v{l}, 63, v0
    v_readfirstlane_b32 s{w}, v2
    v_lshlrev_b32 v{l16}, 4, v{l}
    v_lshrrev_b32 v{a}, 3, v{l}
    v_mul_u32_u24 v{a}, 896, v{a}
    v_and_b32 v{b}, 7, v{l}
    v_bfe_u32 v{c}, v{l}, 4, 1
    v_lshlrev_b32 v{c}, 2, v{c}
    v_xor_b32 v{b}, v{b}, v{c}
    v_lshl_add_u32 v{wd}, v{b}, 4, v{a}
    s_and_b32 s{rb}, s3, 3
    s_lshl_b32 s{rb}, s{rb}, 2
    s_bfe_u32 s{tmp}, s2, 0x20003
    s_add_u32 s{rb}, s{rb}, s{tmp}
    s_lshr_b32 s{cg}, s2, 5
    s_mul_i32 s{wo}, s{w}, {r8}
    s_lshl_b32 s{m}, s{w}, 10
    s_lshl_b32 s{tmp}, s{cg}, 7
    s_add_u32 s{wo}, s{wo}, s{tmp}
    s_lshl_b32 s{o}, s{br}, 6
    s_lshl_b32 s{rb}, s{rb}, 2
    s_add_u32 s{rb}, s{rb}, s{w}
    s_add_u32 s{o}, s{o}, s{rb}
    s_lshl_b32 s{o}, s{o}, 15
    s_add_u32 s{o}, s{o}, 0x{ooff:x}
    s_waitcnt lgkmcnt(0)
    """.format(br=sBR, tmp=sTMP, l=vL, w=sW, l16=vL16, a=T, b=T + 1, c=T + 2, wd=vWD, rb=sRB, cg=sCG, wo=sWO, m=sM, r8=8 * 896,
               o=sO, ooff=O_OFF))
    st = Stamper(k, 2, 4, 94); st.start()
    srd(k, S_WO, 4, 5, 448 * 896)
    srd(k, S_WS, 6, 7, WS_USED)
    def wdma(n):
        k.I("s_add_u32 m0, s%d, %d" % (sM, n * 4096))
        k.I("s_add_u32 s%d, s%d, %d" % (sTMP, sWO, n * 32 * 896))
        k.I("buffer_load_dwordx4 v%d, s[%d:%d], s%d offen lds" % (vWD, S_WO, S_WO + 3, sTMP))
        vm.add("w%d" % n)
    def oload(h, f):
        if h % 2 == 0 and f == 0:
            k.I("s_add_u32 s%d, s%d, %d" % (28, sO, h * 2048))
        k.I("buffer_load_dwordx4 a[%d:%d], v%d, s[%d:%d], s28 offen offset:%d" % (8 * h + 4 * f, 8 * h + 4 * f + 3, vL16, S_WS, S_WS + 3, (h % 2) * 2048 + 1024 * f))
        vm.add("o%d" % h)
    AHEAD = opt("ahead", 5)
    wneed = lambda h: (28 * h + 31) // 32
    nextw = 0
    def issue_head(h):
        nonlocal nextw
        L = []
        while nextw <= wneed(h):
            L.append(lambda n=nextw: wdma(n)); nextw += 1
        L.append(lambda: oload(h, 0)); L.append(lambda: oload(h, 1))
        return L
    for h in range(AHEAD):
        for f in issue_head(h): f()
    srd(k, S_OUT, 0, 1, 2048 * 1792)
    k.I("""
    v_lshrrev_b32 v{h}, 5, v{l}
    v_lshlrev_b32 v{wr}, 9, v{h}
    v_bfe_u32 v{c}, v{l}, 2, 2
    v_lshl_add_u32 v{wr}, v{c}, 7, v{wr}
    v_bfe_u32 v{c}, v{l}, 3, 1
    v_lshl_add_u32 v{wr}, v{c}, 6, v{wr}
    v_bfe_u32 v{c}, v{l}, 4, 1
    v_lshl_add_u32 v{wr}, v{c}, 5, v{wr}
    v_and_b32 v{c}, 3, v{l}
    v_lshl_add_u32 v{wr}, v{c}, 3, v{wr}
    v_xor_b32 v{wr1}, 64, v{wr}
    v_and_b32 v{c}, 31, v{l}
    v_mul_u32_u24 v{c}, 1792, v{c}
    v_lshl_add_u32 v{st}, v{h}, 4, v{c}
    s_mul_i32 s{rb}, s{rb}, {r32}
    s_mul_i32 s{tmp}, s{br}, 896
    s_add_u32 s{rb}, s{rb}, s{tmp}
    s_lshl_b32 s{tmp}, s{cg}, 7
    s_add_u32 s{rb}, s{rb}, s{tmp}
    """.format(h=T, c=T + 1, l=vL, wr=vWR, wr1=vWR1, st=vST, rb=sRB, r32=32 * 1792, tmp=sTMP, br=sBR, cg=sCG))
    def wread(h):
        b = WF + 16 * (h & 1)
        for f in range(2):
            for c in range(2):
                for jj in range(2):
                    r = b + 8 * c + 4 * f + 2 * jj
                    k.I("ds_read_b64_tr_b16 v[%d:%d], v%d offset:%d" % (r, r + 1, vWR1 if c else vWR, (28 * h + 16 * f + 8 * jj) * 128))
    SYNC = opt("sync", 2)
    def sync(h):
        vm.wait(["w%d" % wneed(min(h + SYNC - 1, 15))])
        k.I("s_barrier")
    st()
    sync(0); st(); wread(0)
    for h in range(16):
        nl = 0
        if h + 1 < 16:
            if (h + 1) % SYNC == 0:
                sync(h + 1)
                if (h + 1) % 4 == 0: st()
            wread(h + 1); nl = 8
        vm.wait(["o%d" % h])
        k.I("s_waitcnt lgkmcnt(%d)" % nl)
        pend = issue_head(h + AHEAD) if h + AHEAD < 16 else []
        b = WF + 16 * (h & 1)
        for f in range(2):
            for c in range(2):
                k.I(mfma(vr(ACC[c], 16), vr(b + 8 * c + 4 * f, 4), ar(8 * h + 4 * f, 4), 0 if (h == 0 and f == 0) else None))
                if pend: pend.pop(0)()
        assert not pend
    st()
    for c in range(2):
        F = WF + 8 * c
        cvt8(k, F, ACC[c])
        for gp in range(2):
            k.I("v_permlane32_swap_b32 v%d, v%d" % (F + 4 * gp, F + 4 * gp + 2))
            k.I("v_permlane32_swap_b32 v%d, v%d" % (F + 4 * gp + 1, F + 4 * gp + 3))
            k.I("buffer_store_dwordx4 v[%d:%d], v%d, s[%d:%d], s%d offen offset:%d" % (F + 4 * gp, F + 4 * gp + 3, vST, S_OUT, S_OUT + 3, sRB, 64 * c + 32 * gp) + ["", " sc1", " sc0 sc1", " nt", " sc1 nt"][opt("osc", 0)])
    st.dump(S_WS)
    k.label("L3_end")
    k.I("s_endpgm")
    return k, dict(grid=224, block=256, lds=NR * 128, vgpr=96, agpr=128, sgpr=102 if STAMP else 32)

HEADER = open("cdna_kernels/%s.s.ref" % NAME).read().split("; Override launch geometry")[0]

def build(kernels):
    out = [HEADER.rstrip("\n")]
    for k, cfg in kernels:
        out.append("; @launch kernel=%s grid=(%d,1,1) block=(%d,1,1) lds=%d" % (k.name, cfg["grid"], cfg["block"], cfg["lds"]))
    out.append('.amdgcn_target "amdgcn-amd-amdhsa--gfx950"')
    out.append(".text")
    for k, cfg in kernels:
        k.fix_hazards(verbose=("-v" in sys.argv))
        out += [".globl %s" % k.name, ".p2align %d" % opt("kalign", 12), ".type %s,@function" % k.name, "%s:" % k.name, k.text()]
    out.append('.section .rodata,"a"')
    for k, cfg in kernels:
        acc = (cfg["vgpr"] + 3) // 4 * 4
        out += [".p2align 6", ".amdhsa_kernel %s" % k.name,
                "  .amdhsa_next_free_vgpr %d" % (acc + cfg["agpr"] if cfg["agpr"] else cfg["vgpr"]),
                "  .amdhsa_next_free_sgpr %d" % cfg["sgpr"],
                "  .amdhsa_accum_offset %d" % acc,
                "  .amdhsa_group_segment_fixed_size 0",
                "  .amdhsa_kernarg_size 80",
                "  .amdhsa_user_sgpr_count 2",
                "  .amdhsa_user_sgpr_kernarg_segment_ptr 1",
                "  .amdhsa_system_sgpr_workgroup_id_x 1",
                ".end_amdhsa_kernel"]
    return "\n".join(out) + "\n"

if __name__ == "__main__":
    txt = build([gen_k1(), gen_k2(), gen_k3()])
    path = "cdna_kernels/%s.s" % NAME
    for a in sys.argv[1:]:
        if a.endswith(".s"): path = a
    open(path, "w").write(txt)
    print("wrote", path, len(txt), "bytes")
```

```python
import sys, struct
from asmlib import Kernel, vr, ar, sr

NAME = "concat_heads__mha_block__linear_kernel_hedgehog__prompt"
def f2u(x): return struct.unpack("<I", struct.pack("<f", x))[0]
def opt(name, default):
    for a in sys.argv[1:]:
        if a.startswith(name + "="): return int(a.split("=")[1])
    return default

KV_OFF   = 0
Q_OFF    = 4 << 20
QB_OFF   = 6 << 20
KVP_OFF  = 8 << 20
O_OFF    = 10 << 20
WS_USED  = 14 << 20

LOG2E = 1.4426950408889634
QSCALE = 28 ** -0.5 * LOG2E
MOFF = 40.0
ROUND_PQ = opt("round", 0)
ROT = opt("rot", 1)
SC = ["", " sc1", " sc0 sc1", " nt", " sc1 nt"][opt("sc", 1)]

STAMP = "-stamp" in sys.argv
STAMP_OFF = 16 << 20
class Stamper:
    def __init__(self, k, kidx, nwaves, va):
        self.k, self.kidx, self.n, self.nw, self.va = k, kidx, 0, nwaves, va
    def start(self):
        if not STAMP: return
        self.k.I("s_memrealtime s[96:97]")
        self.k.I("s_mov_b32 s98, s2")
        self.k.I("v_mov_b32 v%d, v0" % (self.va + 1))
        self()
    def __call__(self):
        if not STAMP: return
        self.k.I("s_memtime s[%d:%d]" % (64 + 2 * self.n, 65 + 2 * self.n)); self.n += 1
        assert self.n <= 15
    def dump(self, S_WS):
        if not STAMP: return
        k, a, b = self.k, self.va, self.va + 1
        sv = self.n
        self()
        k.I("s_waitcnt vmcnt(0)")
        self()
        k.I("s_memrealtime s[94:95]")
        k.I("s_waitcnt lgkmcnt(0)")
        k.I("s_sub_u32 s94, s94, s96")
        k.I("s_mov_b32 s%d, 0x2000000" % (S_WS + 2))
        k.I("v_lshrrev_b32 v%d, 6, v%d" % (b, b))
        k.I("s_mul_i32 s98, s98, %d" % self.nw)
        k.I("v_add_u32 v%d, s98, v%d" % (b, b))
        k.I("v_lshlrev_b32 v%d, 6, v%d" % (b, b))
        k.I("s_mov_b32 s98, 0x%x" % (STAMP_OFF + (self.kidx << 20)))
        k.I("s_mov_b64 exec, 1")
        for i in range(15):
            k.I(("s_sub_u32 s99, s%d, s64" % (64 + 2 * i) if i else "s_mov_b32 s99, s96") if i < self.n else "s_mov_b32 s99, 0")
            k.I("v_mov_b32 v%d, s99" % a)
            k.I("buffer_store_dword v%d, v%d, s[%d:%d], s98 offen offset:%d" % (a, b, S_WS, S_WS + 3, 4 * i))
        k.I("v_mov_b32 v%d, s94" % a)
        k.I("buffer_store_dword v%d, v%d, s[%d:%d], s98 offen offset:60" % (a, b, S_WS, S_WS + 3))
        self.n = sv

MF = "v_mfma_f32_32x32x16_bf16"
def mfma(d, a, b, c=None):
    return "%s %s, %s, %s, %s" % (MF, d, a, b, d if c is None else "0")

EXEC_ALL = "s_mov_b64 exec, -1"
EXEC_LO = "s_mov_b64 exec, 0xffffffff"
def exec_hi(k): k.I("s_mov_b32 exec_lo, 0\ns_mov_b32 exec_hi, -1")
def exec_both(k, m): k.I("s_mov_b32 exec_lo, 0x%x\ns_mov_b32 exec_hi, 0x%x" % (m, m))

def srd(k, s, lo, hi, nbytes):
    k.I("s_mov_b32 s%d, s%d" % (s, lo))
    k.I("s_mov_b32 s%d, s%d" % (s + 1, hi))
    k.I("s_mov_b32 s%d, 0x%x" % (s + 2, nbytes))
    k.I("s_mov_b32 s%d, 0x00020000" % (s + 3))

def cvt8(k, dst, src):
    for i in range(8):
        k.I("v_cvt_pk_bf16_f32 v%d, v%d, v%d" % (dst + i, src + 2 * i, src + 2 * i + 1))
def pk(op, d, a, b, mods=""):
    return "%s v[%d:%d], v[%d:%d], v[%d:%d]%s" % (op, d, d + 1, a, a + 1, b, b + 1, mods)

def xhalf(k, op, x, t):
    k.I("v_mov_b32 v%d, v%d" % (t, x))
    k.I("v_permlane32_swap_b32 v%d, v%d" % (x, t))
    k.I("%s v%d, v%d, v%d" % (op, x, x, t))

def neg_max_pieces(k, m, t0, t1, d6, d7, s_mask):
    k.I("v_and_b32 v%d, s%d, v%d" % (t0, s_mask, m))
    k.I("v_sub_f32 v%d, v%d, v%d" % (m, m, t0))
    k.I("v_and_b32 v%d, s%d, v%d" % (t1, s_mask, m))
    k.I("v_sub_f32 v%d, v%d, v%d" % (m, m, t1))
    exec_hi(k)
    k.I("v_cvt_pk_bf16_f32 v%d, -v%d, -v%d" % (d6, t0, t1))
    k.I("v_cvt_pk_bf16_f32 v%d, -v%d, 0" % (d7, m))
    k.I(EXEC_ALL)

_cp = [0]
def code_prefetch(k, s0, vt, vlane, swave, start, end, nwaves):
    _cp[0] += 1
    lab = "Lcp%d" % _cp[0]
    k.I("s_getpc_b64 s[%d:%d]" % (s0, s0 + 1))
    k.label(lab)
    k.I("s_add_u32 s%d, s%d, %s-%s" % (s0, s0, start, lab))
    k.I("s_addc_u32 s%d, s%d, %s" % (s0 + 1, s0 + 1, "0"))
    k.I("s_mov_b32 s%d, %s-%s" % (s0 + 2, end, start))
    k.I("s_mov_b32 s%d, 0x00020000" % (s0 + 3))
    k.I("v_mul_u32_u24 v%d, %d, v%d" % (vt, 128 * nwaves, vlane))
    k.I("s_lshl_b32 s%d, s%d, 7" % (s0 + 4, swave))
    k.I("buffer_load_dword v%d, v%d, s[%d:%d], s%d offen" % (vt, vt, s0, s0 + 3, s0 + 4))

class VmQueue:
    def __init__(self, k): self.k, self.q = k, []
    def add(self, tag): self.q.append(tag)
    def count_for(self, tags):
        idx = max(i for i, t in enumerate(self.q) if t in tags)
        return len(self.q) - 1 - idx
    def wait(self, tags):
        n = self.count_for(tags)
        assert n <= 63
        self.k.I("s_waitcnt vmcnt(%d)" % n)

def feature_map(k, D, FP, FM, EP, EM, T, sL, norm):
    MX, MN, TT = T, T + 2, T + 4
    for (op3, op2, r) in (("v_max3_f32", "v_max_f32", MX), ("v_min3_f32", "v_min_f32", MN)):
        k.I("%s v%d, v%d, v%d, v%d" % (op3, r, D, D + 1, D + 2))
        for i in range(3, 11, 2):
            k.I("%s v%d, v%d, v%d, v%d" % (op3, r, r, D + i, D + i + 1))
        k.I("%s v%d, v%d, v%d" % (op2, r, r, D + 11))
    k.I(EXEC_LO)
    for (op3, r) in (("v_max3_f32", MX), ("v_min3_f32", MN)):
        k.I("%s v%d, v%d, v%d, v%d" % (op3, r, r, D + 12, D + 13))
        k.I("%s v%d, v%d, v%d, v%d" % (op3, r, r, D + 14, D + 15))
    k.I(EXEC_ALL)
    k.I("v_mov_b32 v%d, v%d" % (TT, MX))
    k.I("v_mov_b32 v%d, v%d" % (TT + 1, MN))
    k.I("v_permlane32_swap_b32 v%d, v%d" % (MX, TT))
    k.I("v_permlane32_swap_b32 v%d, v%d" % (MN, TT + 1))
    k.I("v_max_f32 v%d, v%d, v%d" % (MX, MX, TT))
    k.I("v_min_f32 v%d, v%d, v%d" % (MN, MN, TT + 1))
    k.I("v_mul_f32 v%d, s%d, v%d" % (MX, sL, MX))
    k.I("v_mul_f32 v%d, s%d, v%d" % (MN, sL, MN))
    def args(i):
        k.I("v_pk_fma_f32 v[%d:%d], v[%d:%d], s[%d:%d], v[%d:%d] op_sel_hi:[1,1,0] neg_lo:[0,0,1] neg_hi:[0,0,1]" %
            (EP + 2 * i, EP + 2 * i + 1, D + 2 * i, D + 2 * i + 1, sL, sL + 1, MX, MX + 1))
        k.I("v_pk_fma_f32 v[%d:%d], v[%d:%d], s[%d:%d], v[%d:%d] op_sel_hi:[1,1,0] neg_lo:[1,0,0] neg_hi:[1,0,0]" %
            (EM + 2 * i, EM + 2 * i + 1, D + 2 * i, D + 2 * i + 1, sL, sL + 1, MN, MN + 1))
    def exps(lo, hi):
        for i in range(lo, hi):
            k.I("v_exp_f32 v%d, v%d" % (EP + i, EP + i))
            k.I("v_exp_f32 v%d, v%d" % (EM + i, EM + i))
    for i in range(6): args(i)
    k.I(EXEC_LO)
    args(6); args(7); exps(12, 16)
    k.I(EXEC_ALL)
    exps(0, 12)
    if norm:
        for (E, r) in ((EP, MX), (EM, MN)):
            k.I(pk("v_pk_add_f32", r, E + 12, E + 14))
            for i in range(6):
                k.I(pk("v_pk_add_f32", r, r, E + 2 * i))
            k.I("v_add_f32 v%d, v%d, v%d" % (r, r, r + 1))
        k.I("v_mov_b32 v%d, v%d" % (TT, MX))
        k.I("v_mov_b32 v%d, v%d" % (TT + 1, MN))
        k.I("v_permlane32_swap_b32 v%d, v%d" % (MX, TT))
        k.I("v_permlane32_swap_b32 v%d, v%d" % (MN, TT + 1))
        k.I("v_add_f32 v%d, v%d, v%d" % (MX, MX, TT))
        k.I("v_add_f32 v%d, v%d, v%d" % (MN, MN, TT + 1))
        k.I("v_rcp_f32 v%d, v%d" % (MX, MX))
        k.I("v_rcp_f32 v%d, v%d" % (MN, MN))
        for (E, r, F) in ((EP, MX, FP), (EM, MN, FM)):
            for i in range(8):
                k.I(pk("v_pk_mul_f32", E + 2 * i, E + 2 * i, r, " op_sel_hi:[1,0]"))
            cvt8(k, F, E)
    else:
        cvt8(k, FP, EP); cvt8(k, FM, EM)

def gen_k1():
    k = Kernel("qkv_kernel")
    OOB = 0x40000000
    PSLOT, PX, PSCR = 48128, 28672, 45056
    KSLOT, KX, KPHI = 32768, 16384, 131072
    LDS = 3 * PSLOT
    S_SRC, S_WS, S_PHI = 12, 16, 20
    sW, sIDX, sG, sRB, sTMP, sM, sROT, sKB = 24, 25, 26, 27, 28, 29, 30, 31
    sSOF, sSTEP, sB1, sB2, sCUR, sL, sHEAD, sDST = 32, 33, 34, 35, 36, 54, 40, 41
    sC, sP6, sP7, sDSH = 42, 44, 45, 46
    vL, vL16, vD = 1, 2, 3
    vXR, vWR = 10, 22
    vPADV, vPH = 25, 26
    T = 28
    ACC = 36
    XF, WF = 100, 116
    k.I("""
    s_cmp_ge_u32 s2, 256
    s_cbranch_scc1 L1_end
    s_bfe_u32 s3, s2, 0x20003
    s_lshr_b32 s{tmp}, s2, 5
    s_and_b32 s{tmp}, s{tmp}, 4
    s_or_b32 s3, s3, s{tmp}
    s_cmp_ge_u32 s3, 3
    s_cselect_b32 s{tmp}, 24, 0
    s_load_dwordx4 s[4:7], s[0:1], s{tmp}
    s_load_dwordx2 s[8:9], s[0:1], 72
    s_load_dwordx2 s[10:11], s[0:1], 40
    v_lshrrev_b32 v2, 6, v0
    v_and_b32 v{l}, 63, v0
    v_readfirstlane_b32 s{w}, v2
    s_bfe_u32 s{rb}, s2, 0x20001
    s_lshl_b32 s{rb}, s{rb}, 2
    s_bfe_u32 s{idx}, s2, 0x20005
    s_add_u32 s{rb}, s{rb}, s{idx}
    s_and_b32 s{idx}, s2, 1
    """.format(tmp=sTMP, l=vL, w=sW, idx=sIDX, rb=sRB))
    st = Stamper(k, 0, 8, 166); st.start()
    k.I("v_lshlrev_b32 v%d, 4, v%d" % (vL16, vL))
    TOUCH = opt("touch", 0)
    if TOUCH:
        k.I("s_cmp_eq_u32 s%d, 8" % sW)
        k.I("s_cbranch_scc1 L1_touch")
    k.I("s_cmp_ge_u32 s3, 4")
    k.I("s_cbranch_scc1 L1_kv")

    def x_voffsets():
        k.I("""
        v_lshrrev_b32 v{a}, 3, v{l}
        v_mul_u32_u24 v{a}, 896, v{a}
        v_and_b32 v{b}, 7, v{l}
        v_lshrrev_b32 v{c}, 4, v{l}
        v_xor_b32 v{b}, v{b}, v{c}
        v_lshl_add_u32 v{x0}, v{b}, 4, v{a}
        v_xor_b32 v{b}, 4, v{b}
        v_lshl_add_u32 v{x1}, v{b}, 4, v{a}
        v_add_u32 v{x1}, 7168, v{x1}
        v_add_u32 v{x2}, 14336, v{x0}
        v_add_u32 v{x3}, 14336, v{x1}
        """.format(a=T, b=T + 1, c=T + 2, l=vL, x0=vD, x1=vD + 1, x2=vD + 2, x3=vD + 3))
    GROUPS = [int(c) for c in str(opt("groups", 7))]
    assert sum(GROUPS) == 7
    sROTS = [sROT, 47, 37, 39]
    ginfo = []
    base = 0
    for gi, n in enumerate(GROUPS):
        for j in range(n): ginfo.append((gi, base, n, j))
        base += n
    def rot_from(expr_regs):
        a, b = expr_regs
        k.I("s_add_u32 s%d, s3, s%d" % (sKB, b))
        for gi, n in enumerate(GROUPS):
            if n == 1 or not ROT:
                k.I("s_mov_b32 s%d, 0" % sROTS[gi]); continue
            mg = -(-256 // n)
            assert all((x * mg) >> 8 == x // n for x in range(40))
            k.I("s_mul_i32 s%d, s%d, %d" % (sTMP, sKB, mg))
            k.I("s_lshr_b32 s%d, s%d, 8" % (sTMP, sTMP))
            k.I("s_mul_i32 s%d, s%d, %d" % (sTMP, sTMP, n))
            k.I("s_sub_u32 s%d, s%d, s%d" % (sROTS[gi], sKB, sTMP))
    def src_srd(is_x_label):
        pass
    def read_addrs(nslot, slot, xoff, wstride, wextra_sgpr, nbase):
        k.I("""
        v_and_b32 v{s}, 31, v{l}
        v_lshrrev_b32 v{h}, 5, v{l}
        v_bfe_u32 v{c}, v{l}, 1, 3
        v_xor_b32 v{c}, v{c}, v{h}
        v_lshlrev_b32 v{d}, 7, v{s}
        v_add_u32 v{d}, s{m}, v{d}
        v_lshl_add_u32 v{r0}, v{c}, 4, v{d}
        v_xor_b32 v{e}, 2, v{c}
        v_lshl_add_u32 v{r1}, v{e}, 4, v{d}
        v_xor_b32 v{e}, 4, v{c}
        v_lshl_add_u32 v{r2}, v{e}, 4, v{d}
        v_xor_b32 v{e}, 6, v{c}
        v_lshl_add_u32 v{r3}, v{e}, 4, v{d}
        v_bfe_u32 v{c}, v{l}, 4, 1
        v_lshlrev_b32 v{d}, 5, v{c}
        v_and_b32 v{c}, 3, v{l}
        v_lshl_add_u32 v{d}, v{c}, 3, v{d}
        v_bfe_u32 v{c}, v{l}, 2, 2
        v_lshl_add_u32 v{e}, v{h}, 3, v{c}
        v_mul_u32_u24 v{e}, {ws}, v{e}
        v_add3_u32 v{wr}, v{e}, v{d}, s{wx}
        v_mov_b32 v{f}, 0x3f803f80
        v_cmp_eq_u32 vcc, 28, v{s}
        """.format(s=T, h=T + 1, c=T + 2, d=T + 3, e=T + 4, f=T + 5, l=vL, m=sM, r0=vXR, r1=vXR + 1, r2=vXR + 2, r3=vXR + 3,
                   ws=wstride, wr=vWR, wx=wextra_sgpr))
        for b in range(1, nbase):
            for kk in range(4): k.I("v_add_u32 v%d, %d, v%d" % (vXR + 4 * b + kk, b * slot, vXR + kk))
            k.I("v_add_u32 v%d, %d, v%d" % (vWR + b, b * slot, vWR))
        k.I("v_cndmask_b32 v%d, 0, v%d, vcc" % (vPADV, T + 5))

    def gemm(NS, SLOT, NDMA, reads, mfmas, setup):
        vm = VmQueue(k)
        def dma(o):
            def one(i):
                def f():
                    if i == 0:
                        gi, gb, gn, gj = ginfo[o]
                        k.I("s_add_u32 s%d, s%d, %d" % (sKB, sROTS[gi], gb + gj))
                        k.I("s_sub_u32 s%d, s%d, %d" % (sTMP, sKB, gn))
                        k.I("s_cmp_ge_u32 s%d, %d" % (sKB, gb + gn))
                        k.I("s_cselect_b32 s%d, s%d, s%d" % (sKB, sTMP, sKB))
                        k.I("s_mul_i32 s%d, s%d, s%d" % (sCUR, sKB, sSTEP))
                        k.I("s_add_u32 s%d, s%d, s%d" % (sCUR, sCUR, sSOF))
                    k.I("s_add_u32 m0, s%d, %d" % (sB1 if i < 4 else sB2, (o % NS) * SLOT + 1024 * (i % 4)))
                    k.I("s_nop 0")
                    k.I("buffer_load_dwordx4 v%d, s[%d:%d], s%d offen lds" % (vD + i, S_SRC, S_SRC + 3, sCUR)); vm.add(o)
                return f
            return [one(i) for i in range(NDMA)]
        for f in dma(0): f()
        PRE1 = opt("pre1", 1)
        if PRE1:
            k.I("s_barrier")
            for f in dma(1): f()
        if opt("cpf", 1):
            code_prefetch(k, 48, 27, vL, sW, "attn_kernel", "L3_end", 8); vm.add("code")
        setup()
        st()
        vm.wait([0])
        k.I("s_barrier")
        st()
        reads(0, 0)
        pend = []
        if not PRE1:
            for f in dma(1): f()
        for o in range(2, NS): pend += dma(o)
        for ks in range(28):
            o, kk = ks >> 2, ks & 3
            if kk == 3 and o < 6:
                assert vm.q.count(o + 1) == NDMA
                k.I("s_waitcnt lgkmcnt(0)")
                vm.wait([o + 1])
                k.I("s_barrier")
                st()
                reads(o + 1, 0)
                if o + NS <= 6: pend += dma(o + NS)
            elif ks < 27:
                n = reads(o, kk + 1)
                k.I("s_waitcnt lgkmcnt(%d)" % n)
            else:
                k.I("s_waitcnt lgkmcnt(0)")
            for m in mfmas(ks):
                k.I(m)
                if pend: pend.pop(0)()
        st()
    def store4(reg, soff, off):
        k.I("buffer_store_dwordx4 v[%d:%d], v%d, s[%d:%d], s%d offen offset:%d%s" % (reg, reg + 3, vL16, S_WS, S_WS + 3, soff, off, SC))

    k.I("""
    s_lshl_b32 s{g}, s3, 1
    s_cmp_eq_u32 s3, 3
    s_cselect_b32 s{g}, 0, s{g}
    s_add_u32 s{g}, s{g}, s{idx}
    s_cmp_ge_u32 s{w}, 4
    s_cbranch_scc1 L1_px
    """.format(g=sG, idx=sIDX, rb=sRB, tmp=sTMP, w=sW))
    for i in range(7):
        k.I("""
        v_add_u32 v{c}, {c0}, v{l}
        v_mul_u32_u24 v{r}, 2341, v{c}
        v_lshrrev_b32 v{r}, 16, v{r}
        v_mul_u32_u24 v{r}, {dl}, v{r}
        v_lshl_add_u32 v{d}, v{c}, 4, v{r}
        """.format(c=T, r=T + 1, c0=64 * i, l=vL, dl=2688 - 448, d=vD + i))
    k.I("""
    s_mul_i32 s{sof}, s{w}, {r16}
    s_mul_i32 s{tmp}, s{g}, 448
    s_add_u32 s{sof}, s{sof}, s{tmp}
    s_mov_b32 s{step}, {r64}
    s_mul_i32 s{b1}, s{w}, 7168
    s_add_u32 s{b2}, s{b1}, 4096
    s_waitcnt lgkmcnt(0)
    """.format(sof=sSOF, w=sW, r16=16 * 2688, tmp=sTMP, g=sG, step=sSTEP, r64=64 * 2688, b1=sB1, b2=sB2))
    srd(k, S_SRC, 6, 7, 448 * 2688)
    k.I("s_branch L1_pgo")
    k.label("L1_px")
    x_voffsets()
    for i in range(4, 7): k.I("v_mov_b32 v%d, 0x%x" % (vD + i, OOB))
    k.I("""
    s_lshl_b32 s{sof}, s{rb}, 2
    s_add_u32 s{sof}, s{sof}, s{w}
    s_sub_u32 s{sof}, s{sof}, 4
    s_mul_i32 s{sof}, s{sof}, {r32}
    s_mov_b32 s{step}, 128
    s_lshl_b32 s{b1}, s{w}, 12
    s_add_u32 s{b1}, s{b1}, {px}
    s_mov_b32 s{b2}, {scr}
    s_waitcnt lgkmcnt(0)
    """.format(sof=sSOF, rb=sRB, w=sW, r32=32 * 896, step=sSTEP, b1=sB1, b2=sB2, px=PX - 4 * 4096, scr=PSCR))
    srd(k, S_SRC, 4, 5, 2048 * 896)
    k.label("L1_pgo")
    rot_from((sG, sRB))
    def p_setup():
        srd(k, S_WS, 8, 9, WS_USED)
        k.I("""
        s_and_b32 s{m}, s{w}, 1
        s_lshl_b32 s{m}, s{m}, 13
        s_add_u32 s{m}, s{m}, {px}
        s_lshr_b32 s{tmp}, s{w}, 1
        s_mul_i32 s{tmp}, s{tmp}, 112
        """.format(m=sM, w=sW, px=PX, tmp=sTMP))
        read_addrs(3, PSLOT, PX, 448, sTMP, 3)
        k.I("""
        s_and_b32 s{head}, s{g}, 1
        s_lshl_b32 s{head}, s{head}, 3
        s_and_b32 s{tmp}, s{w}, 6
        s_add_u32 s{head}, s{head}, s{tmp}
        s_lshl_b32 s{dst}, s{head}, 6
        s_lshl_b32 s{tmp}, s{rb}, 2
        s_add_u32 s{dst}, s{dst}, s{tmp}
        s_and_b32 s{tmp}, s{w}, 1
        s_lshl_b32 s{tmp}, s{tmp}, 1
        s_add_u32 s{dst}, s{dst}, s{tmp}
        s_mov_b32 s{c0}, 0x{qs:x}
        s_mov_b32 s{c1}, 0x{qs:x}
        """.format(head=sHEAD, g=sG, tmp=sTMP, w=sW, dst=sDST, rb=sRB, c0=sC, c1=sC + 1, qs=f2u(QSCALE)))
    def p_reads(o, kk):
        b = (4 * o + kk) & 1
        for r in range(2):
            x = XF + 8 * b + 4 * r
            k.I("ds_read_b128 v[%d:%d], v%d offset:%d" % (x, x + 3, vXR + 4 * (o % 3) + kk, 4096 * r))
        for e in range(2):
            for jj in range(2):
                x = WF + 8 * b + 4 * e + 2 * jj
                k.I("ds_read_b64_tr_b16 v[%d:%d], v%d offset:%d" % (x, x + 1, vWR + (o % 3), (16 * kk + 4 * jj) * 448 + 56 * e))
        return 6
    def p_mfmas(swap):
        def f(ks):
            b = ks & 1
            L = []
            for r in range(2):
                for e in range(2):
                    xf, wf = vr(XF + 8 * b + 4 * r, 4), vr(WF + 8 * b + 4 * e, 4)
                    L.append(mfma(vr(ACC + 16 * (2 * e + r), 16), xf if swap else wf, wf if swap else xf, 0 if ks == 0 else None))
            return L
        return f
    k.I("s_cmp_eq_u32 s3, 2")
    k.I("s_cbranch_scc1 L1_pv")
    n0 = st.n
    gemm(3, PSLOT, 7, p_reads, p_mfmas(False), p_setup)
    k.I("""
    s_lshr_b32 s{tmp}, s{g}, 1
    s_cmp_eq_u32 s{tmp}, 1
    s_cselect_b32 s{p6}, 0x3f803f80, 0
    s_cselect_b32 s{p7}, 0x3f80, 0
    s_cselect_b32 s{dsh}, 12, 11
    s_cselect_b32 s{m}, {kvo}, {qo}
    s_cbranch_scc1 L1_pnoscale
    s_cmp_eq_u32 s3, 3
    s_cselect_b32 s{m}, {qbo}, s{m}
    s_cbranch_scc1 L1_pnoscale
    s_nop 3
    """.format(tmp=sTMP, g=sG, p6=sP6, p7=sP7, dsh=sDSH, m=sM, kvo=KV_OFF, qo=Q_OFF, qbo=QB_OFF))
    for i in range(32):
        k.I("v_pk_mul_f32 v[%d:%d], v[%d:%d], s[%d:%d]" % (ACC + 2 * i, ACC + 2 * i + 1, ACC + 2 * i, ACC + 2 * i + 1, sC, sC + 1))
    k.label("L1_pnoscale")
    k.I("s_nop 3")
    F = XF
    for tl in range(4):
        e, r = tl >> 1, tl & 1
        cvt8(k, F + 8 * tl, ACC + 16 * tl)
        exec_hi(k)
        k.I("v_mov_b32 v%d, s%d" % (F + 8 * tl + 6, sP6))
        k.I("v_mov_b32 v%d, s%d" % (F + 8 * tl + 7, sP7))
        k.I(EXEC_ALL)
        k.I("s_add_u32 s%d, s%d, %d" % (sTMP, sDST, 64 * e + r))
        k.I("s_lshl_b32 s%d, s%d, s%d" % (sTMP, sTMP, sDSH))
        k.I("s_add_u32 s%d, s%d, s%d" % (sTMP, sTMP, sM))
        store4(F + 8 * tl, sTMP, 0); store4(F + 8 * tl + 4, sTMP, 1024)
    st.dump(S_WS)
    k.I("s_endpgm")
    k.label("L1_pv")
    st.n = n0
    gemm(3, PSLOT, 7, p_reads, p_mfmas(True), p_setup)
    for tl in range(4):
        e, r = tl >> 1, tl & 1
        cvt8(k, F + 8 * tl, ACC + 16 * tl)
        exec_both(k, 0xf0000000)
        for i in range(8): k.I("v_mov_b32 v%d, v%d" % (F + 8 * tl + i, vPADV))
        k.I(EXEC_ALL)
        k.I("s_add_u32 s%d, s%d, %d" % (sTMP, sDST, 64 * e + r))
        k.I("s_lshl_b32 s%d, s%d, 12" % (sTMP, sTMP))
        store4(F + 8 * tl, sTMP, 2048); store4(F + 8 * tl + 4, sTMP, 3072)
    st.dump(S_WS)
    k.I("s_endpgm")

    k.label("L1_kv")
    st.n = n0
    AK, AV = ACC, ACC + 16
    IDN, PHI = ACC + 32, ACC + 40
    EP, EM = 132, 148
    k.I("""
    s_lshl_b32 s{g}, s{idx}, 2
    s_and_b32 s{tmp}, s3, 3
    s_add_u32 s{g}, s{g}, s{tmp}
    s_cmp_lt_u32 s{w}, 4
    s_cbranch_scc1 L1_kx
    s_lshl_b32 s{tmp}, s{w}, 8
    s_sub_u32 s{tmp}, s{tmp}, 1024
    v_add_u32 v{c0}, s{tmp}, v{l}
    v_mov_b32 v{oob}, 0x{oobv:x}
    """.format(g=sG, tmp=sTMP, idx=sIDX, rb=sRB, w=sW, c0=T + 4, l=vL, oob=T + 5, oobv=OOB))
    for i in range(4):
        k.I("""
        v_add_u32 v{c}, {c0}, v{cb}
        v_mul_u32_u24 v{r}, 9363, v{c}
        v_lshrrev_b32 v{r}, 16, v{r}
        v_lshlrev_b32 v{d}, 4, v{c}
        v_mul_u32_u24 v{q}, {d7}, v{r}
        v_add_u32 v{d}, v{d}, v{q}
        v_lshrrev_b32 v{r}, 1, v{r}
        v_mul_u32_u24 v{r}, 896, v{r}
        v_add_u32 v{d}, v{d}, v{r}
        v_cmp_gt_u32 vcc, 896, v{c}
        s_nop 1
        v_cndmask_b32 v{d}, v{oob}, v{d}, vcc
        """.format(c=T, r=T + 1, q=T + 2, c0=64 * i, cb=T + 4, d=vD + i, d7=896 - 112, oob=T + 5))
    k.I("""
    s_mul_i32 s{sof}, s{g}, 112
    s_add_u32 s{sof}, s{sof}, 896
    s_mov_b32 s{step}, {r64}
    s_lshl_b32 s{b1}, s{w}, 12
    s_sub_u32 s{b1}, s{b1}, 16384
    s_waitcnt lgkmcnt(0)
    """.format(sof=sSOF, g=sG, step=sSTEP, r64=64 * 2688, b1=sB1, w=sW))
    srd(k, S_SRC, 6, 7, 448 * 2688)
    k.I("s_branch L1_kgo")
    k.label("L1_kx")
    x_voffsets()
    k.I("""
    s_lshl_b32 s{sof}, s{rb}, 2
    s_add_u32 s{sof}, s{sof}, s{w}
    s_mul_i32 s{sof}, s{sof}, {r32}
    s_mov_b32 s{step}, 128
    s_lshl_b32 s{b1}, s{w}, 12
    s_add_u32 m0, s{b1}, 0
    s_add_u32 s{b1}, s{b1}, {kx}
    s_lshl_b32 s{m}, s{w}, 10
    s_mul_i32 s{tmp}, s{g}, 3136
    s_add_u32 s{tmp}, s{tmp}, s{m}
    s_add_u32 m0, s{m}, {kphi}
    s_waitcnt lgkmcnt(0)
    """.format(sof=sSOF, rb=sRB, w=sW, r32=32 * 896, step=sSTEP, b1=sB1, kx=KX, m=sM, tmp=sTMP, g=sG, kphi=KPHI))
    srd(k, S_PHI, 10, 11, 16 * 1568)
    srd(k, S_SRC, 4, 5, 2048 * 896)
    k.I("buffer_load_dwordx4 v%d, s[%d:%d], s%d offen lds" % (vL16, S_PHI, S_PHI + 3, sTMP))
    k.label("L1_kgo")
    rot_from((sG, sRB))
    def k_setup():
        srd(k, S_WS, 8, 9, WS_USED)
        k.I("""
        s_and_b32 s{m}, s{w}, 3
        s_lshl_b32 s{m}, s{m}, 12
        s_add_u32 s{m}, s{m}, {kx}
        s_lshr_b32 s{tmp}, s{w}, 2
        s_lshl_b32 s{head}, s{g}, 1
        s_add_u32 s{head}, s{head}, s{tmp}
        s_mul_i32 s{dst}, s{tmp}, 1568
        s_add_u32 s{dst}, s{dst}, {kphi}
        s_mul_i32 s{tmp}, s{tmp}, 56
        s_mov_b32 s{l0}, 0x{lg:x}
        s_mov_b32 s{l1}, 0x{lg:x}
        """.format(m=sM, w=sW, kx=KX, tmp=sTMP, head=sHEAD, g=sG, dst=sDST, kphi=KPHI, l0=sL, l1=sL + 1, lg=f2u(LOG2E)))
        read_addrs(4, 2 * KSLOT, KX, 224, sTMP, 2)
        k.I("v_lshl_add_u32 v%d, v%d, 2, v%d" % (T + 4, T + 1, T + 2))
        k.I("v_mul_u32_u24 v%d, 56, v%d" % (T + 4, T + 4))
        k.I("v_add3_u32 v%d, v%d, v%d, s%d" % (vPH, T + 4, T + 3, sDST))
        k.I("v_lshlrev_b32 v%d, 2, v%d" % (T + 2, T + 1))
        k.I("v_sub_u32 v%d, v%d, v%d" % (T + 2, T, T + 2))
        k.I("v_mov_b32 v%d, 0x3f80" % (T + 3))
        k.I("v_mov_b32 v%d, 0x3f800000" % (T + 4))
        for p in range(8):
            base = 8 * (p >> 1) + 2 * (p & 1)
            k.I("v_cmp_eq_u32 vcc, %d, v%d" % (base, T + 2))
            k.I("v_cmp_eq_u32 s[48:49], %d, v%d" % (base + 1, T + 2))
            k.I("v_cndmask_b32 v%d, 0, v%d, vcc" % (IDN + p, T + 3))
            k.I("v_cndmask_b32 v%d, v%d, v%d, s[48:49]" % (IDN + p, IDN + p, T + 4))
        for i in range(12, 16):
            k.I("v_mov_b32 v%d, 0" % (EP + i))
            k.I("v_mov_b32 v%d, 0" % (EM + i))
    def k_reads(o, kk):
        b = (4 * o + kk) & 1
        hi, lo = (o % 4) >> 1, ((o % 4) & 1) * KSLOT
        x = XF + 8 * b
        k.I("ds_read_b128 v[%d:%d], v%d offset:%d" % (x, x + 3, vXR + 4 * hi + kk, lo))
        for e in range(2):
            for jj in range(2):
                x = WF + 8 * b + 4 * e + 2 * jj
                k.I("ds_read_b64_tr_b16 v[%d:%d], v%d offset:%d" % (x, x + 1, vWR + hi, lo + (16 * kk + 4 * jj) * 224 + 112 * e))
        return 5
    def k_mfmas(ks):
        b = ks & 1
        xf = vr(XF + 8 * b, 4)
        c = 0 if ks == 0 else None
        return [mfma(vr(AK, 16), vr(WF + 8 * b, 4), xf, c), mfma(vr(AV, 16), xf, vr(WF + 8 * b + 4, 4), c)]
    gemm(4, KSLOT, 4, k_reads, k_mfmas, k_setup)
    for ff in range(2):
        for jj in range(2):
            r = PHI + 4 * ff + 2 * jj
            k.I("ds_read_b64_tr_b16 v[%d:%d], v%d offset:%d" % (r, r + 1, vPH, (16 * ff + 8 * jj) * 56))
    KF, VF, FKP, FKM = 100, 108, 116, 124
    cvt8(k, KF, AK)
    exec_hi(k)
    for r in (KF + 6, KF + 7): k.I("v_mov_b32 v%d, 0" % r)
    k.I(EXEC_ALL)
    k.I("s_waitcnt lgkmcnt(0)")
    k.I(mfma(vr(AK, 16), vr(PHI, 4), vr(KF, 4), 0))
    k.I(mfma(vr(AK, 16), vr(PHI + 4, 4), vr(KF + 4, 4)))
    cvt8(k, VF, AV)
    exec_both(k, 0xf0000000)
    for i in range(8): k.I("v_mov_b32 v%d, v%d" % (VF + i, vPADV))
    k.I(EXEC_ALL)
    feature_map(k, AK, FKP, FKM, EP, EM, T, sL, True)
    k.I(mfma(vr(AK, 16), vr(FKP, 4), vr(IDN, 4), 0))
    k.I(mfma(vr(AK, 16), vr(FKP + 4, 4), vr(IDN + 4, 4)))
    k.I(mfma(vr(AV, 16), vr(FKM, 4), vr(IDN, 4), 0))
    k.I(mfma(vr(AV, 16), vr(FKM + 4, 4), vr(IDN + 4, 4)))
    k.I("s_lshl_b32 s%d, s%d, 13" % (sTMP, sW))
    k.I("v_add_u32 v%d, s%d, v%d" % (T, sTMP, vL16))
    k.I("""
    s_and_b32 s{m}, s{w}, 3
    s_lshl_b32 s{m}, s{m}, 11
    s_and_b32 s{tmp}, s{w}, 4
    s_lshl_b32 s{tmp}, s{tmp}, 13
    s_add_u32 s{tmp}, s{tmp}, s{m}
    v_add_u32 v{t1}, s{tmp}, v{l16}
    s_lshl_b32 s{tmp}, s{head}, 4
    s_add_u32 s{tmp}, s{tmp}, s{rb}
    s_lshl_b32 s{tmp}, s{tmp}, 13
    s_add_u32 s{tmp}, s{tmp}, s{m}
    s_add_u32 s{tmp}, s{tmp}, 0x{off:x}
    """.format(m=sM, w=sW, tmp=sTMP, t1=T + 1, l16=vL16, head=sHEAD, rb=sRB, off=KVP_OFF))
    cvt8(k, FKP, AK)
    k.I(mfma(vr(EP, 16), vr(FKP, 4), vr(VF, 4), 0))
    k.I(mfma(vr(EP, 16), vr(FKP + 4, 4), vr(VF + 4, 4)))
    cvt8(k, FKM, AV)
    k.I(mfma(vr(EM, 16), vr(FKM, 4), vr(VF, 4), 0))
    k.I(mfma(vr(EM, 16), vr(FKM + 4, 4), vr(VF + 4, 4)))
    for q in range(8):
        k.I("ds_write_b128 v%d, v[%d:%d] offset:%d" % (T, EP + 4 * q, EP + 4 * q + 3, 1024 * q))
    k.I("s_waitcnt lgkmcnt(0)")
    st()
    k.I("s_barrier")
    for w in range(4):
        for q in range(2):
            r = ACC + 8 * w + 4 * q
            k.I("ds_read_b128 v[%d:%d], v%d offset:%d" % (r, r + 3, T + 1, 8192 * w + 1024 * q))
    for w in range(1, 4):
        k.I("s_waitcnt lgkmcnt(%d)" % (6 - 2 * w))
        for q in range(4):
            k.I(pk("v_pk_add_f32", ACC + 2 * q, ACC + 2 * q, ACC + 8 * w + 2 * q))
    store4(ACC, sTMP, 0); store4(ACC + 4, sTMP, 1024)
    st.dump(S_WS)
    k.label("L1_end")
    k.I("s_endpgm")
    if TOUCH:
        k.label("L1_touch")
        k.I("""
        v_and_b32 v8, 15, v{l}
        v_mul_u32_u24 v8, 2688, v8
        v_lshrrev_b32 v9, 4, v{l}
        s_and_b32 s{tmp}, s{rb}, 3
        s_mul_i32 s{sof}, s{tmp}, {r16}
        s_mul_i32 s{b1}, s{rb}, {xr128}
        s_cmp_ge_u32 s3, 4
        s_cbranch_scc1 L1_tkv
        v_lshl_add_u32 v8, v9, 7, v8
        s_lshl_b32 s{g}, s3, 1
        s_cmp_eq_u32 s3, 3
        s_cselect_b32 s{g}, 0, s{g}
        s_add_u32 s{g}, s{g}, s{idx}
        s_mul_i32 s{tmp}, s{g}, 448
        s_add_u32 s{sof}, s{sof}, s{tmp}
        v_mul_u32_u24 v10, 896, v{l}
        v_add_u32 v11, 128, v10
        s_and_b32 s{tmp}, s3, 1
        s_mul_i32 s{tmp}, s{tmp}, {xr64}
        s_add_u32 s{b1}, s{b1}, s{tmp}
        s_cmp_ge_u32 s3, 2
        s_cselect_b32 s{b1}, 0x40000000, s{b1}
        s_branch L1_tgo
        L1_tkv:
        v_and_b32 v10, 1, v9
        v_mul_u32_u24 v10, 111, v10
        v_lshrrev_b32 v9, 1, v9
        v_mul_u32_u24 v11, 896, v9
        v_add3_u32 v8, v8, v10, v11
        s_lshl_b32 s{g}, s{idx}, 2
        s_and_b32 s{tmp}, s3, 3
        s_add_u32 s{g}, s{g}, s{tmp}
        s_mul_i32 s{g}, s{g}, 112
        s_add_u32 s{sof}, s{sof}, s{g}
        s_add_u32 s{sof}, s{sof}, 896
        s_mul_i32 s{tmp}, s{tmp}, {xr32}
        s_add_u32 s{b1}, s{b1}, s{tmp}
        v_and_b32 v10, 31, v{l}
        v_mul_u32_u24 v10, 896, v10
        v_lshl_add_u32 v10, v9, 7, v10
        v_mov_b32 v11, 0x40000000
        L1_tgo:
        s_waitcnt lgkmcnt(0)
        """.format(l=vL, tmp=sTMP, rb=sRB, sof=sSOF, r16=16 * 2688, b1=sB1, xr128=128 * 896, g=sG, idx=sIDX, xr64=64 * 896, xr32=32 * 896))
        srd(k, 12, 6, 7, 448 * 2688)
        srd(k, 16, 4, 5, 2048 * 896)
        def touch(kb, n):
            for j in range(kb, kb + n):
                k.I("s_add_u32 s%d, s%d, %d" % (sTMP, sSOF, j * 64 * 2688))
                k.I("buffer_load_dword v12, v8, s[12:15], s%d offen" % sTMP)
            k.I("buffer_load_dword v13, v10, s[16:19], s%d offen offset:%d" % (sB1, 128 * kb))
            if n == 2: k.I("buffer_load_dword v14, v11, s[16:19], s%d offen offset:%d" % (sB1, 128 * kb))
        plan = {1: [[(2, 2)], [(4, 2)], [(6, 1)]], 2: [[(2, 2), (4, 2)], [(6, 1)]], 3: [[(2, 2)], [], [(4, 2)], [(6, 1)]], 4: [[(2, 2), (4, 2), (6, 1)]]}[TOUCH]
        for grp in plan:
            k.I("s_barrier")
            for kb, n in grp: touch(kb, n)
        k.I("s_endpgm")
    return k, dict(grid=256, block=576 if TOUCH else 512, lds=LDS, vgpr=168 if STAMP else 164, agpr=0, sgpr=102 if STAMP else 56)

def gen_k2():
    k = Kernel("attn_kernel")
    R = 4
    S_WS = 4
    sW, sHEAD, sTMP, sT, sU, sKVB, sP, sMASK, sPB, sPQ, sOA, sQA, sCNT = 8, 9, 10, 11, 12, 13, 14, 15, 17, 18, 19, 21, 16
    vL16 = 1
    Q = {"a": 4, "b": 12}
    S = {"a": 20, "b": 36}
    P = {"a": 52, "b": 60}
    O = {"a": 68, "b": 84}
    T = 100
    LKV, LPHI, LCNT = 16384, 20480, 22528
    def KR(i, f): return ar((i % R) * 16 + 4 * f, 4)
    def VR(i, f): return ar((i % R) * 16 + 8 + 4 * f, 4)
    k.I("""
    s_cmp_ge_u32 s2, 256
    s_cbranch_scc1 L2_end
    s_load_dwordx2 s[{ws0}:{ws1}], s[0:1], 72
    v_lshrrev_b32 v2, 6, v0
    v_and_b32 v1, 63, v0
    v_lshlrev_b32 v1, 4, v1
    v_readfirstlane_b32 s{w}, v2
    s_and_b32 s{head}, s2, 7
    s_lshl_b32 s{head}, s{head}, 1
    s_lshr_b32 s{tmp}, s2, 7
    s_add_u32 s{head}, s{head}, s{tmp}
    s_bfe_u32 s{t}, s2, 0x40003
    s_lshl_b32 s{t}, s{t}, 2
    s_mov_b32 s{ws2}, 0x{used:x}
    s_mov_b32 s{ws3}, 0x00020000
    s_cmp_ge_u32 s{w}, 4
    s_cbranch_scc1 L2_help
    s_lshr_b32 s{u}, s{w}, 1
    s_and_b32 s{tmp}, s{w}, 1
    s_lshl_b32 s{tmp}, s{tmp}, 1
    s_add_u32 s{t}, s{t}, s{tmp}
    s_add_u32 s{t}, s{t}, s{u}
    s_lshl_b32 s{tmp}, s{head}, 6
    s_add_u32 s{tmp}, s{t}, s{tmp}
    s_lshl_b32 s{tmp}, s{tmp}, 11
    s_add_u32 s{tmp}, s{tmp}, 0x{qoff:x}
    s_xor_b32 s{qa}, s{tmp}, 0x800
    s_lshl_b32 s{kvb}, s{head}, 18
    s_lshl_b32 s{p}, s{u}, 17
    s_add_u32 s{p}, s{kvb}, s{p}
    s_waitcnt lgkmcnt(0)
    """.format(w=sW, head=sHEAD, tmp=sTMP, u=sU, t=sT, kvb=sKVB, p=sP, qoff=Q_OFF, qa=sQA,
               ws0=S_WS, ws1=S_WS + 1, ws2=S_WS + 2, ws3=S_WS + 3, used=WS_USED))
    st = Stamper(k, 1, 4, 126); st.start()
    def ld(dst, soff, off):
        k.I("buffer_load_dwordx4 %s, v%d, s[%d:%d], s%d offen offset:%d" % (dst, vL16, S_WS, S_WS + 3, soff, off))
    ld(KR(3, 0), sKVB, 0); ld(KR(3, 1), sKVB, 1024)
    ld(vr(Q["a"], 4), sQA, 0); ld(vr(Q["a"] + 4, 4), sQA, 1024)
    ld(vr(Q["b"], 4), sTMP, 0); ld(vr(Q["b"] + 4, 4), sTMP, 1024)
    for j in range(3):
        ld(KR(j, 0), sP, 0); ld(KR(j, 1), sP, 1024); ld(VR(j, 0), sP, 2048); ld(VR(j, 1), sP, 3072)
        k.I("s_add_u32 s%d, s%d, 4096" % (sP, sP))
    for i in range(8): k.I("v_mov_b32 v%d, 0" % (P["b"] + i))
    for i in range(8): k.I("v_accvgpr_write_b32 a%d, 0" % (56 + i))
    for x in "ab": k.I(mfma(vr(O[x], 16), vr(P["b"], 4), vr(P["b"], 4), 0))
    k.I("s_barrier")
    k.I("""
    s_mov_b32 s{mask}, 0xffff0000
    s_lshl_b32 s{tmp}, s{t}, 4
    s_add_u32 s{tmp}, s{tmp}, s{head}
    s_lshl_b32 s{tmp}, s{tmp}, 11
    s_add_u32 s{oa}, s{tmp}, 0x{ooff:x}
    s_lshl_b32 s{tmp}, s{w}, 12
    v_add_u32 v3, s{tmp}, v1
    s_xor_b32 s{tmp}, s{tmp}, 0x2000
    v_add_u32 v2, s{tmp}, v1
    s_mov_b32 s{cnt}, 7
    """.format(head=sHEAD, tmp=sTMP, w=sW, t=sT, mask=sMASK, oa=sOA, ooff=O_OFF, cnt=sCNT))

    def qk(x, i):
        return [mfma(vr(S[x], 16), KR(i, 0), vr(Q[x], 4), 0), mfma(vr(S[x], 16), KR(i, 1), vr(Q[x] + 4, 4))]
    def pv(x, i):
        return [mfma(vr(O[x], 16), VR(i, 0), vr(P[x], 4)), mfma(vr(O[x], 16), VR(i, 1), vr(P[x] + 4, 4))]
    def phase(x, mf, after):
        def cv(n): return "v_cvt_pk_bf16_f32 v%d, v%d, v%d" % (P[x] + n, S[x] + 2 * n, S[x] + 2 * n + 1)
        def ex(n): return "v_exp_f32 v%d, v%d" % (S[x] + n, S[x] + n)
        for g in range(4):
            if mf[g] is not None: k.I(mf[g])
            if after[g] is not None: after[g]()
            k.I(ex(4 * g)); k.I(ex(4 * g + 1))
            if g > 0: k.I(cv(2 * g - 1))
            k.I(ex(4 * g + 2)); k.I(ex(4 * g + 3))
            k.I(cv(2 * g))
        k.I(cv(7))
    def bcast_hi(src, t0, t1):
        k.I("v_mov_b32 v%d, v%d" % (t0, src))
        k.I("v_mov_b32 v%d, v%d" % (t1, src))
        k.I("v_permlane32_swap_b32 v%d, v%d" % (t0, t1))
    def normalise(X, F, soff, eps):
        bcast_hi(X + 12, T, T + 2)
        if eps: k.I("v_add_f32 v%d, 0x%x, v%d" % (T + 2, f2u(1e-6), T + 2))
        k.I("v_rcp_f32 v%d, v%d" % (T + 2, T + 2))
        for i in range(8):
            k.I(pk("v_pk_mul_f32", X + 2 * i, X + 2 * i, T + 2, " op_sel_hi:[1,0]"))
        cvt8(k, F, X)
        exec_hi(k)
        k.I("v_mov_b32 v%d, 0" % (F + 6))
        k.I("v_mov_b32 v%d, 0" % (F + 7))
        k.I(EXEC_ALL)
        for f in range(2):
            k.I("buffer_store_dwordx4 v[%d:%d], v%d, s[%d:%d], s%d offen offset:%d%s" % (F + 4 * f, F + 4 * f + 3, vL16, S_WS, S_WS + 3, soff, 1024 * f, SC))

    st()
    k.I("s_waitcnt vmcnt(12)")
    st()
    for m in qk("a", 3) + qk("b", 3): k.I(m)
    ld(KR(3, 0), sP, 0)
    k.I("s_add_u32 s%d, s%d, %d" % (sP, sP, 2048 - 4096))
    for x, m in (("a", T), ("b", T + 4)):
        k.I("v_max3_f32 v%d, v%d, v%d, v%d" % (m, S[x], S[x] + 1, S[x] + 2))
        for i in range(3, 15, 2):
            k.I("v_max3_f32 v%d, v%d, v%d, v%d" % (m, m, S[x] + i, S[x] + i + 1))
        k.I("v_max_f32 v%d, v%d, v%d" % (m, m, S[x] + 15))
        xhalf(k, "v_max_f32", m, m + 1)
        k.I("v_add_f32 v%d, 0x%x, v%d" % (m, f2u(MOFF), m))
        neg_max_pieces(k, m, m + 1, m + 2, Q[x] + 6, Q[x] + 7, sMASK)
        if x == "a":
            k.I("s_waitcnt vmcnt(11)")
            for mm in qk("a", 0): k.I(mm)
    st()
    I = lambda t: (lambda: k.I(t))
    def tile(i, wait, loads, last=False, b1=None):
        L = [lambda: ld(KR(i + 3, 1), sP, 3072), lambda: ld(KR(i + 4, 0), sP, 2048), lambda: ld(VR(i + 3, 0), sP, 0), lambda: ld(VR(i + 3, 1), sP, 1024)]
        L = [f if u else None for f, u in zip(L, loads)]
        phase("a", qk("b", i) + pv("b", i - 1),
              [L[0], I("s_add_u32 s%d, s%d, 4096" % (sP, sP)) if any(loads) else None, L[1], I("s_waitcnt vmcnt(%d)" % wait)])
        if not last:
            phase("b", qk("a", i + 1) + pv("a", i), [L[2], b1, L[3], None])
        else:
            def send():
                for q in range(4):
                    k.I("ds_write_b128 v3, v[%d:%d] offset:%d" % (O["a"] + 4 * q, O["a"] + 4 * q + 3, 1024 * q))
            phase("b", pv("a", i) + [None, None], [None, None, None, send])
    k.label("L2_loop")
    for j in range(4):
        tile(j, 9, (1, 1, 1, 1), b1=I("s_sub_u32 s%d, s%d, 1" % (sCNT, sCNT)) if j == 3 else None)
    k.I("s_cmp_lg_u32 s%d, 0" % sCNT)
    k.I("s_cbranch_scc1 L2_loop")
    st()
    tile(28, 8, (1, 0, 1, 1)); tile(29, 6, (0, 0, 0, 0)); tile(30, 2, (0, 0, 0, 0)); tile(31, 0, (0, 0, 0, 0), last=True)
    for m in pv("b", 31): k.I(m)
    st()
    k.I("s_waitcnt lgkmcnt(0)")
    k.I("s_barrier")
    for q in range(4):
        k.I("ds_read_b128 v[%d:%d], v2 offset:%d" % (O["a"] + 4 * q, O["a"] + 4 * q + 3, 1024 * q))
    OB = O["b"]
    for q in range(4):
        k.I("s_waitcnt lgkmcnt(%d)" % (3 - q))
        k.I(pk("v_pk_add_f32", OB + 4 * q, OB + 4 * q, O["a"] + 4 * q))
        k.I(pk("v_pk_add_f32", OB + 4 * q + 2, OB + 4 * q + 2, O["a"] + 4 * q + 2))
    k.I("v_pk_mul_f32 v[%d:%d], v[%d:%d], 0" % (T, T + 1, OB, OB + 1))
    for i in range(1, 8):
        k.I("v_pk_fma_f32 v[%d:%d], v[%d:%d], 0, v[%d:%d]" % (T, T + 1, OB + 2 * i, OB + 2 * i + 1, T, T + 1))
    k.I("v_cmp_u_f32 vcc, v%d, v%d" % (T, T + 1))
    k.I("s_cbranch_vccnz L2_slow")
    k.label("L2_norm")
    normalise(OB, P["a"], sOA, False)
    st.dump(S_WS)
    k.label("L2_end")
    k.I("s_endpgm")

    k.label("L2_help")
    HM = opt("hmode", 0)
    if HM == 1: k.I("s_endpgm")
    PART = 4
    NP, NM, PQ, FQ = 12, 28, 44, 60
    FB, EP, EM = 76, 84, 112
    KVF, PHI, QB = 0, 16, 24
    SWO, SPHI, sL = 24, 28, 32
    k.I("""
    s_and_b32 s3, s2, 4
    s_lshl_b32 s3, s3, 3
    s_add_u32 s3, s3, 16
    s_load_dwordx2 s[22:23], s[0:1], s3
    s_load_dwordx2 s[20:21], s[0:1], 40
    v_mov_b32 v{a}, {lcnt}
    v_mov_b32 v{b}, 0
    ds_write_b32 v{a}, v{b}
    s_and_b32 s{w}, s{w}, 3
    s_add_u32 s{t}, s{t}, s{w}
    s_lshl_b32 s{tmp}, s{head}, 6
    s_add_u32 s{tmp}, s{t}, s{tmp}
    s_lshl_b32 s{pq}, s{tmp}, 11
    s_add_u32 s{pq}, s{pq}, 0x{qbo:x}
    s_lshl_b32 s{pb}, s{head}, 17
    s_lshl_b32 s{tmp}, s{w}, 11
    s_add_u32 s{pb}, s{pb}, s{tmp}
    s_add_u32 s{pb}, s{pb}, 0x{kvp:x}
    s_mov_b32 s{l0}, 0x{lg:x}
    s_mov_b32 s{l1}, 0x{lg:x}
    s_lshl_b32 s{tmp}, s{t}, 4
    s_add_u32 s{tmp}, s{tmp}, s{head}
    s_lshl_b32 s{tmp}, s{tmp}, 11
    s_add_u32 s{oa}, s{tmp}, 0x{ooffb:x}
    s_add_u32 s{qa}, s{tmp}, 0x{ooff:x}
    s_lshl_b32 s{tmp}, s{w}, 10
    v_add_u32 v2, s{tmp}, v1
    v_lshrrev_b32 v{a}, 9, v1
    v_bfe_u32 v{b}, v1, 6, 2
    v_lshl_add_u32 v{a}, v{a}, 2, v{b}
    v_mul_u32_u24 v{a}, 56, v{a}
    v_bfe_u32 v{b}, v1, 8, 1
    v_lshl_add_u32 v{a}, v{b}, 5, v{a}
    v_bfe_u32 v{b}, v1, 4, 2
    v_lshl_add_u32 v3, v{b}, 3, v{a}
    s_lshr_b32 s{tmp}, s2, 3
    s_lshl_b32 s{tmp}, s{tmp}, 2
    s_add_u32 s{tmp}, s{tmp}, s{w}
    s_mul_i32 s3, s{tmp}, 3200
    v_lshlrev_b32 v{x}, 3, v1
    v_mov_b32 v{y}, 0x40000000
    v_cmp_gt_u32 vcc, 3200, v{x}
    s_and_b32 s16, s{w}, 1
    s_lshl_b32 s16, s16, 10
    v_cndmask_b32 v{x}, v{y}, v{x}, vcc
    s_add_u32 m0, s16, {lphi}
    s_mul_i32 s{tmp}, s{head}, 1568
    s_add_u32 s16, s16, s{tmp}
    s_setprio {prio}
    s_waitcnt lgkmcnt(0)
    s_barrier
    """.format(pb=sPB, head=sHEAD, tmp=sTMP, w=sW, kvp=KVP_OFF, t=sT, pq=sPQ, qbo=QB_OFF, oa=sOA, ooffb=O_OFF + (2 << 20), qa=sKVB, ooff=O_OFF,
               a=T, b=T + 1, x=T + 10, y=T + 11, l0=sL, l1=sL + 1, lg=f2u(LOG2E), lphi=LPHI, prio=opt("hprio", 1), lcnt=LCNT))
    srd(k, SWO, 22, 23, 448 * 896)
    srd(k, SPHI, 20, 21, 16 * 1568)
    k.I("buffer_load_dwordx4 v%d, s[%d:%d], s16 offen lds" % (vL16, SPHI, SPHI + 3))
    for f in range(2): ld(ar(QB + 4 * f, 4), sPQ, 1024 * f)
    def pload(blk, pos):
        for q in range(2): ld(vr(PART + 8 * pos + 4 * q, 4), sPB, 1024 * q)
        k.I("s_add_u32 s%d, s%d, 8192" % (sPB, sPB))
    DEPTH = opt("hdepth", 1)
    pos = lambda blk: 0 if blk == 0 else 1 + (blk - 1) % 8
    BAT = opt("hbat", 1)
    nb = 16 // BAT
    for blk in range(BAT): pload(blk, pos(blk))
    for i in range(12, 16):
        k.I("v_mov_b32 v%d, 0" % (EP + i))
        k.I("v_mov_b32 v%d, 0" % (EM + i))
    for bt in range(nb):
        if DEPTH and bt + 1 < nb:
            for blk in range(BAT * (bt + 1), BAT * (bt + 2)): pload(blk, pos(blk))
        k.I("s_waitcnt vmcnt(%d)" % (2 * BAT if (DEPTH and bt + 1 < nb) else 0))
        for blk in range(max(BAT * bt, 1), BAT * (bt + 1)):
            for q in range(4):
                k.I(pk("v_pk_add_f32", PART + 2 * q, PART + 2 * q, PART + 8 * pos(blk) + 2 * q))
        if not DEPTH and bt + 1 < nb:
            for blk in range(BAT * (bt + 1), BAT * (bt + 2)): pload(blk, pos(blk))
    for q in range(4):
        k.I("v_cvt_pk_bf16_f32 v%d, v%d, v%d" % (T + q, PART + 2 * q, PART + 2 * q + 1))
    exec_both(k, 0x20000000)
    for q in range(4): k.I("v_mov_b32 v%d, 0x3f803f80" % (T + q))
    k.I(EXEC_ALL)
    k.I("ds_write_b128 v2, v[%d:%d] offset:%d" % (T, T + 3, LKV))
    if opt("wopf", 1):
        k.I("buffer_load_dword v%d, v%d, s[%d:%d], s3 offen" % (T + 11, T + 10, SWO, SWO + 3))
    k.I("""
    v_mov_b32 v{a}, {lcnt}
    v_mov_b32 v{b}, 1
    s_mov_b64 exec, 1
    s_waitcnt lgkmcnt(0)
    ds_add_u32 v{a}, v{b}
    L2_poll:
    ds_read_b32 v{b}, v{a}
    s_waitcnt lgkmcnt(0)
    v_cmp_ne_u32 vcc, 4, v{b}
    s_cbranch_vccnz L2_poll
    s_mov_b64 exec, -1
    """.format(a=T + 4, b=T + 5, lcnt=LCNT))
    for ff in range(2):
        for jj in range(2):
            r = PHI + 4 * ff + 2 * jj
            k.I("ds_read_b64_tr_b16 a[%d:%d], v3 offset:%d" % (r, r + 1, LPHI + (16 * ff + 8 * jj) * 56))
    for f in range(4):
        k.I("ds_read_b128 a[%d:%d], v%d offset:%d" % (KVF + 4 * f, KVF + 4 * f + 3, vL16, LKV + 1024 * f))
    if HM == 3: k.I("s_endpgm")
    k.I("s_setprio %d" % opt("hprio2", 1))
    k.I("s_waitcnt lgkmcnt(4)")
    k.I(mfma(vr(PQ, 16), ar(PHI, 4), ar(QB, 4), 0))
    k.I(mfma(vr(PQ, 16), ar(PHI + 4, 4), ar(QB + 4, 4)))
    feature_map(k, PQ, FQ, FQ + 8, EP, EM, T, sL, False)
    k.I("s_waitcnt lgkmcnt(0)")
    for f in range(4):
        k.I(mfma(vr(NP if f < 2 else NM, 16), ar(KVF + 4 * f, 4), vr(FQ + 4 * f, 4), 0 if f % 2 == 0 else None))
    bcast_hi(NP + 13, T, T + 2)
    bcast_hi(NM + 13, T + 1, T + 4)
    k.I("v_rcp_f32 v%d, v%d" % (T + 2, T + 2))
    k.I("v_rcp_f32 v%d, v%d" % (T + 4, T + 4))
    for i in range(8):
        k.I(pk("v_pk_mul_f32", NP + 2 * i, NP + 2 * i, T + 2, " op_sel_hi:[1,0]"))
    for i in range(8):
        k.I("v_pk_fma_f32 v[%d:%d], v[%d:%d], v[%d:%d], v[%d:%d] op_sel_hi:[1,0,1]" %
            (NP + 2 * i, NP + 2 * i + 1, NM + 2 * i, NM + 2 * i + 1, T + 4, T + 5, NP + 2 * i, NP + 2 * i + 1))
    normalise(NP, FB, sOA, True)
    k.I("s_endpgm")

    k.label("L2_slow")
    SS, QQ = S["b"], Q["b"]
    exec_hi(k)
    k.I("v_mov_b32 v%d, 0" % (QQ + 6))
    k.I("v_mov_b32 v%d, 0" % (QQ + 7))
    k.I(EXEC_ALL)
    k.I("v_mov_b32 v%d, 0xff800000" % T)
    k.I("s_mov_b32 s%d, s%d" % (sP, sKVB))
    k.I("s_add_u32 s%d, s%d, 0x40000" % (sTMP, sKVB))
    k.label("L2_slow1")
    ld(ar(0, 4), sP, 0); ld(ar(4, 4), sP, 1024)
    k.I("s_waitcnt vmcnt(0)")
    k.I(mfma(vr(SS, 16), ar(0, 4), vr(QQ, 4), 0))
    k.I(mfma(vr(SS, 16), ar(4, 4), vr(QQ + 4, 4)))
    for i in range(0, 16, 2):
        k.I("v_max3_f32 v%d, v%d, v%d, v%d" % (T, T, SS + i, SS + i + 1))
    k.I("s_add_u32 s%d, s%d, 4096" % (sP, sP))
    k.I("s_cmp_lt_u32 s%d, s%d" % (sP, sTMP))
    k.I("s_cbranch_scc1 L2_slow1")
    xhalf(k, "v_max_f32", T, T + 1)
    neg_max_pieces(k, T, T + 1, T + 2, QQ + 6, QQ + 7, sMASK)
    for i in range(16): k.I("v_mov_b32 v%d, 0" % (OB + i))
    k.I("s_mov_b32 s%d, s%d" % (sP, sKVB))
    k.label("L2_slow2")
    for f in range(4): ld(ar(4 * f, 4), sP, 1024 * f)
    k.I("s_waitcnt vmcnt(0)")
    k.I(mfma(vr(SS, 16), ar(0, 4), vr(QQ, 4), 0))
    k.I(mfma(vr(SS, 16), ar(4, 4), vr(QQ + 4, 4)))
    for i in range(16): k.I("v_exp_f32 v%d, v%d" % (SS + i, SS + i))
    cvt8(k, P["a"], SS)
    k.I(mfma(vr(OB, 16), ar(8, 4), vr(P["a"], 4)))
    k.I(mfma(vr(OB, 16), ar(12, 4), vr(P["a"] + 4, 4)))
    k.I("s_add_u32 s%d, s%d, 4096" % (sP, sP))
    k.I("s_cmp_lt_u32 s%d, s%d" % (sP, sTMP))
    k.I("s_cbranch_scc1 L2_slow2")
    k.I("s_nop 7\ns_nop 7")
    k.I("s_branch L2_norm")
    return k, dict(grid=256, block=512, lds=LCNT + 64, vgpr=128, agpr=opt("k2agpr", 128), sgpr=102 if STAMP else 40)

def gen_k3():
    k = Kernel("oproj_kernel")
    S_WO, S_WS, S_OUT = 8, 12, 16
    sW, sBR, sRB, sCG, sTMP, sWO, sO, sM = 20, 21, 22, 23, 24, 25, 26, 27
    vL, vL16, vWD, vWR, vWR1, vST = 1, 2, 3, 4, 5, 6
    ACC = (16, 32)
    WF = 48
    T = 80
    NR = 480
    vm = VmQueue(k)
    k.I("""
    s_cmp_ge_u32 s2, 224
    s_cbranch_scc1 L3_end
    s_and_b32 s3, s2, 7
    s_lshr_b32 s{br}, s3, 2
    s_lshl_b32 s{tmp}, s{br}, 5
    s_add_u32 s{tmp}, s{tmp}, 16
    s_load_dwordx2 s[4:5], s[0:1], s{tmp}
    s_load_dwordx2 s[6:7], s[0:1], 72
    s_load_dwordx2 s[0:1], s[0:1], 56
    v_lshrrev_b32 v2, 6, v0
    v_and_b32 v{l}, 63, v0
    v_readfirstlane_b32 s{w}, v2
    v_lshlrev_b32 v{l16}, 4, v{l}
    v_lshrrev_b32 v{a}, 3, v{l}
    v_mul_u32_u24 v{a}, 896, v{a}
    v_and_b32 v{b}, 7, v{l}
    v_bfe_u32 v{c}, v{l}, 4, 1
    v_lshlrev_b32 v{c}, 2, v{c}
    v_xor_b32 v{b}, v{b}, v{c}
    v_lshl_add_u32 v{wd}, v{b}, 4, v{a}
    s_and_b32 s{rb}, s3, 3
    s_lshl_b32 s{rb}, s{rb}, 2
    s_bfe_u32 s{tmp}, s2, 0x20003
    s_add_u32 s{rb}, s{rb}, s{tmp}
    s_lshr_b32 s{cg}, s2, 5
    s_mul_i32 s{wo}, s{w}, {r8}
    s_lshl_b32 s{m}, s{w}, 10
    s_lshl_b32 s{tmp}, s{cg}, 7
    s_add_u32 s{wo}, s{wo}, s{tmp}
    s_lshl_b32 s{o}, s{br}, 6
    s_lshl_b32 s{rb}, s{rb}, 2
    s_add_u32 s{rb}, s{rb}, s{w}
    s_add_u32 s{o}, s{o}, s{rb}
    s_lshl_b32 s{o}, s{o}, 15
    s_add_u32 s{o}, s{o}, 0x{ooff:x}
    s_waitcnt lgkmcnt(0)
    """.format(br=sBR, tmp=sTMP, l=vL, w=sW, l16=vL16, a=T, b=T + 1, c=T + 2, wd=vWD, rb=sRB, cg=sCG, wo=sWO, m=sM, r8=8 * 896,
               o=sO, ooff=O_OFF))
    st = Stamper(k, 2, 4, 94); st.start()
    srd(k, S_WO, 4, 5, 448 * 896)
    srd(k, S_WS, 6, 7, WS_USED)
    def wdma(n):
        k.I("s_add_u32 m0, s%d, %d" % (sM, n * 4096))
        k.I("s_add_u32 s%d, s%d, %d" % (sTMP, sWO, n * 32 * 896))
        k.I("buffer_load_dwordx4 v%d, s[%d:%d], s%d offen lds" % (vWD, S_WO, S_WO + 3, sTMP))
        vm.add("w%d" % n)
    def oload(h, f):
        if h % 2 == 0 and f == 0:
            k.I("s_add_u32 s%d, s%d, %d" % (28, sO, h * 2048))
        k.I("buffer_load_dwordx4 a[%d:%d], v%d, s[%d:%d], s28 offen offset:%d" % (8 * h + 4 * f, 8 * h + 4 * f + 3, vL16, S_WS, S_WS + 3, (h % 2) * 2048 + 1024 * f))
        vm.add("o%d" % h)
    AHEAD = opt("ahead", 5)
    wneed = lambda h: (28 * h + 31) // 32
    nextw = 0
    def issue_head(h):
        nonlocal nextw
        L = []
        while nextw <= wneed(h):
            L.append(lambda n=nextw: wdma(n)); nextw += 1
        L.append(lambda: oload(h, 0)); L.append(lambda: oload(h, 1))
        return L
    for h in range(AHEAD):
        for f in issue_head(h): f()
    srd(k, S_OUT, 0, 1, 2048 * 1792)
    k.I("""
    v_lshrrev_b32 v{h}, 5, v{l}
    v_lshlrev_b32 v{wr}, 9, v{h}
    v_bfe_u32 v{c}, v{l}, 2, 2
    v_lshl_add_u32 v{wr}, v{c}, 7, v{wr}
    v_bfe_u32 v{c}, v{l}, 3, 1
    v_lshl_add_u32 v{wr}, v{c}, 6, v{wr}
    v_bfe_u32 v{c}, v{l}, 4, 1
    v_lshl_add_u32 v{wr}, v{c}, 5, v{wr}
    v_and_b32 v{c}, 3, v{l}
    v_lshl_add_u32 v{wr}, v{c}, 3, v{wr}
    v_xor_b32 v{wr1}, 64, v{wr}
    v_and_b32 v{c}, 31, v{l}
    v_mul_u32_u24 v{c}, 1792, v{c}
    v_lshl_add_u32 v{st}, v{h}, 4, v{c}
    s_mul_i32 s{rb}, s{rb}, {r32}
    s_mul_i32 s{tmp}, s{br}, 896
    s_add_u32 s{rb}, s{rb}, s{tmp}
    s_lshl_b32 s{tmp}, s{cg}, 7
    s_add_u32 s{rb}, s{rb}, s{tmp}
    """.format(h=T, c=T + 1, l=vL, wr=vWR, wr1=vWR1, st=vST, rb=sRB, r32=32 * 1792, tmp=sTMP, br=sBR, cg=sCG))
    def wread(h):
        b = WF + 16 * (h & 1)
        for f in range(2):
            for c in range(2):
                for jj in range(2):
                    r = b + 8 * c + 4 * f + 2 * jj
                    k.I("ds_read_b64_tr_b16 v[%d:%d], v%d offset:%d" % (r, r + 1, vWR1 if c else vWR, (28 * h + 16 * f + 8 * jj) * 128))
    SYNC = opt("sync", 2)
    def sync(h):
        vm.wait(["w%d" % wneed(min(h + SYNC - 1, 15))])
        k.I("s_barrier")
    st()
    sync(0); st(); wread(0)
    for h in range(16):
        nl = 0
        if h + 1 < 16:
            if (h + 1) % SYNC == 0:
                sync(h + 1)
                if (h + 1) % 4 == 0: st()
            wread(h + 1); nl = 8
        vm.wait(["o%d" % h])
        k.I("s_waitcnt lgkmcnt(%d)" % nl)
        pend = issue_head(h + AHEAD) if h + AHEAD < 16 else []
        b = WF + 16 * (h & 1)
        for f in range(2):
            for c in range(2):
                k.I(mfma(vr(ACC[c], 16), vr(b + 8 * c + 4 * f, 4), ar(8 * h + 4 * f, 4), 0 if (h == 0 and f == 0) else None))
                if pend: pend.pop(0)()
        assert not pend
    st()
    for c in range(2):
        F = WF + 8 * c
        cvt8(k, F, ACC[c])
        for gp in range(2):
            k.I("v_permlane32_swap_b32 v%d, v%d" % (F + 4 * gp, F + 4 * gp + 2))
            k.I("v_permlane32_swap_b32 v%d, v%d" % (F + 4 * gp + 1, F + 4 * gp + 3))
            k.I("buffer_store_dwordx4 v[%d:%d], v%d, s[%d:%d], s%d offen offset:%d" % (F + 4 * gp, F + 4 * gp + 3, vST, S_OUT, S_OUT + 3, sRB, 64 * c + 32 * gp) + ["", " sc1", " sc0 sc1", " nt", " sc1 nt"][opt("osc", 0)])
    st.dump(S_WS)
    k.label("L3_end")
    k.I("s_endpgm")
    return k, dict(grid=224, block=256, lds=NR * 128, vgpr=96, agpr=128, sgpr=102 if STAMP else 32)

HEADER = open("cdna_kernels/%s.s.ref" % NAME).read().split("; Override launch geometry")[0]

def build(kernels):
    out = [HEADER.rstrip("\n")]
    for k, cfg in kernels:
        out.append("; @launch kernel=%s grid=(%d,1,1) block=(%d,1,1) lds=%d" % (k.name, cfg["grid"], cfg["block"], cfg["lds"]))
    out.append('.amdgcn_target "amdgcn-amd-amdhsa--gfx950"')
    out.append(".text")
    for k, cfg in kernels:
        k.fix_hazards(verbose=("-v" in sys.argv))
        out += [".globl %s" % k.name, ".p2align %d" % opt("kalign", 12), ".type %s,@function" % k.name, "%s:" % k.name, k.text()]
    out.append('.section .rodata,"a"')
    for k, cfg in kernels:
        acc = (cfg["vgpr"] + 3) // 4 * 4
        out += [".p2align 6", ".amdhsa_kernel %s" % k.name,
                "  .amdhsa_next_free_vgpr %d" % (acc + cfg["agpr"] if cfg["agpr"] else cfg["vgpr"]),
                "  .amdhsa_next_free_sgpr %d" % cfg["sgpr"],
                "  .amdhsa_accum_offset %d" % acc,
                "  .amdhsa_group_segment_fixed_size 0",
                "  .amdhsa_kernarg_size 80",
                "  .amdhsa_user_sgpr_count 2",
                "  .amdhsa_user_sgpr_kernarg_segment_ptr 1",
                "  .amdhsa_system_sgpr_workgroup_id_x 1",
                ".end_amdhsa_kernel"]
    return "\n".join(out) + "\n"

if __name__ == "__main__":
    txt = build([gen_k1(), gen_k2(), gen_k3()])
    path = "cdna_kernels/%s.s" % NAME
    for a in sys.argv[1:]:
        if a.endswith(".s"): path = a
    open(path, "w").write(txt)
    print("wrote", path, len(txt), "bytes")
```

```python
import sys, struct
from asmlib import Kernel, vr, ar, sr

NAME = "concat_heads__mha_block__linear_kernel_hedgehog__prompt"
def f2u(x): return struct.unpack("<I", struct.pack("<f", x))[0]
def opt(name, default):
    for a in sys.argv[1:]:
        if a.startswith(name + "="): return int(a.split("=")[1])
    return default

KV_OFF   = 0
Q_OFF    = 4 << 20
QB_OFF   = 6 << 20
KVP_OFF  = 8 << 20
O_OFF    = 10 << 20
WS_USED  = 14 << 20

LOG2E = 1.4426950408889634
QSCALE = 28 ** -0.5 * LOG2E
MOFF = 40.0
ROUND_PQ = opt("round", 0)
ROT = opt("rot", 1)
SC = ["", " sc1", " sc0 sc1", " nt", " sc1 nt"][opt("sc", 1)]

STAMP = "-stamp" in sys.argv
STAMP_OFF = 16 << 20
class Stamper:
    def __init__(self, k, kidx, nwaves, va):
        self.k, self.kidx, self.n, self.nw, self.va = k, kidx, 0, nwaves, va
    def start(self):
        if not STAMP: return
        self.k.I("s_memrealtime s[96:97]")
        self.k.I("s_mov_b32 s98, s2")
        self.k.I("v_mov_b32 v%d, v0" % (self.va + 1))
        self()
    def __call__(self):
        if not STAMP: return
        self.k.I("s_memtime s[%d:%d]" % (64 + 2 * self.n, 65 + 2 * self.n)); self.n += 1
        assert self.n <= 15
    def dump(self, S_WS):
        if not STAMP: return
        k, a, b = self.k, self.va, self.va + 1
        sv = self.n
        self()
        k.I("s_waitcnt vmcnt(0)")
        self()
        k.I("s_memrealtime s[94:95]")
        k.I("s_waitcnt lgkmcnt(0)")
        k.I("s_sub_u32 s94, s94, s96")
        k.I("s_mov_b32 s%d, 0x2000000" % (S_WS + 2))
        k.I("v_lshrrev_b32 v%d, 6, v%d" % (b, b))
        k.I("s_mul_i32 s98, s98, %d" % self.nw)
        k.I("v_add_u32 v%d, s98, v%d" % (b, b))
        k.I("v_lshlrev_b32 v%d, 6, v%d" % (b, b))
        k.I("s_mov_b32 s98, 0x%x" % (STAMP_OFF + (self.kidx << 20)))
        k.I("s_mov_b64 exec, 1")
        for i in range(15):
            k.I(("s_sub_u32 s99, s%d, s64" % (64 + 2 * i) if i else "s_mov_b32 s99, s96") if i < self.n else "s_mov_b32 s99, 0")
            k.I("v_mov_b32 v%d, s99" % a)
            k.I("buffer_store_dword v%d, v%d, s[%d:%d], s98 offen offset:%d" % (a, b, S_WS, S_WS + 3, 4 * i))
        k.I("v_mov_b32 v%d, s94" % a)
        k.I("buffer_store_dword v%d, v%d, s[%d:%d], s98 offen offset:60" % (a, b, S_WS, S_WS + 3))
        self.n = sv

MF = "v_mfma_f32_32x32x16_bf16"
def mfma(d, a, b, c=None):
    return "%s %s, %s, %s, %s" % (MF, d, a, b, d if c is None else "0")

EXEC_ALL = "s_mov_b64 exec, -1"
EXEC_LO = "s_mov_b64 exec, 0xffffffff"
def exec_hi(k): k.I("s_mov_b32 exec_lo, 0\ns_mov_b32 exec_hi, -1")
def exec_both(k, m): k.I("s_mov_b32 exec_lo, 0x%x\ns_mov_b32 exec_hi, 0x%x" % (m, m))

def srd(k, s, lo, hi, nbytes):
    k.I("s_mov_b32 s%d, s%d" % (s, lo))
    k.I("s_mov_b32 s%d, s%d" % (s + 1, hi))
    k.I("s_mov_b32 s%d, 0x%x" % (s + 2, nbytes))
    k.I("s_mov_b32 s%d, 0x00020000" % (s + 3))

def cvt8(k, dst, src):
    for i in range(8):
        k.I("v_cvt_pk_bf16_f32 v%d, v%d, v%d" % (dst + i, src + 2 * i, src + 2 * i + 1))
def pk(op, d, a, b, mods=""):
    return "%s v[%d:%d], v[%d:%d], v[%d:%d]%s" % (op, d, d + 1, a, a + 1, b, b + 1, mods)

def xhalf(k, op, x, t):
    k.I("v_mov_b32 v%d, v%d" % (t, x))
    k.I("v_permlane32_swap_b32 v%d, v%d" % (x, t))
    k.I("%s v%d, v%d, v%d" % (op, x, x, t))

def neg_max_pieces(k, m, t0, t1, d6, d7, s_mask):
    k.I("v_and_b32 v%d, s%d, v%d" % (t0, s_mask, m))
    k.I("v_sub_f32 v%d, v%d, v%d" % (m, m, t0))
    k.I("v_and_b32 v%d, s%d, v%d" % (t1, s_mask, m))
    k.I("v_sub_f32 v%d, v%d, v%d" % (m, m, t1))
    exec_hi(k)
    k.I("v_cvt_pk_bf16_f32 v%d, -v%d, -v%d" % (d6, t0, t1))
    k.I("v_cvt_pk_bf16_f32 v%d, -v%d, 0" % (d7, m))
    k.I(EXEC_ALL)

_cp = [0]
def code_prefetch(k, s0, vt, vlane, swave, start, end, nwaves):
    _cp[0] += 1
    lab = "Lcp%d" % _cp[0]
    if start is None: start = lab
    k.I("s_getpc_b64 s[%d:%d]" % (s0, s0 + 1))
    k.label(lab)
    k.I("s_add_u32 s%d, s%d, %s-%s" % (s0, s0, start, lab))
    k.I("s_addc_u32 s%d, s%d, %s" % (s0 + 1, s0 + 1, "0"))
    k.I("s_mov_b32 s%d, %s-%s" % (s0 + 2, end, start))
    k.I("s_mov_b32 s%d, 0x00020000" % (s0 + 3))
    k.I("v_mul_u32_u24 v%d, %d, v%d" % (vt, 128 * nwaves, vlane))
    k.I("s_lshl_b32 s%d, s%d, 7" % (s0 + 4, swave))
    k.I("buffer_load_dword v%d, v%d, s[%d:%d], s%d offen" % (vt, vt, s0, s0 + 3, s0 + 4))

class VmQueue:
    def __init__(self, k): self.k, self.q = k, []
    def add(self, tag): self.q.append(tag)
    def count_for(self, tags):
        idx = max(i for i, t in enumerate(self.q) if t in tags)
        return len(self.q) - 1 - idx
    def wait(self, tags):
        n = self.count_for(tags)
        assert n <= 63
        self.k.I("s_waitcnt vmcnt(%d)" % n)

def feature_map(k, D, FP, FM, EP, EM, T, sL, norm):
    MX, MN, TT = T, T + 2, T + 4
    for (op3, op2, r) in (("v_max3_f32", "v_max_f32", MX), ("v_min3_f32", "v_min_f32", MN)):
        k.I("%s v%d, v%d, v%d, v%d" % (op3, r, D, D + 1, D + 2))
        for i in range(3, 11, 2):
            k.I("%s v%d, v%d, v%d, v%d" % (op3, r, r, D + i, D + i + 1))
        k.I("%s v%d, v%d, v%d" % (op2, r, r, D + 11))
    k.I(EXEC_LO)
    for (op3, r) in (("v_max3_f32", MX), ("v_min3_f32", MN)):
        k.I("%s v%d, v%d, v%d, v%d" % (op3, r, r, D + 12, D + 13))
        k.I("%s v%d, v%d, v%d, v%d" % (op3, r, r, D + 14, D + 15))
    k.I(EXEC_ALL)
    k.I("v_mov_b32 v%d, v%d" % (TT, MX))
    k.I("v_mov_b32 v%d, v%d" % (TT + 1, MN))
    k.I("v_permlane32_swap_b32 v%d, v%d" % (MX, TT))
    k.I("v_permlane32_swap_b32 v%d, v%d" % (MN, TT + 1))
    k.I("v_max_f32 v%d, v%d, v%d" % (MX, MX, TT))
    k.I("v_min_f32 v%d, v%d, v%d" % (MN, MN, TT + 1))
    k.I("v_mul_f32 v%d, s%d, v%d" % (MX, sL, MX))
    k.I("v_mul_f32 v%d, s%d, v%d" % (MN, sL, MN))
    def args(i):
        k.I("v_pk_fma_f32 v[%d:%d], v[%d:%d], s[%d:%d], v[%d:%d] op_sel_hi:[1,1,0] neg_lo:[0,0,1] neg_hi:[0,0,1]" %
            (EP + 2 * i, EP + 2 * i + 1, D + 2 * i, D + 2 * i + 1, sL, sL + 1, MX, MX + 1))
        k.I("v_pk_fma_f32 v[%d:%d], v[%d:%d], s[%d:%d], v[%d:%d] op_sel_hi:[1,1,0] neg_lo:[1,0,0] neg_hi:[1,0,0]" %
            (EM + 2 * i, EM + 2 * i + 1, D + 2 * i, D + 2 * i + 1, sL, sL + 1, MN, MN + 1))
    def exps(lo, hi):
        for i in range(lo, hi):
            k.I("v_exp_f32 v%d, v%d" % (EP + i, EP + i))
            k.I("v_exp_f32 v%d, v%d" % (EM + i, EM + i))
    for i in range(6): args(i)
    k.I(EXEC_LO)
    args(6); args(7); exps(12, 16)
    k.I(EXEC_ALL)
    exps(0, 12)
    if norm:
        for (E, r) in ((EP, MX), (EM, MN)):
            k.I(pk("v_pk_add_f32", r, E + 12, E + 14))
            for i in range(6):
                k.I(pk("v_pk_add_f32", r, r, E + 2 * i))
            k.I("v_add_f32 v%d, v%d, v%d" % (r, r, r + 1))
        k.I("v_mov_b32 v%d, v%d" % (TT, MX))
        k.I("v_mov_b32 v%d, v%d" % (TT + 1, MN))
        k.I("v_permlane32_swap_b32 v%d, v%d" % (MX, TT))
        k.I("v_permlane32_swap_b32 v%d, v%d" % (MN, TT + 1))
        k.I("v_add_f32 v%d, v%d, v%d" % (MX, MX, TT))
        k.I("v_add_f32 v%d, v%d, v%d" % (MN, MN, TT + 1))
        k.I("v_rcp_f32 v%d, v%d" % (MX, MX))
        k.I("v_rcp_f32 v%d, v%d" % (MN, MN))
        for (E, r, F) in ((EP, MX, FP), (EM, MN, FM)):
            for i in range(8):
                k.I(pk("v_pk_mul_f32", E + 2 * i, E + 2 * i, r, " op_sel_hi:[1,0]"))
            cvt8(k, F, E)
    else:
        cvt8(k, FP, EP); cvt8(k, FM, EM)

def gen_k1():
    k = Kernel("qkv_kernel")
    secs = {"entry": k.items}
    def sec(name): k.items = secs.setdefault(name, [])
    OOB = 0x40000000
    PSLOT, PX, PSCR = 48128, 28672, 45056
    KSLOT, KX, KPHI = 32768, 16384, 131072
    LDS = 135168
    S_SRC, S_WS, S_PHI = 12, 16, 20
    sW, sIDX, sG, sRB, sTMP, sM, sROT, sKB = 24, 25, 26, 27, 28, 29, 30, 31
    sSOF, sSTEP, sB1, sB2, sCUR, sL, sHEAD, sDST = 32, 33, 34, 35, 36, 54, 40, 41
    sC, sP6, sP7, sDSH = 42, 44, 45, 46
    vL, vL16, vD = 1, 2, 3
    vXR, vWR = 10, 22
    vPADV, vPH = 25, 26
    T = 28
    ACC = 36
    XF, WF = 100, 116
    k.I("""
    s_cmp_ge_u32 s2, 256
    s_cbranch_scc1 L1_end
    s_bfe_u32 s3, s2, 0x20003
    s_lshr_b32 s{tmp}, s2, 5
    s_and_b32 s{tmp}, s{tmp}, 4
    s_or_b32 s3, s3, s{tmp}
    s_cmp_ge_u32 s3, 3
    s_cselect_b32 s{tmp}, 24, 0
    s_load_dwordx4 s[4:7], s[0:1], s{tmp}
    s_load_dwordx2 s[8:9], s[0:1], 72
    s_load_dwordx2 s[10:11], s[0:1], 40
    v_lshrrev_b32 v2, 6, v0
    v_and_b32 v{l}, 63, v0
    v_readfirstlane_b32 s{w}, v2
    s_bfe_u32 s{rb}, s2, 0x20001
    s_lshl_b32 s{rb}, s{rb}, 2
    s_bfe_u32 s{idx}, s2, 0x20005
    s_add_u32 s{rb}, s{rb}, s{idx}
    s_and_b32 s{idx}, s2, 1
    """.format(tmp=sTMP, l=vL, w=sW, idx=sIDX, rb=sRB))
    st = Stamper(k, 0, 8, 214); st.start()
    k.I("v_lshlrev_b32 v%d, 4, v%d" % (vL16, vL))
    TOUCH = opt("touch", 0)
    if TOUCH:
        k.I("s_cmp_eq_u32 s%d, 8" % sW)
        k.I("s_cbranch_scc1 L1_touch")
    k.I("s_cmp_ge_u32 s3, 4")
    k.I("s_cbranch_scc1 L1_kv")

    def x_voffsets():
        k.I("""
        v_lshrrev_b32 v{a}, 3, v{l}
        v_mul_u32_u24 v{a}, 896, v{a}
        v_and_b32 v{b}, 7, v{l}
        v_lshrrev_b32 v{c}, 4, v{l}
        v_xor_b32 v{b}, v{b}, v{c}
        v_lshl_add_u32 v{x0}, v{b}, 4, v{a}
        v_xor_b32 v{b}, 4, v{b}
        v_lshl_add_u32 v{x1}, v{b}, 4, v{a}
        v_add_u32 v{x1}, 7168, v{x1}
        v_add_u32 v{x2}, 14336, v{x0}
        v_add_u32 v{x3}, 14336, v{x1}
        """.format(a=T, b=T + 1, c=T + 2, l=vL, x0=vD, x1=vD + 1, x2=vD + 2, x3=vD + 3))
    GROUPS = [int(c) for c in str(opt("groups", 43))]
    assert sum(GROUPS) == 7
    sROTS = [sROT, 47, 37, 39]
    ginfo = []
    base = 0
    for gi, n in enumerate(GROUPS):
        for j in range(n): ginfo.append((gi, base, n, j))
        base += n
    def rot_from(expr_regs):
        a, b = expr_regs
        k.I("s_add_u32 s%d, s3, s%d" % (sKB, b))
        for gi, n in enumerate(GROUPS):
            if n == 1 or not ROT:
                k.I("s_mov_b32 s%d, 0" % sROTS[gi]); continue
            mg = -(-256 // n)
            assert all((x * mg) >> 8 == x // n for x in range(40))
            k.I("s_mul_i32 s%d, s%d, %d" % (sTMP, sKB, mg))
            k.I("s_lshr_b32 s%d, s%d, 8" % (sTMP, sTMP))
            k.I("s_mul_i32 s%d, s%d, %d" % (sTMP, sTMP, n))
            k.I("s_sub_u32 s%d, s%d, s%d" % (sROTS[gi], sKB, sTMP))
    def src_srd(is_x_label):
        pass
    def read_addrs(nslot, slot, xoff, wstride, wextra_sgpr, nbase):
        k.I("""
        v_and_b32 v{s}, 31, v{l}
        v_lshrrev_b32 v{h}, 5, v{l}
        v_bfe_u32 v{c}, v{l}, 1, 3
        v_xor_b32 v{c}, v{c}, v{h}
        v_lshlrev_b32 v{d}, 7, v{s}
        v_add_u32 v{d}, s{m}, v{d}
        v_lshl_add_u32 v{r0}, v{c}, 4, v{d}
        v_xor_b32 v{e}, 2, v{c}
        v_lshl_add_u32 v{r1}, v{e}, 4, v{d}
        v_xor_b32 v{e}, 4, v{c}
        v_lshl_add_u32 v{r2}, v{e}, 4, v{d}
        v_xor_b32 v{e}, 6, v{c}
        v_lshl_add_u32 v{r3}, v{e}, 4, v{d}
        v_bfe_u32 v{c}, v{l}, 4, 1
        v_lshlrev_b32 v{d}, 5, v{c}
        v_and_b32 v{c}, 3, v{l}
        v_lshl_add_u32 v{d}, v{c}, 3, v{d}
        v_bfe_u32 v{c}, v{l}, 2, 2
        v_lshl_add_u32 v{e}, v{h}, 3, v{c}
        v_mul_u32_u24 v{e}, {ws}, v{e}
        v_add3_u32 v{wr}, v{e}, v{d}, s{wx}
        v_mov_b32 v{f}, 0x3f803f80
        v_cmp_eq_u32 vcc, 28, v{s}
        """.format(s=T, h=T + 1, c=T + 2, d=T + 3, e=T + 4, f=T + 5, l=vL, m=sM, r0=vXR, r1=vXR + 1, r2=vXR + 2, r3=vXR + 3,
                   ws=wstride, wr=vWR, wx=wextra_sgpr))
        for b in range(1, nbase):
            for kk in range(4): k.I("v_add_u32 v%d, %d, v%d" % (vXR + 4 * b + kk, b * slot, vXR + kk))
            k.I("v_add_u32 v%d, %d, v%d" % (vWR + b, b * slot, vWR))
        k.I("v_cndmask_b32 v%d, 0, v%d, vcc" % (vPADV, T + 5))

    def gemm(NS, SLOT, NDMA, reads, mfmas, setup):
        vm = VmQueue(k)
        def dma(o):
            def one(i):
                def f():
                    if i == 0:
                        gi, gb, gn, gj = ginfo[o]
                        k.I("s_add_u32 s%d, s%d, %d" % (sKB, sROTS[gi], gb + gj))
                        k.I("s_sub_u32 s%d, s%d, %d" % (sTMP, sKB, gn))
                        k.I("s_cmp_ge_u32 s%d, %d" % (sKB, gb + gn))
                        k.I("s_cselect_b32 s%d, s%d, s%d" % (sKB, sTMP, sKB))
                        k.I("s_mul_i32 s%d, s%d, s%d" % (sCUR, sKB, sSTEP))
                        k.I("s_add_u32 s%d, s%d, s%d" % (sCUR, sCUR, sSOF))
                    k.I("s_add_u32 m0, s%d, %d" % (sB1 if i < 4 else sB2, (o % NS) * SLOT + 1024 * (i % 4)))
                    k.I("s_nop 0")
                    k.I("buffer_load_dwordx4 v%d, s[%d:%d], s%d offen lds" % (vD + i, S_SRC, S_SRC + 3, sCUR)); vm.add(o)
                return f
            return [one(i) for i in range(NDMA)]
        for f in dma(0): f()
        PRE1 = opt("pre1", 1)
        if PRE1:
            k.I("s_barrier")
            for f in dma(1): f()
        k.I("s_branch L1_kset")
        sec("pv")
        k.label("L1_kset")
        if opt("cpf", 2) == 1:
            code_prefetch(k, 48, 27, vL, sW, "attn_kernel", "L3_end", 8); vm.add("code")
        setup()
        k.I("s_branch L1_kmain")
        sec("kmain")
        k.label("L1_kmain")
        st()
        vm.wait([0])
        k.I("s_barrier")
        st()
        reads(0, 0)
        pend = []
        if not PRE1:
            for f in dma(1): f()
        for o in range(2, NS): pend += dma(o)
        for ks in range(28):
            o, kk = ks >> 2, ks & 3
            if kk == 3 and o < 6:
                assert vm.q.count(o + 1) == NDMA
                k.I("s_waitcnt lgkmcnt(0)")
                vm.wait([o + 1])
                k.I("s_barrier")
                st()
                reads(o + 1, 0)
                if o + NS <= 6: pend += dma(o + NS)
            elif ks < 27:
                n = reads(o, kk + 1)
                k.I("s_waitcnt lgkmcnt(%d)" % n)
            else:
                k.I("s_waitcnt lgkmcnt(0)")
            for m in mfmas(ks):
                k.I(m)
                if pend: pend.pop(0)()
        st()
    def store4(reg, soff, off, fl=SC):
        k.I("buffer_store_dwordx4 v[%d:%d], v%d, s[%d:%d], s%d offen offset:%d%s" % (reg, reg + 3, vL16, S_WS, S_WS + 3, soff, off, fl))
    PSC = opt("psc", 8)
    pfl = lambda tl: SC if tl < PSC else ""

    PS = 45056
    S_X2 = 56
    k.I("""
    s_lshl_b32 s{g}, s3, 1
    s_cmp_eq_u32 s3, 3
    s_cselect_b32 s{g}, 0, s{g}
    s_add_u32 s{g}, s{g}, s{idx}
    s_cmp_lt_u32 s{w}, 4
    s_cbranch_scc1 L1_pc
    s_sub_u32 s{w}, s{w}, 4
    s_mul_i32 s{sof}, s{w}, {r16}
    s_mul_i32 s{tmp}, s{g}, 448
    s_add_u32 s{sof}, s{sof}, s{tmp}
    s_lshl_b32 s{step}, s{rb}, 2
    s_add_u32 s{step}, s{step}, s{w}
    s_mul_i32 s{step}, s{step}, {r32}
    s_mul_i32 s{b1}, s{w}, 7168
    s_lshl_b32 s{b2}, s{w}, 12
    s_add_u32 s{b2}, s{b2}, {px}
    """.format(g=sG, idx=sIDX, rb=sRB, tmp=sTMP, w=sW, sof=sSOF, r16=16 * 2688, step=sSTEP, r32=32 * 896, b1=sB1, b2=sB2, px=PX))
    rot_from((sG, sRB))
    x_voffsets()
    vDW = 8
    for i in range(7):
        k.I("""
        v_add_u32 v{c}, {c0}, v{l}
        v_mul_u32_u24 v{r}, 2341, v{c}
        v_lshrrev_b32 v{r}, 16, v{r}
        v_mul_u32_u24 v{r}, {dl}, v{r}
        v_lshl_add_u32 v{d}, v{c}, 4, v{r}
        """.format(c=T, r=T + 1, c0=64 * i, l=vL, dl=2688 - 448, d=vDW + i))
    k.I("s_waitcnt lgkmcnt(0)")
    srd(k, S_SRC, 6, 7, 448 * 2688)
    srd(k, S_X2, 4, 5, 2048 * 896)
    vm = VmQueue(k)
    def pload(o):
        gi, gb, gn, gj = ginfo[o]
        k.I("s_add_u32 s%d, s%d, %d" % (sKB, sROTS[gi], gb + gj))
        k.I("s_sub_u32 s%d, s%d, %d" % (sTMP, sKB, gn))
        k.I("s_cmp_ge_u32 s%d, %d" % (sKB, gb + gn))
        k.I("s_cselect_b32 s%d, s%d, s%d" % (sKB, sTMP, sKB))
        k.I("s_lshl_b32 s%d, s%d, 7" % (sM, sKB))
        k.I("s_add_u32 s%d, s%d, s%d" % (sM, sM, sSTEP))
        k.I("s_mul_i32 s%d, s%d, %d" % (sCUR, sKB, 64 * 2688))
        k.I("s_add_u32 s%d, s%d, s%d" % (sCUR, sCUR, sSOF))
        for i in range(11):
            if i < 4:
                k.I("s_add_u32 m0, s%d, %d" % (sB2, (o % 3) * PS + 1024 * i))
                k.I("s_nop 0")
                k.I("buffer_load_dwordx4 v%d, s[%d:%d], s%d offen lds" % (vD + i, S_X2, S_X2 + 3, sM))
            else:
                k.I("s_add_u32 m0, s%d, %d" % (sB1, (o % 3) * PS + 1024 * (i - 4)))
                k.I("s_nop 0")
                k.I("buffer_load_dwordx4 v%d, s[%d:%d], s%d offen lds" % (vDW + i - 4, S_SRC, S_SRC + 3, sCUR))
            vm.add(o)
    pload(0); pload(1)
    if opt("pl2", 0): pload(2)
    for o in range(7):
        vm.wait([o])
        k.I("s_barrier")
        if o == 0 and not opt("pl2", 0): pload(2)
        if o >= 1 and o + 2 <= 6: pload(o + 2)
        if o == 5 and opt("cpf", 2) == 1: code_prefetch(k, 48, 27, vL, sW, "attn_kernel", "L3_end", 4)
    k.I("s_endpgm")

    sec("pqk")
    k.label("L1_pc")
    PA, PF = 36, 164
    if opt("cpf", 2) == 2: code_prefetch(k, 48, 27, vL, sW, None, "L3_end", 4)
    srd_done = False
    k.I("""
    s_and_b32 s{m}, s{w}, 1
    s_lshl_b32 s{m}, s{m}, 13
    s_add_u32 s{m}, s{m}, {px}
    s_lshr_b32 s{tmp}, s{w}, 1
    s_mul_i32 s{tmp}, s{tmp}, 224
    """.format(m=sM, w=sW, px=PX, tmp=sTMP))
    read_addrs(3, PS, PX, 448, sTMP, 1)
    for i in range(4): k.I("v_mov_b32 v%d, 0" % (PF + i))
    k.I("""
    s_and_b32 s{head}, s{g}, 1
    s_lshl_b32 s{head}, s{head}, 3
    s_and_b32 s{tmp}, s{w}, 2
    s_lshl_b32 s{tmp}, s{tmp}, 1
    s_add_u32 s{head}, s{head}, s{tmp}
    s_lshl_b32 s{dst}, s{head}, 6
    s_lshl_b32 s{tmp}, s{rb}, 2
    s_add_u32 s{dst}, s{dst}, s{tmp}
    s_and_b32 s{tmp}, s{w}, 1
    s_lshl_b32 s{tmp}, s{tmp}, 1
    s_add_u32 s{dst}, s{dst}, s{tmp}
    s_mov_b32 s{c0}, 0x{qs:x}
    s_mov_b32 s{c1}, 0x{qs:x}
    s_mov_b32 s{kb}, 7
    s_mov_b32 s{cur}, 0
    s_lshr_b32 s{tmp}, s{g}, 1
    s_cmp_eq_u32 s{tmp}, 1
    s_cselect_b32 s{p6}, 0x3f803f80, 0
    s_cselect_b32 s{p7}, 0x3f80, 0
    s_cselect_b32 s{dsh}, 12, 11
    s_cselect_b32 s{m}, {kvo}, {qo}
    s_cmp_eq_u32 s3, 3
    s_cselect_b32 s{m}, {qbo}, s{m}
    s_waitcnt lgkmcnt(0)
    """.format(head=sHEAD, g=sG, tmp=sTMP, w=sW, dst=sDST, rb=sRB, c0=sC, c1=sC + 1, qs=f2u(QSCALE), kb=sKB, cur=sCUR,
               p6=sP6, p7=sP7, dsh=sDSH, m=sM, kvo=KV_OFF, qo=Q_OFF, qbo=QB_OFF))
    for tl in range(8): k.I(mfma(vr(PA + 16 * tl, 16), vr(PF, 4), vr(PF, 4), 0))
    srd(k, S_WS, 8, 9, WS_USED)
    def p_reads(kk):
        b = PF + 24 * (kk & 1)
        L = []
        for r in range(2):
            L.append("ds_read_b128 v[%d:%d], v%d offset:%d" % (b + 4 * r, b + 4 * r + 3, vXR + kk, 4096 * r))
        for e in range(4):
            for jj in range(2):
                x = b + 8 + 4 * e + 2 * jj
                L.append("ds_read_b64_tr_b16 v[%d:%d], v%d offset:%d" % (x, x + 1, vWR, (16 * kk + 4 * jj) * 448 + 56 * e))
        return L
    def p_loop(swap, lab):
        k.label(lab)
        for kk in range(4):
            k.I("s_waitcnt lgkmcnt(0)")
            if kk == 3:
                k.I("s_barrier")
                for r in [vXR + i for i in range(4)] + [vWR]: k.I("v_add_u32 v%d, s%d, v%d" % (r, sSTEP, r))
            R = p_reads((kk + 1) & 3)
            b = PF + 24 * (kk & 1)
            n = 0
            for e in range(4):
                for r in range(2):
                    xf, wf = vr(b + 4 * r, 4), vr(b + 8 + 4 * e, 4)
                    k.I(mfma(vr(PA + 16 * (2 * e + r), 16), xf if swap else wf, wf if swap else xf))
                    for _ in range(2):
                        if R: k.I(R.pop(0))
                    n += 1
                    if kk == 0 and n == 6:
                        k.I("s_add_u32 s%d, s%d, 1" % (sCUR, sCUR))
                        k.I("s_cmp_eq_u32 s%d, 3" % sCUR)
                    if kk == 0 and n == 7:
                        k.I("s_cselect_b32 s%d, 0, s%d" % (sCUR, sCUR))
                        k.I("s_cselect_b32 s%d, %d, %d" % (sSTEP, (-2 * PS) & 0xffffffff, 0))
                    if kk == 0 and n == 8:
                        k.I("s_cselect_b32 s%d, s%d, %d" % (sSTEP, sSTEP, PS))
                    if kk == 3 and n == 7:
                        k.I("s_sub_u32 s%d, s%d, 1" % (sKB, sKB))
                        k.I("s_cmp_lg_u32 s%d, 0" % sKB)
        k.I("s_cbranch_scc1 %s" % lab)
    n0 = st.n
    def p_start():
        st()
        k.I("s_barrier")
        st()
        for t in p_reads(0): k.I(t)
    k.I("s_cmp_eq_u32 s3, 2")
    k.I("s_cbranch_scc1 L1_pv")
    p_start()
    p_loop(False, "L1_ploop")
    st()
    k.I("s_cmp_lg_u32 s3, 0")
    k.I("s_cbranch_scc1 L1_pnoscale")
    for i in range(64):
        k.I("v_pk_mul_f32 v[%d:%d], v[%d:%d], s[%d:%d]" % (PA + 2 * i, PA + 2 * i + 1, PA + 2 * i, PA + 2 * i + 1, sC, sC + 1))
    k.label("L1_pnoscale")
    k.I("s_waitcnt lgkmcnt(0)")
    for tl in range(8):
        e, r = tl >> 1, tl & 1
        F = PF + 8 * (tl % 6)
        cvt8(k, F, PA + 16 * tl)
        exec_hi(k)
        k.I("v_mov_b32 v%d, s%d" % (F + 6, sP6))
        k.I("v_mov_b32 v%d, s%d" % (F + 7, sP7))
        k.I(EXEC_ALL)
        k.I("s_add_u32 s%d, s%d, %d" % (sTMP, sDST, 64 * e + r))
        k.I("s_lshl_b32 s%d, s%d, s%d" % (sTMP, sTMP, sDSH))
        k.I("s_add_u32 s%d, s%d, s%d" % (sTMP, sTMP, sM))
        store4(F, sTMP, 0, pfl(tl)); store4(F + 4, sTMP, 1024, pfl(tl))
    st.dump(S_WS)
    k.I("s_endpgm")
    st.n = n0
    sec("pv")
    k.label("L1_pv")
    p_start()
    p_loop(True, "L1_pvloop")
    st()
    k.I("s_waitcnt lgkmcnt(0)")
    for tl in range(8):
        e, r = tl >> 1, tl & 1
        F = PF + 8 * (tl % 6)
        cvt8(k, F, PA + 16 * tl)
        exec_both(k, 0xf0000000)
        for i in range(8): k.I("v_mov_b32 v%d, v%d" % (F + i, vPADV))
        k.I(EXEC_ALL)
        k.I("s_add_u32 s%d, s%d, %d" % (sTMP, sDST, 64 * e + r))
        k.I("s_lshl_b32 s%d, s%d, 12" % (sTMP, sTMP))
        store4(F, sTMP, 2048, pfl(tl)); store4(F + 4, sTMP, 3072, pfl(tl))
    st.dump(S_WS)
    k.I("s_endpgm")

    sec("entry")
    k.label("L1_kv")
    st.n = n0
    AK, AV = ACC, ACC + 16
    IDN, PHI = ACC + 32, ACC + 40
    EP, EM = 132, 148
    k.I("""
    s_lshl_b32 s{g}, s{idx}, 2
    s_and_b32 s{tmp}, s3, 3
    s_add_u32 s{g}, s{g}, s{tmp}
    s_cmp_lt_u32 s{w}, 4
    s_cbranch_scc1 L1_kx
    s_lshl_b32 s{tmp}, s{w}, 8
    s_sub_u32 s{tmp}, s{tmp}, 1024
    v_add_u32 v{c0}, s{tmp}, v{l}
    v_mov_b32 v{oob}, 0x{oobv:x}
    """.format(g=sG, tmp=sTMP, idx=sIDX, rb=sRB, w=sW, c0=T + 4, l=vL, oob=T + 5, oobv=OOB))
    for i in range(4):
        k.I("""
        v_add_u32 v{c}, {c0}, v{cb}
        v_mul_u32_u24 v{r}, 9363, v{c}
        v_lshrrev_b32 v{r}, 16, v{r}
        v_lshlrev_b32 v{d}, 4, v{c}
        v_mul_u32_u24 v{q}, {d7}, v{r}
        v_add_u32 v{d}, v{d}, v{q}
        v_lshrrev_b32 v{r}, 1, v{r}
        v_mul_u32_u24 v{r}, 896, v{r}
        v_add_u32 v{d}, v{d}, v{r}
        v_cmp_gt_u32 vcc, 896, v{c}
        s_nop 1
        v_cndmask_b32 v{d}, v{oob}, v{d}, vcc
        """.format(c=T, r=T + 1, q=T + 2, c0=64 * i, cb=T + 4, d=vD + i, d7=896 - 112, oob=T + 5))
    k.I("""
    s_mul_i32 s{sof}, s{g}, 112
    s_add_u32 s{sof}, s{sof}, 896
    s_mov_b32 s{step}, {r64}
    s_lshl_b32 s{b1}, s{w}, 12
    s_sub_u32 s{b1}, s{b1}, 16384
    s_waitcnt lgkmcnt(0)
    """.format(sof=sSOF, g=sG, step=sSTEP, r64=64 * 2688, b1=sB1, w=sW))
    srd(k, S_SRC, 6, 7, 448 * 2688)
    k.I("s_branch L1_kgo")
    k.label("L1_kx")
    x_voffsets()
    k.I("""
    s_lshl_b32 s{sof}, s{rb}, 2
    s_add_u32 s{sof}, s{sof}, s{w}
    s_mul_i32 s{sof}, s{sof}, {r32}
    s_mov_b32 s{step}, 128
    s_lshl_b32 s{b1}, s{w}, 12
    s_add_u32 m0, s{b1}, 0
    s_add_u32 s{b1}, s{b1}, {kx}
    s_lshl_b32 s{m}, s{w}, 10
    s_mul_i32 s{tmp}, s{g}, 3136
    s_add_u32 s{tmp}, s{tmp}, s{m}
    s_add_u32 m0, s{m}, {kphi}
    s_waitcnt lgkmcnt(0)
    """.format(sof=sSOF, rb=sRB, w=sW, r32=32 * 896, step=sSTEP, b1=sB1, kx=KX, m=sM, tmp=sTMP, g=sG, kphi=KPHI))
    srd(k, S_PHI, 10, 11, 16 * 1568)
    srd(k, S_SRC, 4, 5, 2048 * 896)
    k.I("buffer_load_dwordx4 v%d, s[%d:%d], s%d offen lds" % (vL16, S_PHI, S_PHI + 3, sTMP))
    k.label("L1_kgo")
    rot_from((sG, sRB))
    def k_setup():
        srd(k, S_WS, 8, 9, WS_USED)
        k.I("""
        s_and_b32 s{m}, s{w}, 3
        s_lshl_b32 s{m}, s{m}, 12
        s_add_u32 s{m}, s{m}, {kx}
        s_lshr_b32 s{tmp}, s{w}, 2
        s_lshl_b32 s{head}, s{g}, 1
        s_add_u32 s{head}, s{head}, s{tmp}
        s_mul_i32 s{dst}, s{tmp}, 1568
        s_add_u32 s{dst}, s{dst}, {kphi}
        s_mul_i32 s{tmp}, s{tmp}, 56
        s_mov_b32 s{l0}, 0x{lg:x}
        s_mov_b32 s{l1}, 0x{lg:x}
        """.format(m=sM, w=sW, kx=KX, tmp=sTMP, head=sHEAD, g=sG, dst=sDST, kphi=KPHI, l0=sL, l1=sL + 1, lg=f2u(LOG2E)))
        read_addrs(4, 2 * KSLOT, KX, 224, sTMP, 2)
        k.I("v_lshl_add_u32 v%d, v%d, 2, v%d" % (T + 4, T + 1, T + 2))
        k.I("v_mul_u32_u24 v%d, 56, v%d" % (T + 4, T + 4))
        k.I("v_add3_u32 v%d, v%d, v%d, s%d" % (vPH, T + 4, T + 3, sDST))
        k.I("v_lshlrev_b32 v%d, 2, v%d" % (T + 2, T + 1))
        k.I("v_sub_u32 v%d, v%d, v%d" % (T + 2, T, T + 2))
        k.I("v_mov_b32 v%d, 0x3f80" % (T + 3))
        k.I("v_mov_b32 v%d, 0x3f800000" % (T + 4))
        for p in range(8):
            base = 8 * (p >> 1) + 2 * (p & 1)
            k.I("v_cmp_eq_u32 vcc, %d, v%d" % (base, T + 2))
            k.I("v_cmp_eq_u32 s[48:49], %d, v%d" % (base + 1, T + 2))
            k.I("v_cndmask_b32 v%d, 0, v%d, vcc" % (IDN + p, T + 3))
            k.I("v_cndmask_b32 v%d, v%d, v%d, s[48:49]" % (IDN + p, IDN + p, T + 4))
        for i in range(12, 16):
            k.I("v_mov_b32 v%d, 0" % (EP + i))
            k.I("v_mov_b32 v%d, 0" % (EM + i))
    def k_reads(o, kk):
        b = (4 * o + kk) & 1
        hi, lo = (o % 4) >> 1, ((o % 4) & 1) * KSLOT
        x = XF + 8 * b
        k.I("ds_read_b128 v[%d:%d], v%d offset:%d" % (x, x + 3, vXR + 4 * hi + kk, lo))
        for e in range(2):
            for jj in range(2):
                x = WF + 8 * b + 4 * e + 2 * jj
                k.I("ds_read_b64_tr_b16 v[%d:%d], v%d offset:%d" % (x, x + 1, vWR + hi, lo + (16 * kk + 4 * jj) * 224 + 112 * e))
        return 5
    def k_mfmas(ks):
        b = ks & 1
        xf = vr(XF + 8 * b, 4)
        c = 0 if ks == 0 else None
        return [mfma(vr(AK, 16), vr(WF + 8 * b, 4), xf, c), mfma(vr(AV, 16), xf, vr(WF + 8 * b + 4, 4), c)]
    gemm(4, KSLOT, 4, k_reads, k_mfmas, k_setup)
    for ff in range(2):
        for jj in range(2):
            r = PHI + 4 * ff + 2 * jj
            k.I("ds_read_b64_tr_b16 v[%d:%d], v%d offset:%d" % (r, r + 1, vPH, (16 * ff + 8 * jj) * 56))
    KF, VF, FKP, FKM = 100, 108, 116, 124
    cvt8(k, KF, AK)
    exec_hi(k)
    for r in (KF + 6, KF + 7): k.I("v_mov_b32 v%d, 0" % r)
    k.I(EXEC_ALL)
    k.I("s_waitcnt lgkmcnt(0)")
    k.I(mfma(vr(AK, 16), vr(PHI, 4), vr(KF, 4), 0))
    k.I(mfma(vr(AK, 16), vr(PHI + 4, 4), vr(KF + 4, 4)))
    cvt8(k, VF, AV)
    exec_both(k, 0xf0000000)
    for i in range(8): k.I("v_mov_b32 v%d, v%d" % (VF + i, vPADV))
    k.I(EXEC_ALL)
    feature_map(k, AK, FKP, FKM, EP, EM, T, sL, True)
    k.I(mfma(vr(AK, 16), vr(FKP, 4), vr(IDN, 4), 0))
    k.I(mfma(vr(AK, 16), vr(FKP + 4, 4), vr(IDN + 4, 4)))
    k.I(mfma(vr(AV, 16), vr(FKM, 4), vr(IDN, 4), 0))
    k.I(mfma(vr(AV, 16), vr(FKM + 4, 4), vr(IDN + 4, 4)))
    k.I("s_lshl_b32 s%d, s%d, 13" % (sTMP, sW))
    k.I("v_add_u32 v%d, s%d, v%d" % (T, sTMP, vL16))
    k.I("""
    s_and_b32 s{m}, s{w}, 3
    s_lshl_b32 s{m}, s{m}, 11
    s_and_b32 s{tmp}, s{w}, 4
    s_lshl_b32 s{tmp}, s{tmp}, 13
    s_add_u32 s{tmp}, s{tmp}, s{m}
    v_add_u32 v{t1}, s{tmp}, v{l16}
    s_lshl_b32 s{tmp}, s{head}, 4
    s_add_u32 s{tmp}, s{tmp}, s{rb}
    s_lshl_b32 s{tmp}, s{tmp}, 13
    s_add_u32 s{tmp}, s{tmp}, s{m}
    s_add_u32 s{tmp}, s{tmp}, 0x{off:x}
    """.format(m=sM, w=sW, tmp=sTMP, t1=T + 1, l16=vL16, head=sHEAD, rb=sRB, off=KVP_OFF))
    cvt8(k, FKP, AK)
    k.I(mfma(vr(EP, 16), vr(FKP, 4), vr(VF, 4), 0))
    k.I(mfma(vr(EP, 16), vr(FKP + 4, 4), vr(VF + 4, 4)))
    cvt8(k, FKM, AV)
    k.I(mfma(vr(EM, 16), vr(FKM, 4), vr(VF, 4), 0))
    k.I(mfma(vr(EM, 16), vr(FKM + 4, 4), vr(VF + 4, 4)))
    for q in range(8):
        k.I("ds_write_b128 v%d, v[%d:%d] offset:%d" % (T, EP + 4 * q, EP + 4 * q + 3, 1024 * q))
    k.I("s_waitcnt lgkmcnt(0)")
    st()
    k.I("s_barrier")
    for w in range(4):
        for q in range(2):
            r = ACC + 8 * w + 4 * q
            k.I("ds_read_b128 v[%d:%d], v%d offset:%d" % (r, r + 3, T + 1, 8192 * w + 1024 * q))
    for w in range(1, 4):
        k.I("s_waitcnt lgkmcnt(%d)" % (6 - 2 * w))
        for q in range(4):
            k.I(pk("v_pk_add_f32", ACC + 2 * q, ACC + 2 * q, ACC + 8 * w + 2 * q))
    store4(ACC, sTMP, 0); store4(ACC + 4, sTMP, 1024)
    st.dump(S_WS)
    k.label("L1_end")
    k.I("s_endpgm")
    k.items = secs["entry"] + [".p2align 12"] + secs["pqk"] + [".p2align 12"] + secs["pv"] + [".p2align 12"] + secs["kmain"]
    if TOUCH:
        k.label("L1_touch")
        k.I("""
        v_and_b32 v8, 15, v{l}
        v_mul_u32_u24 v8, 2688, v8
        v_lshrrev_b32 v9, 4, v{l}
        s_and_b32 s{tmp}, s{rb}, 3
        s_mul_i32 s{sof}, s{tmp}, {r16}
        s_mul_i32 s{b1}, s{rb}, {xr128}
        s_cmp_ge_u32 s3, 4
        s_cbranch_scc1 L1_tkv
        v_lshl_add_u32 v8, v9, 7, v8
        s_lshl_b32 s{g}, s3, 1
        s_cmp_eq_u32 s3, 3
        s_cselect_b32 s{g}, 0, s{g}
        s_add_u32 s{g}, s{g}, s{idx}
        s_mul_i32 s{tmp}, s{g}, 448
        s_add_u32 s{sof}, s{sof}, s{tmp}
        v_mul_u32_u24 v10, 896, v{l}
        v_add_u32 v11, 128, v10
        s_and_b32 s{tmp}, s3, 1
        s_mul_i32 s{tmp}, s{tmp}, {xr64}
        s_add_u32 s{b1}, s{b1}, s{tmp}
        s_cmp_ge_u32 s3, 2
        s_cselect_b32 s{b1}, 0x40000000, s{b1}
        s_branch L1_tgo
        L1_tkv:
        v_and_b32 v10, 1, v9
        v_mul_u32_u24 v10, 111, v10
        v_lshrrev_b32 v9, 1, v9
        v_mul_u32_u24 v11, 896, v9
        v_add3_u32 v8, v8, v10, v11
        s_lshl_b32 s{g}, s{idx}, 2
        s_and_b32 s{tmp}, s3, 3
        s_add_u32 s{g}, s{g}, s{tmp}
        s_mul_i32 s{g}, s{g}, 112
        s_add_u32 s{sof}, s{sof}, s{g}
        s_add_u32 s{sof}, s{sof}, 896
        s_mul_i32 s{tmp}, s{tmp}, {xr32}
        s_add_u32 s{b1}, s{b1}, s{tmp}
        v_and_b32 v10, 31, v{l}
        v_mul_u32_u24 v10, 896, v10
        v_lshl_add_u32 v10, v9, 7, v10
        v_mov_b32 v11, 0x40000000
        L1_tgo:
        s_waitcnt lgkmcnt(0)
        """.format(l=vL, tmp=sTMP, rb=sRB, sof=sSOF, r16=16 * 2688, b1=sB1, xr128=128 * 896, g=sG, idx=sIDX, xr64=64 * 896, xr32=32 * 896))
        srd(k, 12, 6, 7, 448 * 2688)
        srd(k, 16, 4, 5, 2048 * 896)
        def touch(kb, n):
            for j in range(kb, kb + n):
                k.I("s_add_u32 s%d, s%d, %d" % (sTMP, sSOF, j * 64 * 2688))
                k.I("buffer_load_dword v12, v8, s[12:15], s%d offen" % sTMP)
            k.I("buffer_load_dword v13, v10, s[16:19], s%d offen offset:%d" % (sB1, 128 * kb))
            if n == 2: k.I("buffer_load_dword v14, v11, s[16:19], s%d offen offset:%d" % (sB1, 128 * kb))
        plan = {1: [[(2, 2)], [(4, 2)], [(6, 1)]], 2: [[(2, 2), (4, 2)], [(6, 1)]], 3: [[(2, 2)], [], [(4, 2)], [(6, 1)]], 4: [[(2, 2), (4, 2), (6, 1)]]}[TOUCH]
        for grp in plan:
            k.I("s_barrier")
            for kb, n in grp: touch(kb, n)
        k.I("s_endpgm")
    return k, dict(grid=256, block=576 if TOUCH else 512, lds=LDS, vgpr=216, agpr=0, sgpr=102 if STAMP else 60)

def gen_k2():
    k = Kernel("attn_kernel")
    R = 4
    S_WS = 4
    sW, sHEAD, sTMP, sT, sU, sKVB, sP, sMASK, sPB, sPQ, sOA, sQA, sCNT = 8, 9, 10, 11, 12, 13, 14, 15, 17, 18, 19, 21, 16
    vL16 = 1
    Q = {"a": 4, "b": 12}
    S = {"a": 20, "b": 36}
    P = {"a": 52, "b": 60}
    O = {"a": 68, "b": 84}
    T = 100
    LKV, LPHI, LCNT = 16384, 20480, 22528
    def KR(i, f): return ar((i % R) * 16 + 4 * f, 4)
    def VR(i, f): return ar((i % R) * 16 + 8 + 4 * f, 4)
    k.I("""
    s_load_dwordx2 s[{ws0}:{ws1}], s[0:1], 72
    s_cmp_ge_u32 s2, 256
    s_cbranch_scc1 L2_end
    v_lshrrev_b32 v2, 6, v0
    v_and_b32 v1, 63, v0
    v_lshlrev_b32 v1, 4, v1
    v_readfirstlane_b32 s{w}, v2
    s_and_b32 s{head}, s2, 7
    s_lshl_b32 s{head}, s{head}, 1
    s_lshr_b32 s{tmp}, s2, 7
    s_add_u32 s{head}, s{head}, s{tmp}
    s_bfe_u32 s{t}, s2, 0x40003
    s_lshl_b32 s{t}, s{t}, 2
    s_mov_b32 s{ws2}, 0x{used:x}
    s_mov_b32 s{ws3}, 0x00020000
    s_cmp_ge_u32 s{w}, 4
    s_cbranch_scc1 L2_help
    s_lshr_b32 s{u}, s{w}, 1
    s_and_b32 s{tmp}, s{w}, 1
    s_lshl_b32 s{tmp}, s{tmp}, 1
    s_add_u32 s{t}, s{t}, s{tmp}
    s_add_u32 s{t}, s{t}, s{u}
    s_lshl_b32 s{tmp}, s{head}, 6
    s_add_u32 s{tmp}, s{t}, s{tmp}
    s_lshl_b32 s{tmp}, s{tmp}, 11
    s_add_u32 s{tmp}, s{tmp}, 0x{qoff:x}
    s_xor_b32 s{qa}, s{tmp}, 0x800
    s_lshl_b32 s{kvb}, s{head}, 18
    s_lshl_b32 s{p}, s{u}, 17
    s_add_u32 s{p}, s{kvb}, s{p}
    s_waitcnt lgkmcnt(0)
    """.format(w=sW, head=sHEAD, tmp=sTMP, u=sU, t=sT, kvb=sKVB, p=sP, qoff=Q_OFF, qa=sQA,
               ws0=S_WS, ws1=S_WS + 1, ws2=S_WS + 2, ws3=S_WS + 3, used=WS_USED))
    st = Stamper(k, 1, 4, 126); st.start()
    def ld(dst, soff, off):
        k.I("buffer_load_dwordx4 %s, v%d, s[%d:%d], s%d offen offset:%d" % (dst, vL16, S_WS, S_WS + 3, soff, off))
    ld(KR(3, 0), sKVB, 0); ld(KR(3, 1), sKVB, 1024)
    ld(vr(Q["a"], 4), sQA, 0); ld(vr(Q["a"] + 4, 4), sQA, 1024)
    ld(vr(Q["b"], 4), sTMP, 0); ld(vr(Q["b"] + 4, 4), sTMP, 1024)
    for j in range(3):
        ld(KR(j, 0), sP, 0); ld(KR(j, 1), sP, 1024); ld(VR(j, 0), sP, 2048); ld(VR(j, 1), sP, 3072)
        k.I("s_add_u32 s%d, s%d, 4096" % (sP, sP))
    for i in range(8): k.I("v_mov_b32 v%d, 0" % (P["b"] + i))
    for i in range(8): k.I("v_accvgpr_write_b32 a%d, 0" % (56 + i))
    for x in "ab": k.I(mfma(vr(O[x], 16), vr(P["b"], 4), vr(P["b"], 4), 0))
    k.I("s_barrier")
    k.I("""
    s_mov_b32 s{mask}, 0xffff0000
    s_lshl_b32 s{tmp}, s{t}, 4
    s_add_u32 s{tmp}, s{tmp}, s{head}
    s_lshl_b32 s{tmp}, s{tmp}, 11
    s_add_u32 s{oa}, s{tmp}, 0x{ooff:x}
    s_lshl_b32 s{tmp}, s{w}, 12
    v_add_u32 v3, s{tmp}, v1
    s_xor_b32 s{tmp}, s{tmp}, 0x2000
    v_add_u32 v2, s{tmp}, v1
    s_mov_b32 s{cnt}, 7
    """.format(head=sHEAD, tmp=sTMP, w=sW, t=sT, mask=sMASK, oa=sOA, ooff=O_OFF, cnt=sCNT))

    def qk(x, i):
        return [mfma(vr(S[x], 16), KR(i, 0), vr(Q[x], 4), 0), mfma(vr(S[x], 16), KR(i, 1), vr(Q[x] + 4, 4))]
    def pv(x, i):
        return [mfma(vr(O[x], 16), VR(i, 0), vr(P[x], 4)), mfma(vr(O[x], 16), VR(i, 1), vr(P[x] + 4, 4))]
    def phase(x, mf, after):
        def cv(n): return "v_cvt_pk_bf16_f32 v%d, v%d, v%d" % (P[x] + n, S[x] + 2 * n, S[x] + 2 * n + 1)
        def ex(n): return "v_exp_f32 v%d, v%d" % (S[x] + n, S[x] + n)
        for g in range(4):
            if mf[g] is not None: k.I(mf[g])
            if after[g] is not None: after[g]()
            k.I(ex(4 * g)); k.I(ex(4 * g + 1))
            if g > 0: k.I(cv(2 * g - 1))
            k.I(ex(4 * g + 2)); k.I(ex(4 * g + 3))
            k.I(cv(2 * g))
        k.I(cv(7))
    def bcast_hi(src, t0, t1):
        k.I("v_mov_b32 v%d, v%d" % (t0, src))
        k.I("v_mov_b32 v%d, v%d" % (t1, src))
        k.I("v_permlane32_swap_b32 v%d, v%d" % (t0, t1))
    def normalise(X, F, soff, eps):
        bcast_hi(X + 12, T, T + 2)
        if eps: k.I("v_add_f32 v%d, 0x%x, v%d" % (T + 2, f2u(1e-6), T + 2))
        k.I("v_rcp_f32 v%d, v%d" % (T + 2, T + 2))
        for i in range(8):
            k.I(pk("v_pk_mul_f32", X + 2 * i, X + 2 * i, T + 2, " op_sel_hi:[1,0]"))
        cvt8(k, F, X)
        exec_hi(k)
        k.I("v_mov_b32 v%d, 0" % (F + 6))
        k.I("v_mov_b32 v%d, 0" % (F + 7))
        k.I(EXEC_ALL)
        for f in range(2):
            k.I("buffer_store_dwordx4 v[%d:%d], v%d, s[%d:%d], s%d offen offset:%d%s" % (F + 4 * f, F + 4 * f + 3, vL16, S_WS, S_WS + 3, soff, 1024 * f, SC))

    st()
    k.I("s_waitcnt vmcnt(12)")
    st()
    for m in qk("a", 3) + qk("b", 3): k.I(m)
    ld(KR(3, 0), sP, 0)
    k.I("s_add_u32 s%d, s%d, %d" % (sP, sP, 2048 - 4096))
    for x, m in (("a", T), ("b", T + 4)):
        k.I("v_max3_f32 v%d, v%d, v%d, v%d" % (m, S[x], S[x] + 1, S[x] + 2))
        for i in range(3, 15, 2):
            k.I("v_max3_f32 v%d, v%d, v%d, v%d" % (m, m, S[x] + i, S[x] + i + 1))
        k.I("v_max_f32 v%d, v%d, v%d" % (m, m, S[x] + 15))
        xhalf(k, "v_max_f32", m, m + 1)
        k.I("v_add_f32 v%d, 0x%x, v%d" % (m, f2u(MOFF), m))
        neg_max_pieces(k, m, m + 1, m + 2, Q[x] + 6, Q[x] + 7, sMASK)
        if x == "a":
            k.I("s_waitcnt vmcnt(11)")
            for mm in qk("a", 0): k.I(mm)
    st()
    I = lambda t: (lambda: k.I(t))
    def tile(i, wait, loads, last=False, b1=None):
        L = [lambda: ld(KR(i + 3, 1), sP, 3072), lambda: ld(KR(i + 4, 0), sP, 2048), lambda: ld(VR(i + 3, 0), sP, 0), lambda: ld(VR(i + 3, 1), sP, 1024)]
        L = [f if u else None for f, u in zip(L, loads)]
        phase("a", qk("b", i) + pv("b", i - 1),
              [L[0], I("s_add_u32 s%d, s%d, 4096" % (sP, sP)) if any(loads) else None, L[1], I("s_waitcnt vmcnt(%d)" % wait)])
        if not last:
            phase("b", qk("a", i + 1) + pv("a", i), [L[2], b1, L[3], None])
        else:
            def send():
                for q in range(4):
                    k.I("ds_write_b128 v3, v[%d:%d] offset:%d" % (O["a"] + 4 * q, O["a"] + 4 * q + 3, 1024 * q))
            phase("b", pv("a", i) + [None, None], [None, None, None, send])
    k.label("L2_loop")
    for j in range(4):
        tile(j, 9, (1, 1, 1, 1), b1=I("s_sub_u32 s%d, s%d, 1" % (sCNT, sCNT)) if j == 3 else None)
    k.I("s_cmp_lg_u32 s%d, 0" % sCNT)
    k.I("s_cbranch_scc1 L2_loop")
    st()
    tile(28, 8, (1, 0, 1, 1)); tile(29, 6, (0, 0, 0, 0)); tile(30, 2, (0, 0, 0, 0)); tile(31, 0, (0, 0, 0, 0), last=True)
    for m in pv("b", 31): k.I(m)
    st()
    k.I("s_waitcnt lgkmcnt(0)")
    k.I("s_barrier")
    for q in range(4):
        k.I("ds_read_b128 v[%d:%d], v2 offset:%d" % (O["a"] + 4 * q, O["a"] + 4 * q + 3, 1024 * q))
    OB = O["b"]
    for q in range(4):
        k.I("s_waitcnt lgkmcnt(%d)" % (3 - q))
        k.I(pk("v_pk_add_f32", OB + 4 * q, OB + 4 * q, O["a"] + 4 * q))
        k.I(pk("v_pk_add_f32", OB + 4 * q + 2, OB + 4 * q + 2, O["a"] + 4 * q + 2))
    k.I("v_pk_mul_f32 v[%d:%d], v[%d:%d], 0" % (T, T + 1, OB, OB + 1))
    for i in range(1, 8):
        k.I("v_pk_fma_f32 v[%d:%d], v[%d:%d], 0, v[%d:%d]" % (T, T + 1, OB + 2 * i, OB + 2 * i + 1, T, T + 1))
    k.I("v_cmp_u_f32 vcc, v%d, v%d" % (T, T + 1))
    k.I("s_cbranch_vccnz L2_slow")
    k.label("L2_norm")
    normalise(OB, P["a"], sOA, False)
    st.dump(S_WS)
    k.label("L2_end")
    k.I("s_endpgm")

    k.label("L2_help")
    HM = opt("hmode", 0)
    if HM == 1: k.I("s_endpgm")
    PART = 4
    NP, NM, PQ, FQ = 12, 28, 44, 60
    FB, EP, EM = 76, 84, 112
    KVF, PHI, QB = 0, 16, 24
    SWO, SPHI, sL = 24, 28, 32
    k.I("""
    s_and_b32 s3, s2, 4
    s_lshl_b32 s3, s3, 3
    s_add_u32 s3, s3, 16
    s_load_dwordx2 s[22:23], s[0:1], s3
    s_load_dwordx2 s[20:21], s[0:1], 40
    v_mov_b32 v{a}, {lcnt}
    v_mov_b32 v{b}, 0
    ds_write_b32 v{a}, v{b}
    s_and_b32 s{w}, s{w}, 3
    s_add_u32 s{t}, s{t}, s{w}
    s_lshl_b32 s{tmp}, s{head}, 6
    s_add_u32 s{tmp}, s{t}, s{tmp}
    s_lshl_b32 s{pq}, s{tmp}, 11
    s_add_u32 s{pq}, s{pq}, 0x{qbo:x}
    s_lshl_b32 s{pb}, s{head}, 17
    s_lshl_b32 s{tmp}, s{w}, 11
    s_add_u32 s{pb}, s{pb}, s{tmp}
    s_add_u32 s{pb}, s{pb}, 0x{kvp:x}
    s_mov_b32 s{l0}, 0x{lg:x}
    s_mov_b32 s{l1}, 0x{lg:x}
    s_lshl_b32 s{tmp}, s{t}, 4
    s_add_u32 s{tmp}, s{tmp}, s{head}
    s_lshl_b32 s{tmp}, s{tmp}, 11
    s_add_u32 s{oa}, s{tmp}, 0x{ooffb:x}
    s_add_u32 s{qa}, s{tmp}, 0x{ooff:x}
    s_lshl_b32 s{tmp}, s{w}, 10
    v_add_u32 v2, s{tmp}, v1
    v_lshrrev_b32 v{a}, 9, v1
    v_bfe_u32 v{b}, v1, 6, 2
    v_lshl_add_u32 v{a}, v{a}, 2, v{b}
    v_mul_u32_u24 v{a}, 56, v{a}
    v_bfe_u32 v{b}, v1, 8, 1
    v_lshl_add_u32 v{a}, v{b}, 5, v{a}
    v_bfe_u32 v{b}, v1, 4, 2
    v_lshl_add_u32 v3, v{b}, 3, v{a}
    s_lshr_b32 s{tmp}, s2, 3
    s_lshl_b32 s{tmp}, s{tmp}, 2
    s_add_u32 s{tmp}, s{tmp}, s{w}
    s_mul_i32 s3, s{tmp}, 3200
    v_lshlrev_b32 v{x}, 3, v1
    v_mov_b32 v{y}, 0x40000000
    v_cmp_gt_u32 vcc, 3200, v{x}
    s_and_b32 s16, s{w}, 1
    s_lshl_b32 s16, s16, 10
    v_cndmask_b32 v{x}, v{y}, v{x}, vcc
    s_add_u32 m0, s16, {lphi}
    s_mul_i32 s{tmp}, s{head}, 1568
    s_add_u32 s16, s16, s{tmp}
    s_setprio {prio}
    s_waitcnt lgkmcnt(0)
    s_barrier
    """.format(pb=sPB, head=sHEAD, tmp=sTMP, w=sW, kvp=KVP_OFF, t=sT, pq=sPQ, qbo=QB_OFF, oa=sOA, ooffb=O_OFF + (2 << 20), qa=sKVB, ooff=O_OFF,
               a=T, b=T + 1, x=T + 10, y=T + 11, l0=sL, l1=sL + 1, lg=f2u(LOG2E), lphi=LPHI, prio=opt("hprio", 1), lcnt=LCNT))
    srd(k, SWO, 22, 23, 448 * 896)
    srd(k, SPHI, 20, 21, 16 * 1568)
    k.I("buffer_load_dwordx4 v%d, s[%d:%d], s16 offen lds" % (vL16, SPHI, SPHI + 3))
    for f in range(2): ld(ar(QB + 4 * f, 4), sPQ, 1024 * f)
    def pload(blk, pos):
        for q in range(2): ld(vr(PART + 8 * pos + 4 * q, 4), sPB, 1024 * q)
        k.I("s_add_u32 s%d, s%d, 8192" % (sPB, sPB))
    DEPTH = opt("hdepth", 1)
    pos = lambda blk: 0 if blk == 0 else 1 + (blk - 1) % 8
    BAT = opt("hbat", 1)
    nb = 16 // BAT
    for blk in range(BAT): pload(blk, pos(blk))
    for i in range(12, 16):
        k.I("v_mov_b32 v%d, 0" % (EP + i))
        k.I("v_mov_b32 v%d, 0" % (EM + i))
    for bt in range(nb):
        if DEPTH and bt + 1 < nb:
            for blk in range(BAT * (bt + 1), BAT * (bt + 2)): pload(blk, pos(blk))
        k.I("s_waitcnt vmcnt(%d)" % (2 * BAT if (DEPTH and bt + 1 < nb) else 0))
        for blk in range(max(BAT * bt, 1), BAT * (bt + 1)):
            for q in range(4):
                k.I(pk("v_pk_add_f32", PART + 2 * q, PART + 2 * q, PART + 8 * pos(blk) + 2 * q))
        if not DEPTH and bt + 1 < nb:
            for blk in range(BAT * (bt + 1), BAT * (bt + 2)): pload(blk, pos(blk))
    for q in range(4):
        k.I("v_cvt_pk_bf16_f32 v%d, v%d, v%d" % (T + q, PART + 2 * q, PART + 2 * q + 1))
    exec_both(k, 0x20000000)
    for q in range(4): k.I("v_mov_b32 v%d, 0x3f803f80" % (T + q))
    k.I(EXEC_ALL)
    k.I("ds_write_b128 v2, v[%d:%d] offset:%d" % (T, T + 3, LKV))
    if opt("wopf", 1):
        k.I("buffer_load_dword v%d, v%d, s[%d:%d], s3 offen" % (T + 11, T + 10, SWO, SWO + 3))
    k.I("""
    v_mov_b32 v{a}, {lcnt}
    v_mov_b32 v{b}, 1
    s_mov_b64 exec, 1
    s_waitcnt lgkmcnt(0)
    ds_add_u32 v{a}, v{b}
    L2_poll:
    ds_read_b32 v{b}, v{a}
    s_waitcnt lgkmcnt(0)
    v_cmp_ne_u32 vcc, 4, v{b}
    s_cbranch_vccnz L2_poll
    s_mov_b64 exec, -1
    """.format(a=T + 4, b=T + 5, lcnt=LCNT))
    for ff in range(2):
        for jj in range(2):
            r = PHI + 4 * ff + 2 * jj
            k.I("ds_read_b64_tr_b16 a[%d:%d], v3 offset:%d" % (r, r + 1, LPHI + (16 * ff + 8 * jj) * 56))
    for f in range(4):
        k.I("ds_read_b128 a[%d:%d], v%d offset:%d" % (KVF + 4 * f, KVF + 4 * f + 3, vL16, LKV + 1024 * f))
    if HM == 3: k.I("s_endpgm")
    k.I("s_setprio %d" % opt("hprio2", 1))
    k.I("s_waitcnt lgkmcnt(4)")
    k.I(mfma(vr(PQ, 16), ar(PHI, 4), ar(QB, 4), 0))
    k.I(mfma(vr(PQ, 16), ar(PHI + 4, 4), ar(QB + 4, 4)))
    feature_map(k, PQ, FQ, FQ + 8, EP, EM, T, sL, False)
    k.I("s_waitcnt lgkmcnt(0)")
    for f in range(4):
        k.I(mfma(vr(NP if f < 2 else NM, 16), ar(KVF + 4 * f, 4), vr(FQ + 4 * f, 4), 0 if f % 2 == 0 else None))
    bcast_hi(NP + 13, T, T + 2)
    bcast_hi(NM + 13, T + 1, T + 4)
    k.I("v_rcp_f32 v%d, v%d" % (T + 2, T + 2))
    k.I("v_rcp_f32 v%d, v%d" % (T + 4, T + 4))
    for i in range(8):
        k.I(pk("v_pk_mul_f32", NP + 2 * i, NP + 2 * i, T + 2, " op_sel_hi:[1,0]"))
    for i in range(8):
        k.I("v_pk_fma_f32 v[%d:%d], v[%d:%d], v[%d:%d], v[%d:%d] op_sel_hi:[1,0,1]" %
            (NP + 2 * i, NP + 2 * i + 1, NM + 2 * i, NM + 2 * i + 1, T + 4, T + 5, NP + 2 * i, NP + 2 * i + 1))
    normalise(NP, FB, sOA, True)
    k.I("s_endpgm")

    k.label("L2_slow")
    SS, QQ = S["b"], Q["b"]
    exec_hi(k)
    k.I("v_mov_b32 v%d, 0" % (QQ + 6))
    k.I("v_mov_b32 v%d, 0" % (QQ + 7))
    k.I(EXEC_ALL)
    k.I("v_mov_b32 v%d, 0xff800000" % T)
    k.I("s_mov_b32 s%d, s%d" % (sP, sKVB))
    k.I("s_add_u32 s%d, s%d, 0x40000" % (sTMP, sKVB))
    k.label("L2_slow1")
    ld(ar(0, 4), sP, 0); ld(ar(4, 4), sP, 1024)
    k.I("s_waitcnt vmcnt(0)")
    k.I(mfma(vr(SS, 16), ar(0, 4), vr(QQ, 4), 0))
    k.I(mfma(vr(SS, 16), ar(4, 4), vr(QQ + 4, 4)))
    for i in range(0, 16, 2):
        k.I("v_max3_f32 v%d, v%d, v%d, v%d" % (T, T, SS + i, SS + i + 1))
    k.I("s_add_u32 s%d, s%d, 4096" % (sP, sP))
    k.I("s_cmp_lt_u32 s%d, s%d" % (sP, sTMP))
    k.I("s_cbranch_scc1 L2_slow1")
    xhalf(k, "v_max_f32", T, T + 1)
    neg_max_pieces(k, T, T + 1, T + 2, QQ + 6, QQ + 7, sMASK)
    for i in range(16): k.I("v_mov_b32 v%d, 0" % (OB + i))
    k.I("s_mov_b32 s%d, s%d" % (sP, sKVB))
    k.label("L2_slow2")
    for f in range(4): ld(ar(4 * f, 4), sP, 1024 * f)
    k.I("s_waitcnt vmcnt(0)")
    k.I(mfma(vr(SS, 16), ar(0, 4), vr(QQ, 4), 0))
    k.I(mfma(vr(SS, 16), ar(4, 4), vr(QQ + 4, 4)))
    for i in range(16): k.I("v_exp_f32 v%d, v%d" % (SS + i, SS + i))
    cvt8(k, P["a"], SS)
    k.I(mfma(vr(OB, 16), ar(8, 4), vr(P["a"], 4)))
    k.I(mfma(vr(OB, 16), ar(12, 4), vr(P["a"] + 4, 4)))
    k.I("s_add_u32 s%d, s%d, 4096" % (sP, sP))
    k.I("s_cmp_lt_u32 s%d, s%d" % (sP, sTMP))
    k.I("s_cbranch_scc1 L2_slow2")
    k.I("s_nop 7\ns_nop 7")
    k.I("s_branch L2_norm")
    return k, dict(grid=256, block=512, lds=LCNT + 64, vgpr=128, agpr=opt("k2agpr", 128), sgpr=102 if STAMP else 40)

def gen_k3():
    k = Kernel("oproj_kernel")
    S_WO, S_WS, S_OUT = 8, 12, 16
    sW, sBR, sRB, sCG, sTMP, sWO, sO, sM = 20, 21, 22, 23, 24, 25, 26, 27
    vL, vL16, vWD, vWR, vWR1, vST = 1, 2, 3, 4, 5, 6
    ACC = (16, 32)
    WF = 48
    T = 80
    NR = 480
    vm = VmQueue(k)
    k.I("""
    s_cmp_ge_u32 s2, 224
    s_cbranch_scc1 L3_end
    s_and_b32 s3, s2, 7
    s_lshr_b32 s{br}, s3, 2
    s_lshl_b32 s{tmp}, s{br}, 5
    s_add_u32 s{tmp}, s{tmp}, 16
    s_load_dwordx2 s[4:5], s[0:1], s{tmp}
    s_load_dwordx2 s[6:7], s[0:1], 72
    s_load_dwordx2 s[0:1], s[0:1], 56
    v_lshrrev_b32 v2, 6, v0
    v_and_b32 v{l}, 63, v0
    v_readfirstlane_b32 s{w}, v2
    v_lshlrev_b32 v{l16}, 4, v{l}
    v_lshrrev_b32 v{a}, 3, v{l}
    v_mul_u32_u24 v{a}, 896, v{a}
    v_and_b32 v{b}, 7, v{l}
    v_bfe_u32 v{c}, v{l}, 4, 1
    v_lshlrev_b32 v{c}, 2, v{c}
    v_xor_b32 v{b}, v{b}, v{c}
    v_lshl_add_u32 v{wd}, v{b}, 4, v{a}
    s_and_b32 s{rb}, s3, 3
    s_lshl_b32 s{rb}, s{rb}, 2
    s_bfe_u32 s{tmp}, s2, 0x20003
    s_add_u32 s{rb}, s{rb}, s{tmp}
    s_lshr_b32 s{cg}, s2, 5
    s_mul_i32 s{wo}, s{w}, {r8}
    s_lshl_b32 s{m}, s{w}, 10
    s_lshl_b32 s{tmp}, s{cg}, 7
    s_add_u32 s{wo}, s{wo}, s{tmp}
    s_lshl_b32 s{o}, s{br}, 6
    s_lshl_b32 s{rb}, s{rb}, 2
    s_add_u32 s{rb}, s{rb}, s{w}
    s_add_u32 s{o}, s{o}, s{rb}
    s_lshl_b32 s{o}, s{o}, 15
    s_add_u32 s{o}, s{o}, 0x{ooff:x}
    s_waitcnt lgkmcnt(0)
    """.format(br=sBR, tmp=sTMP, l=vL, w=sW, l16=vL16, a=T, b=T + 1, c=T + 2, wd=vWD, rb=sRB, cg=sCG, wo=sWO, m=sM, r8=8 * 896,
               o=sO, ooff=O_OFF))
    st = Stamper(k, 2, 4, 94); st.start()
    srd(k, S_WO, 4, 5, 448 * 896)
    srd(k, S_WS, 6, 7, WS_USED)
    def wdma(n):
        k.I("s_add_u32 m0, s%d, %d" % (sM, n * 4096))
        k.I("s_add_u32 s%d, s%d, %d" % (sTMP, sWO, n * 32 * 896))
        k.I("buffer_load_dwordx4 v%d, s[%d:%d], s%d offen lds" % (vWD, S_WO, S_WO + 3, sTMP))
        vm.add("w%d" % n)
    def oload(h, f):
        if h % 2 == 0 and f == 0:
            k.I("s_add_u32 s%d, s%d, %d" % (28, sO, h * 2048))
        k.I("buffer_load_dwordx4 a[%d:%d], v%d, s[%d:%d], s28 offen offset:%d" % (8 * h + 4 * f, 8 * h + 4 * f + 3, vL16, S_WS, S_WS + 3, (h % 2) * 2048 + 1024 * f))
        vm.add("o%d" % h)
    AHEAD = opt("ahead", 5)
    wneed = lambda h: (28 * h + 31) // 32
    nextw = 0
    def issue_head(h):
        nonlocal nextw
        L = []
        while nextw <= wneed(h):
            L.append(lambda n=nextw: wdma(n)); nextw += 1
        L.append(lambda: oload(h, 0)); L.append(lambda: oload(h, 1))
        return L
    for h in range(AHEAD):
        for f in issue_head(h): f()
    srd(k, S_OUT, 0, 1, 2048 * 1792)
    k.I("""
    v_lshrrev_b32 v{h}, 5, v{l}
    v_lshlrev_b32 v{wr}, 9, v{h}
    v_bfe_u32 v{c}, v{l}, 2, 2
    v_lshl_add_u32 v{wr}, v{c}, 7, v{wr}
    v_bfe_u32 v{c}, v{l}, 3, 1
    v_lshl_add_u32 v{wr}, v{c}, 6, v{wr}
    v_bfe_u32 v{c}, v{l}, 4, 1
    v_lshl_add_u32 v{wr}, v{c}, 5, v{wr}
    v_and_b32 v{c}, 3, v{l}
    v_lshl_add_u32 v{wr}, v{c}, 3, v{wr}
    v_xor_b32 v{wr1}, 64, v{wr}
    v_and_b32 v{c}, 31, v{l}
    v_mul_u32_u24 v{c}, 1792, v{c}
    v_lshl_add_u32 v{st}, v{h}, 4, v{c}
    s_mul_i32 s{rb}, s{rb}, {r32}
    s_mul_i32 s{tmp}, s{br}, 896
    s_add_u32 s{rb}, s{rb}, s{tmp}
    s_lshl_b32 s{tmp}, s{cg}, 7
    s_add_u32 s{rb}, s{rb}, s{tmp}
    """.format(h=T, c=T + 1, l=vL, wr=vWR, wr1=vWR1, st=vST, rb=sRB, r32=32 * 1792, tmp=sTMP, br=sBR, cg=sCG))
    def wread(h):
        b = WF + 16 * (h & 1)
        for f in range(2):
            for c in range(2):
                for jj in range(2):
                    r = b + 8 * c + 4 * f + 2 * jj
                    k.I("ds_read_b64_tr_b16 v[%d:%d], v%d offset:%d" % (r, r + 1, vWR1 if c else vWR, (28 * h + 16 * f + 8 * jj) * 128))
    SYNC = opt("sync", 2)
    def sync(h):
        vm.wait(["w%d" % wneed(min(h + SYNC - 1, 15))])
        k.I("s_barrier")
    st()
    sync(0); st(); wread(0)
    for h in range(16):
        nl = 0
        if h + 1 < 16:
            if (h + 1) % SYNC == 0:
                sync(h + 1)
                if (h + 1) % 4 == 0: st()
            wread(h + 1); nl = 8
        vm.wait(["o%d" % h])
        k.I("s_waitcnt lgkmcnt(%d)" % nl)
        pend = issue_head(h + AHEAD) if h + AHEAD < 16 else []
        b = WF + 16 * (h & 1)
        for f in range(2):
            for c in range(2):
                k.I(mfma(vr(ACC[c], 16), vr(b + 8 * c + 4 * f, 4), ar(8 * h + 4 * f, 4), 0 if (h == 0 and f == 0) else None))
                if pend: pend.pop(0)()
        assert not pend
    st()
    for c in range(2):
        F = WF + 8 * c
        cvt8(k, F, ACC[c])
        for gp in range(2):
            k.I("v_permlane32_swap_b32 v%d, v%d" % (F + 4 * gp, F + 4 * gp + 2))
            k.I("v_permlane32_swap_b32 v%d, v%d" % (F + 4 * gp + 1, F + 4 * gp + 3))
            k.I("buffer_store_dwordx4 v[%d:%d], v%d, s[%d:%d], s%d offen offset:%d" % (F + 4 * gp, F + 4 * gp + 3, vST, S_OUT, S_OUT + 3, sRB, 64 * c + 32 * gp) + ["", " sc1", " sc0 sc1", " nt", " sc1 nt"][opt("osc", 0)])
    st.dump(S_WS)
    k.label("L3_end")
    k.I("s_endpgm")
    return k, dict(grid=224, block=256, lds=NR * 128, vgpr=96, agpr=128, sgpr=102 if STAMP else 32)

HEADER = open("cdna_kernels/%s.s.ref" % NAME).read().split("; Override launch geometry")[0]

def build(kernels):
    out = [HEADER.rstrip("\n")]
    for k, cfg in kernels:
        out.append("; @launch kernel=%s grid=(%d,1,1) block=(%d,1,1) lds=%d" % (k.name, cfg["grid"], cfg["block"], cfg["lds"]))
    out.append('.amdgcn_target "amdgcn-amd-amdhsa--gfx950"')
    out.append(".text")
    for k, cfg in kernels:
        k.fix_hazards(verbose=("-v" in sys.argv))
        out += [".globl %s" % k.name, ".p2align %d" % opt("kalign", 12), ".type %s,@function" % k.name, "%s:" % k.name, k.text()]
    out.append('.section .rodata,"a"')
    for k, cfg in kernels:
        acc = (cfg["vgpr"] + 3) // 4 * 4
        out += [".p2align 6", ".amdhsa_kernel %s" % k.name,
                "  .amdhsa_next_free_vgpr %d" % (acc + cfg["agpr"] if cfg["agpr"] else cfg["vgpr"]),
                "  .amdhsa_next_free_sgpr %d" % cfg["sgpr"],
                "  .amdhsa_accum_offset %d" % acc,
                "  .amdhsa_group_segment_fixed_size 0",
                "  .amdhsa_kernarg_size 80",
                "  .amdhsa_user_sgpr_count 2",
                "  .amdhsa_user_sgpr_kernarg_segment_ptr 1",
                "  .amdhsa_system_sgpr_workgroup_id_x 1",
                ".end_amdhsa_kernel"]
    return "\n".join(out) + "\n"

if __name__ == "__main__":
    txt = build([gen_k1(), gen_k2(), gen_k3()])
    path = "cdna_kernels/%s.s" % NAME
    for a in sys.argv[1:]:
        if a.endswith(".s"): path = a
    open(path, "w").write(txt)
    print("wrote", path, len(txt), "bytes")
```

```python
import sys, struct
from asmlib import Kernel, vr, ar, sr

NAME = "concat_heads__mha_block__linear_kernel_hedgehog__prompt"
def f2u(x): return struct.unpack("<I", struct.pack("<f", x))[0]
def opt(name, default):
    for a in sys.argv[1:]:
        if a.startswith(name + "="): return int(a.split("=")[1])
    return default

KV_OFF   = 0
Q_OFF    = 4 << 20
QB_OFF   = 6 << 20
KVP_OFF  = 8 << 20
O_OFF    = 10 << 20
FLAG_OFF = 14 << 20
WS_USED  = 15 << 20

LOG2E = 1.4426950408889634
QSCALE = 28 ** -0.5 * LOG2E
MOFF = 40.0
ROUND_PQ = opt("round", 0)
ROT = opt("rot", 1)
FUSE = opt("fuse", 1)
LSC = ["", " sc1", " sc0 sc1"][opt("lsc", 0)]
SC = ["", " sc1", " sc0 sc1", " nt", " sc1 nt"][opt("sc", 1)]

STAMP = "-stamp" in sys.argv
STAMP_OFF = 16 << 20
class Stamper:
    def __init__(self, k, kidx, nwaves, va):
        self.k, self.kidx, self.n, self.nw, self.va = k, kidx, 0, nwaves, va
    def start(self):
        if not STAMP: return
        self.k.I("s_memrealtime s[96:97]")
        self.k.I("s_mov_b32 s98, s2")
        self.k.I("v_mov_b32 v%d, v0" % (self.va + 1))
        self()
    def __call__(self):
        if not STAMP: return
        self.k.I("s_memtime s[%d:%d]" % (64 + 2 * self.n, 65 + 2 * self.n)); self.n += 1
        assert self.n <= 15
    def dump(self, S_WS):
        if not STAMP: return
        k, a, b = self.k, self.va, self.va + 1
        sv = self.n
        self()
        k.I("s_waitcnt vmcnt(0)")
        self()
        k.I("s_memrealtime s[94:95]")
        k.I("s_waitcnt lgkmcnt(0)")
        k.I("s_sub_u32 s94, s94, s96")
        k.I("s_mov_b32 s%d, 0x2000000" % (S_WS + 2))
        k.I("v_lshrrev_b32 v%d, 6, v%d" % (b, b))
        k.I("s_mul_i32 s98, s98, %d" % self.nw)
        k.I("v_add_u32 v%d, s98, v%d" % (b, b))
        k.I("v_lshlrev_b32 v%d, 6, v%d" % (b, b))
        k.I("s_mov_b32 s98, 0x%x" % (STAMP_OFF + (self.kidx << 20)))
        k.I("s_mov_b64 exec, 1")
        for i in range(15):
            k.I(("s_sub_u32 s99, s%d, s64" % (64 + 2 * i) if i else "s_mov_b32 s99, s96") if i < self.n else "s_mov_b32 s99, 0")
            k.I("v_mov_b32 v%d, s99" % a)
            k.I("buffer_store_dword v%d, v%d, s[%d:%d], s98 offen offset:%d" % (a, b, S_WS, S_WS + 3, 4 * i))
        k.I("v_mov_b32 v%d, s94" % a)
        k.I("buffer_store_dword v%d, v%d, s[%d:%d], s98 offen offset:60" % (a, b, S_WS, S_WS + 3))
        self.n = sv

MF = "v_mfma_f32_32x32x16_bf16"
def mfma(d, a, b, c=None):
    return "%s %s, %s, %s, %s" % (MF, d, a, b, d if c is None else "0")

EXEC_ALL = "s_mov_b64 exec, -1"
EXEC_LO = "s_mov_b64 exec, 0xffffffff"
def exec_hi(k): k.I("s_mov_b32 exec_lo, 0\ns_mov_b32 exec_hi, -1")
def exec_both(k, m): k.I("s_mov_b32 exec_lo, 0x%x\ns_mov_b32 exec_hi, 0x%x" % (m, m))

def srd(k, s, lo, hi, nbytes):
    k.I("s_mov_b32 s%d, s%d" % (s, lo))
    k.I("s_mov_b32 s%d, s%d" % (s + 1, hi))
    k.I("s_mov_b32 s%d, 0x%x" % (s + 2, nbytes))
    k.I("s_mov_b32 s%d, 0x00020000" % (s + 3))

def cvt8(k, dst, src):
    for i in range(8):
        k.I("v_cvt_pk_bf16_f32 v%d, v%d, v%d" % (dst + i, src + 2 * i, src + 2 * i + 1))
def pk(op, d, a, b, mods=""):
    return "%s v[%d:%d], v[%d:%d], v[%d:%d]%s" % (op, d, d + 1, a, a + 1, b, b + 1, mods)

def xhalf(k, op, x, t):
    k.I("v_mov_b32 v%d, v%d" % (t, x))
    k.I("v_permlane32_swap_b32 v%d, v%d" % (x, t))
    k.I("%s v%d, v%d, v%d" % (op, x, x, t))

def neg_max_pieces(k, m, t0, t1, d6, d7, s_mask):
    k.I("v_and_b32 v%d, s%d, v%d" % (t0, s_mask, m))
    k.I("v_sub_f32 v%d, v%d, v%d" % (m, m, t0))
    k.I("v_and_b32 v%d, s%d, v%d" % (t1, s_mask, m))
    k.I("v_sub_f32 v%d, v%d, v%d" % (m, m, t1))
    exec_hi(k)
    k.I("v_cvt_pk_bf16_f32 v%d, -v%d, -v%d" % (d6, t0, t1))
    k.I("v_cvt_pk_bf16_f32 v%d, -v%d, 0" % (d7, m))
    k.I(EXEC_ALL)

_cp = [0]
def code_prefetch(k, s0, vt, vlane, swave, start, end, nwaves):
    _cp[0] += 1
    lab = "Lcp%d" % _cp[0]
    if start is None: start = lab
    k.I("s_getpc_b64 s[%d:%d]" % (s0, s0 + 1))
    k.label(lab)
    k.I("s_add_u32 s%d, s%d, %s-%s" % (s0, s0, start, lab))
    k.I("s_addc_u32 s%d, s%d, %s" % (s0 + 1, s0 + 1, "0"))
    k.I("s_mov_b32 s%d, %s-%s" % (s0 + 2, end, start))
    k.I("s_mov_b32 s%d, 0x00020000" % (s0 + 3))
    k.I("v_mul_u32_u24 v%d, %d, v%d" % (vt, 128 * nwaves, vlane))
    k.I("s_lshl_b32 s%d, s%d, 7" % (s0 + 4, swave))
    k.I("buffer_load_dword v%d, v%d, s[%d:%d], s%d offen" % (vt, vt, s0, s0 + 3, s0 + 4))

class VmQueue:
    def __init__(self, k): self.k, self.q = k, []
    def add(self, tag): self.q.append(tag)
    def count_for(self, tags):
        idx = max(i for i, t in enumerate(self.q) if t in tags)
        return len(self.q) - 1 - idx
    def wait(self, tags):
        n = self.count_for(tags)
        assert n <= 63
        self.k.I("s_waitcnt vmcnt(%d)" % n)

def feature_map(k, D, FP, FM, EP, EM, T, sL, norm):
    MX, MN, TT = T, T + 2, T + 4
    for (op3, op2, r) in (("v_max3_f32", "v_max_f32", MX), ("v_min3_f32", "v_min_f32", MN)):
        k.I("%s v%d, v%d, v%d, v%d" % (op3, r, D, D + 1, D + 2))
        for i in range(3, 11, 2):
            k.I("%s v%d, v%d, v%d, v%d" % (op3, r, r, D + i, D + i + 1))
        k.I("%s v%d, v%d, v%d" % (op2, r, r, D + 11))
    k.I(EXEC_LO)
    for (op3, r) in (("v_max3_f32", MX), ("v_min3_f32", MN)):
        k.I("%s v%d, v%d, v%d, v%d" % (op3, r, r, D + 12, D + 13))
        k.I("%s v%d, v%d, v%d, v%d" % (op3, r, r, D + 14, D + 15))
    k.I(EXEC_ALL)
    k.I("v_mov_b32 v%d, v%d" % (TT, MX))
    k.I("v_mov_b32 v%d, v%d" % (TT + 1, MN))
    k.I("v_permlane32_swap_b32 v%d, v%d" % (MX, TT))
    k.I("v_permlane32_swap_b32 v%d, v%d" % (MN, TT + 1))
    k.I("v_max_f32 v%d, v%d, v%d" % (MX, MX, TT))
    k.I("v_min_f32 v%d, v%d, v%d" % (MN, MN, TT + 1))
    k.I("v_mul_f32 v%d, s%d, v%d" % (MX, sL, MX))
    k.I("v_mul_f32 v%d, s%d, v%d" % (MN, sL, MN))
    def args(i):
        k.I("v_pk_fma_f32 v[%d:%d], v[%d:%d], s[%d:%d], v[%d:%d] op_sel_hi:[1,1,0] neg_lo:[0,0,1] neg_hi:[0,0,1]" %
            (EP + 2 * i, EP + 2 * i + 1, D + 2 * i, D + 2 * i + 1, sL, sL + 1, MX, MX + 1))
        k.I("v_pk_fma_f32 v[%d:%d], v[%d:%d], s[%d:%d], v[%d:%d] op_sel_hi:[1,1,0] neg_lo:[1,0,0] neg_hi:[1,0,0]" %
            (EM + 2 * i, EM + 2 * i + 1, D + 2 * i, D + 2 * i + 1, sL, sL + 1, MN, MN + 1))
    def exps(lo, hi):
        for i in range(lo, hi):
            k.I("v_exp_f32 v%d, v%d" % (EP + i, EP + i))
            k.I("v_exp_f32 v%d, v%d" % (EM + i, EM + i))
    for i in range(6): args(i)
    k.I(EXEC_LO)
    args(6); args(7); exps(12, 16)
    k.I(EXEC_ALL)
    exps(0, 12)
    if norm:
        for (E, r) in ((EP, MX), (EM, MN)):
            k.I(pk("v_pk_add_f32", r, E + 12, E + 14))
            for i in range(6):
                k.I(pk("v_pk_add_f32", r, r, E + 2 * i))
            k.I("v_add_f32 v%d, v%d, v%d" % (r, r, r + 1))
        k.I("v_mov_b32 v%d, v%d" % (TT, MX))
        k.I("v_mov_b32 v%d, v%d" % (TT + 1, MN))
        k.I("v_permlane32_swap_b32 v%d, v%d" % (MX, TT))
        k.I("v_permlane32_swap_b32 v%d, v%d" % (MN, TT + 1))
        k.I("v_add_f32 v%d, v%d, v%d" % (MX, MX, TT))
        k.I("v_add_f32 v%d, v%d, v%d" % (MN, MN, TT + 1))
        k.I("v_rcp_f32 v%d, v%d" % (MX, MX))
        k.I("v_rcp_f32 v%d, v%d" % (MN, MN))
        for (E, r, F) in ((EP, MX, FP), (EM, MN, FM)):
            for i in range(8):
                k.I(pk("v_pk_mul_f32", E + 2 * i, E + 2 * i, r, " op_sel_hi:[1,0]"))
            cvt8(k, F, E)
    else:
        cvt8(k, FP, EP); cvt8(k, FM, EM)

def gen_k1():
    k = Kernel("qkv_kernel")
    secs = {"entry": k.items}
    def sec(name): k.items = secs.setdefault(name, [])
    OOB = 0x40000000
    PSLOT, PX, PSCR = 48128, 28672, 45056
    KSLOT, KX, KPHI = 32768, 16384, 131072
    LDS = 135168
    S_SRC, S_WS, S_PHI = 12, 16, 20
    sW, sIDX, sG, sRB, sTMP, sM, sROT, sKB = 24, 25, 26, 27, 28, 29, 30, 31
    sSOF, sSTEP, sB1, sB2, sCUR, sL, sHEAD, sDST = 32, 33, 34, 35, 36, 54, 40, 41
    sC, sP6, sP7, sDSH = 42, 44, 45, 46
    vL, vL16, vD = 1, 2, 3
    vXR, vWR = 10, 22
    vPADV, vPH = 25, 26
    T = 28
    ACC = 36
    XF, WF = 100, 116
    k.I("""
    s_cmp_ge_u32 s2, 256
    s_cbranch_scc1 L1_end
    s_bfe_u32 s3, s2, 0x20003
    s_lshr_b32 s{tmp}, s2, 5
    s_and_b32 s{tmp}, s{tmp}, 4
    s_or_b32 s3, s3, s{tmp}
    s_cmp_ge_u32 s3, 3
    s_cselect_b32 s{tmp}, 24, 0
    s_load_dwordx4 s[4:7], s[0:1], s{tmp}
    s_load_dwordx2 s[8:9], s[0:1], 72
    s_load_dwordx2 s[10:11], s[0:1], 40
    v_lshrrev_b32 v2, 6, v0
    v_and_b32 v{l}, 63, v0
    v_readfirstlane_b32 s{w}, v2
    s_bfe_u32 s{rb}, s2, 0x20001
    s_lshl_b32 s{rb}, s{rb}, 2
    s_bfe_u32 s{idx}, s2, 0x20005
    s_add_u32 s{rb}, s{rb}, s{idx}
    s_and_b32 s{idx}, s2, 1
    """.format(tmp=sTMP, l=vL, w=sW, idx=sIDX, rb=sRB))
    st = Stamper(k, 0, 8, 214); st.start()
    k.I("v_lshlrev_b32 v%d, 4, v%d" % (vL16, vL))
    TOUCH = opt("touch", 0)
    if TOUCH:
        k.I("s_cmp_eq_u32 s%d, 8" % sW)
        k.I("s_cbranch_scc1 L1_touch")
    k.I("s_cmp_ge_u32 s3, 4")
    k.I("s_cbranch_scc1 L1_kv")

    def x_voffsets():
        k.I("""
        v_lshrrev_b32 v{a}, 3, v{l}
        v_mul_u32_u24 v{a}, 896, v{a}
        v_and_b32 v{b}, 7, v{l}
        v_lshrrev_b32 v{c}, 4, v{l}
        v_xor_b32 v{b}, v{b}, v{c}
        v_lshl_add_u32 v{x0}, v{b}, 4, v{a}
        v_xor_b32 v{b}, 4, v{b}
        v_lshl_add_u32 v{x1}, v{b}, 4, v{a}
        v_add_u32 v{x1}, 7168, v{x1}
        v_add_u32 v{x2}, 14336, v{x0}
        v_add_u32 v{x3}, 14336, v{x1}
        """.format(a=T, b=T + 1, c=T + 2, l=vL, x0=vD, x1=vD + 1, x2=vD + 2, x3=vD + 3))
    GROUPS = [int(c) for c in str(opt("groups", 43))]
    assert sum(GROUPS) == 7
    sROTS = [sROT, 47, 37, 39]
    ginfo = []
    base = 0
    for gi, n in enumerate(GROUPS):
        for j in range(n): ginfo.append((gi, base, n, j))
        base += n
    def rot_from(expr_regs):
        a, b = expr_regs
        k.I("s_add_u32 s%d, s3, s%d" % (sKB, b))
        for gi, n in enumerate(GROUPS):
            if n == 1 or not ROT:
                k.I("s_mov_b32 s%d, 0" % sROTS[gi]); continue
            mg = -(-256 // n)
            assert all((x * mg) >> 8 == x // n for x in range(40))
            k.I("s_mul_i32 s%d, s%d, %d" % (sTMP, sKB, mg))
            k.I("s_lshr_b32 s%d, s%d, 8" % (sTMP, sTMP))
            k.I("s_mul_i32 s%d, s%d, %d" % (sTMP, sTMP, n))
            k.I("s_sub_u32 s%d, s%d, s%d" % (sROTS[gi], sKB, sTMP))
    def src_srd(is_x_label):
        pass
    def read_addrs(nslot, slot, xoff, wstride, wextra_sgpr, nbase):
        k.I("""
        v_and_b32 v{s}, 31, v{l}
        v_lshrrev_b32 v{h}, 5, v{l}
        v_bfe_u32 v{c}, v{l}, 1, 3
        v_xor_b32 v{c}, v{c}, v{h}
        v_lshlrev_b32 v{d}, 7, v{s}
        v_add_u32 v{d}, s{m}, v{d}
        v_lshl_add_u32 v{r0}, v{c}, 4, v{d}
        v_xor_b32 v{e}, 2, v{c}
        v_lshl_add_u32 v{r1}, v{e}, 4, v{d}
        v_xor_b32 v{e}, 4, v{c}
        v_lshl_add_u32 v{r2}, v{e}, 4, v{d}
        v_xor_b32 v{e}, 6, v{c}
        v_lshl_add_u32 v{r3}, v{e}, 4, v{d}
        v_bfe_u32 v{c}, v{l}, 4, 1
        v_lshlrev_b32 v{d}, 5, v{c}
        v_and_b32 v{c}, 3, v{l}
        v_lshl_add_u32 v{d}, v{c}, 3, v{d}
        v_bfe_u32 v{c}, v{l}, 2, 2
        v_lshl_add_u32 v{e}, v{h}, 3, v{c}
        v_mul_u32_u24 v{e}, {ws}, v{e}
        v_add3_u32 v{wr}, v{e}, v{d}, s{wx}
        v_mov_b32 v{f}, 0x3f803f80
        v_cmp_eq_u32 vcc, 28, v{s}
        """.format(s=T, h=T + 1, c=T + 2, d=T + 3, e=T + 4, f=T + 5, l=vL, m=sM, r0=vXR, r1=vXR + 1, r2=vXR + 2, r3=vXR + 3,
                   ws=wstride, wr=vWR, wx=wextra_sgpr))
        for b in range(1, nbase):
            for kk in range(4): k.I("v_add_u32 v%d, %d, v%d" % (vXR + 4 * b + kk, b * slot, vXR + kk))
            k.I("v_add_u32 v%d, %d, v%d" % (vWR + b, b * slot, vWR))
        k.I("v_cndmask_b32 v%d, 0, v%d, vcc" % (vPADV, T + 5))

    def gemm(NS, SLOT, NDMA, reads, mfmas, setup):
        vm = VmQueue(k)
        def dma(o):
            def one(i):
                def f():
                    if i == 0:
                        gi, gb, gn, gj = ginfo[o]
                        k.I("s_add_u32 s%d, s%d, %d" % (sKB, sROTS[gi], gb + gj))
                        k.I("s_sub_u32 s%d, s%d, %d" % (sTMP, sKB, gn))
                        k.I("s_cmp_ge_u32 s%d, %d" % (sKB, gb + gn))
                        k.I("s_cselect_b32 s%d, s%d, s%d" % (sKB, sTMP, sKB))
                        k.I("s_mul_i32 s%d, s%d, s%d" % (sCUR, sKB, sSTEP))
                        k.I("s_add_u32 s%d, s%d, s%d" % (sCUR, sCUR, sSOF))
                    k.I("s_add_u32 m0, s%d, %d" % (sB1 if i < 4 else sB2, (o % NS) * SLOT + 1024 * (i % 4)))
                    k.I("s_nop 0")
                    k.I("buffer_load_dwordx4 v%d, s[%d:%d], s%d offen lds" % (vD + i, S_SRC, S_SRC + 3, sCUR)); vm.add(o)
                return f
            return [one(i) for i in range(NDMA)]
        for f in dma(0): f()
        PRE1 = opt("pre1", 1)
        if PRE1:
            k.I("s_barrier")
            for f in dma(1): f()
        k.I("s_branch L1_kset")
        sec("pv")
        k.label("L1_kset")
        if opt("cpf", 2) == 1:
            code_prefetch(k, 48, 27, vL, sW, "attn_kernel", "L3_end", 8); vm.add("code")
        setup()
        k.I("s_branch L1_kmain")
        sec("kmain")
        k.label("L1_kmain")
        st()
        vm.wait([0])
        k.I("s_barrier")
        st()
        reads(0, 0)
        pend = []
        if not PRE1:
            for f in dma(1): f()
        for o in range(2, NS): pend += dma(o)
        for ks in range(28):
            o, kk = ks >> 2, ks & 3
            if kk == 3 and o < 6:
                assert vm.q.count(o + 1) == NDMA
                k.I("s_waitcnt lgkmcnt(0)")
                vm.wait([o + 1])
                k.I("s_barrier")
                st()
                reads(o + 1, 0)
                if o + NS <= 6: pend += dma(o + NS)
            elif ks < 27:
                n = reads(o, kk + 1)
                k.I("s_waitcnt lgkmcnt(%d)" % n)
            else:
                k.I("s_waitcnt lgkmcnt(0)")
            for m in mfmas(ks):
                k.I(m)
                if pend: pend.pop(0)()
        st()
    def store4(reg, soff, off, fl=SC):
        k.I("buffer_store_dwordx4 v[%d:%d], v%d, s[%d:%d], s%d offen offset:%d%s" % (reg, reg + 3, vL16, S_WS, S_WS + 3, soff, off, fl))
    PSC = opt("psc", 8)
    pfl = lambda tl: SC if tl < PSC else ""

    PS = 45056
    S_X2 = 56
    k.I("""
    s_lshl_b32 s{g}, s3, 1
    s_cmp_eq_u32 s3, 3
    s_cselect_b32 s{g}, 0, s{g}
    s_add_u32 s{g}, s{g}, s{idx}
    s_cmp_lt_u32 s{w}, 4
    s_cbranch_scc1 L1_pc
    s_sub_u32 s{w}, s{w}, 4
    s_mul_i32 s{sof}, s{w}, {r16}
    s_mul_i32 s{tmp}, s{g}, 448
    s_add_u32 s{sof}, s{sof}, s{tmp}
    s_lshl_b32 s{step}, s{rb}, 2
    s_add_u32 s{step}, s{step}, s{w}
    s_mul_i32 s{step}, s{step}, {r32}
    s_mul_i32 s{b1}, s{w}, 7168
    s_lshl_b32 s{b2}, s{w}, 12
    s_add_u32 s{b2}, s{b2}, {px}
    """.format(g=sG, idx=sIDX, rb=sRB, tmp=sTMP, w=sW, sof=sSOF, r16=16 * 2688, step=sSTEP, r32=32 * 896, b1=sB1, b2=sB2, px=PX))
    rot_from((sG, sRB))
    x_voffsets()
    vDW = 8
    for i in range(7):
        k.I("""
        v_add_u32 v{c}, {c0}, v{l}
        v_mul_u32_u24 v{r}, 2341, v{c}
        v_lshrrev_b32 v{r}, 16, v{r}
        v_mul_u32_u24 v{r}, {dl}, v{r}
        v_lshl_add_u32 v{d}, v{c}, 4, v{r}
        """.format(c=T, r=T + 1, c0=64 * i, l=vL, dl=2688 - 448, d=vDW + i))
    k.I("s_waitcnt lgkmcnt(0)")
    srd(k, S_SRC, 6, 7, 448 * 2688)
    srd(k, S_X2, 4, 5, 2048 * 896)
    vm = VmQueue(k)
    def pload(o):
        gi, gb, gn, gj = ginfo[o]
        k.I("s_add_u32 s%d, s%d, %d" % (sKB, sROTS[gi], gb + gj))
        k.I("s_sub_u32 s%d, s%d, %d" % (sTMP, sKB, gn))
        k.I("s_cmp_ge_u32 s%d, %d" % (sKB, gb + gn))
        k.I("s_cselect_b32 s%d, s%d, s%d" % (sKB, sTMP, sKB))
        k.I("s_lshl_b32 s%d, s%d, 7" % (sM, sKB))
        k.I("s_add_u32 s%d, s%d, s%d" % (sM, sM, sSTEP))
        k.I("s_mul_i32 s%d, s%d, %d" % (sCUR, sKB, 64 * 2688))
        k.I("s_add_u32 s%d, s%d, s%d" % (sCUR, sCUR, sSOF))
        for i in range(11):
            if i < 4:
                k.I("s_add_u32 m0, s%d, %d" % (sB2, (o % 3) * PS + 1024 * i))
                k.I("s_nop 0")
                k.I("buffer_load_dwordx4 v%d, s[%d:%d], s%d offen lds" % (vD + i, S_X2, S_X2 + 3, sM))
            else:
                k.I("s_add_u32 m0, s%d, %d" % (sB1, (o % 3) * PS + 1024 * (i - 4)))
                k.I("s_nop 0")
                k.I("buffer_load_dwordx4 v%d, s[%d:%d], s%d offen lds" % (vDW + i - 4, S_SRC, S_SRC + 3, sCUR))
            vm.add(o)
    pload(0); pload(1)
    if opt("pl2", 0): pload(2)
    for o in range(7):
        vm.wait([o])
        k.I("s_barrier")
        if o == 0 and not opt("pl2", 0): pload(2)
        if o >= 1 and o + 2 <= 6: pload(o + 2)
    if FUSE:
        k.I("""
        s_and_b32 s{tmp}, s2, 4
        s_lshl_b32 s{tmp}, s{tmp}, 3
        s_add_u32 s{tmp}, s{tmp}, 16
        s_load_dwordx2 s[48:49], s[0:1], s{tmp}
        s_lshr_b32 s{tmp}, s2, 3
        s_lshl_b32 s{tmp}, s{tmp}, 2
        s_add_u32 s{tmp}, s{tmp}, s{w}
        s_mul_i32 s{tmp}, s{tmp}, 6272
        v_lshlrev_b32 v{a}, 7, v{l}
        s_mov_b32 s50, {nb}
        s_mov_b32 s51, 0x00020000
        s_mov_b32 exec_hi, 0x1ffff
        s_waitcnt lgkmcnt(0)
        buffer_load_dword v{a}, v{a}, s[48:51], s{tmp} offen
        s_mov_b64 exec, -1
        s_cmp_ge_u32 s2, 2
        s_cbranch_scc1 L1_end
        v_mov_b32 v32, 0
        v_mov_b32 v33, 0
        v_mov_b32 v34, 0
        v_mov_b32 v35, 0
        s_lshl_b32 s{tmp}, s2, 2
        s_add_u32 s{tmp}, s{tmp}, s{w}
        s_lshl_b32 s{tmp}, s{tmp}, 10
        s_add_u32 s{tmp}, s{tmp}, 0x{fo:x}
        """.format(tmp=sTMP, w=sW, a=T, l=vL, nb=448 * 896, fo=FLAG_OFF))
        srd(k, S_WS, 8, 9, WS_USED)
        store4(32, sTMP, 0)
    k.I("s_endpgm")

    sec("pqk")
    k.label("L1_pc")
    PA, PF = 36, 164
    if opt("cpf", 2) == 2: code_prefetch(k, 48, 27, vL, sW, None, "L_code_end", 4)
    srd_done = False
    k.I("""
    s_and_b32 s{m}, s{w}, 1
    s_lshl_b32 s{m}, s{m}, 13
    s_add_u32 s{m}, s{m}, {px}
    s_lshr_b32 s{tmp}, s{w}, 1
    s_mul_i32 s{tmp}, s{tmp}, 224
    """.format(m=sM, w=sW, px=PX, tmp=sTMP))
    read_addrs(3, PS, PX, 448, sTMP, 1)
    for i in range(4): k.I("v_mov_b32 v%d, 0" % (PF + i))
    k.I("""
    s_and_b32 s{head}, s{g}, 1
    s_lshl_b32 s{head}, s{head}, 3
    s_and_b32 s{tmp}, s{w}, 2
    s_lshl_b32 s{tmp}, s{tmp}, 1
    s_add_u32 s{head}, s{head}, s{tmp}
    s_lshl_b32 s{dst}, s{head}, 6
    s_lshl_b32 s{tmp}, s{rb}, 2
    s_add_u32 s{dst}, s{dst}, s{tmp}
    s_and_b32 s{tmp}, s{w}, 1
    s_lshl_b32 s{tmp}, s{tmp}, 1
    s_add_u32 s{dst}, s{dst}, s{tmp}
    s_mov_b32 s{c0}, 0x{qs:x}
    s_mov_b32 s{c1}, 0x{qs:x}
    s_mov_b32 s{kb}, 7
    s_mov_b32 s{cur}, 0
    s_lshr_b32 s{tmp}, s{g}, 1
    s_cmp_eq_u32 s{tmp}, 1
    s_cselect_b32 s{p6}, 0x3f803f80, 0
    s_cselect_b32 s{p7}, 0x3f80, 0
    s_cselect_b32 s{dsh}, 12, 11
    s_cselect_b32 s{m}, {kvo}, {qo}
    s_cmp_eq_u32 s3, 3
    s_cselect_b32 s{m}, {qbo}, s{m}
    s_waitcnt lgkmcnt(0)
    """.format(head=sHEAD, g=sG, tmp=sTMP, w=sW, dst=sDST, rb=sRB, c0=sC, c1=sC + 1, qs=f2u(QSCALE), kb=sKB, cur=sCUR,
               p6=sP6, p7=sP7, dsh=sDSH, m=sM, kvo=KV_OFF, qo=Q_OFF, qbo=QB_OFF))
    for tl in range(8): k.I(mfma(vr(PA + 16 * tl, 16), vr(PF, 4), vr(PF, 4), 0))
    srd(k, S_WS, 8, 9, WS_USED)
    def p_reads(kk):
        b = PF + 24 * (kk & 1)
        L = []
        for r in range(2):
            L.append("ds_read_b128 v[%d:%d], v%d offset:%d" % (b + 4 * r, b + 4 * r + 3, vXR + kk, 4096 * r))
        for e in range(4):
            for jj in range(2):
                x = b + 8 + 4 * e + 2 * jj
                L.append("ds_read_b64_tr_b16 v[%d:%d], v%d offset:%d" % (x, x + 1, vWR, (16 * kk + 4 * jj) * 448 + 56 * e))
        return L
    def p_loop(swap, lab):
        k.label(lab)
        for kk in range(4):
            k.I("s_waitcnt lgkmcnt(0)")
            if kk == 3:
                k.I("s_barrier")
                for r in [vXR + i for i in range(4)] + [vWR]: k.I("v_add_u32 v%d, s%d, v%d" % (r, sSTEP, r))
            R = p_reads((kk + 1) & 3)
            b = PF + 24 * (kk & 1)
            n = 0
            for e in range(4):
                for r in range(2):
                    xf, wf = vr(b + 4 * r, 4), vr(b + 8 + 4 * e, 4)
                    k.I(mfma(vr(PA + 16 * (2 * e + r), 16), xf if swap else wf, wf if swap else xf))
                    for _ in range(2):
                        if R: k.I(R.pop(0))
                    n += 1
                    if kk == 0 and n == 6:
                        k.I("s_add_u32 s%d, s%d, 1" % (sCUR, sCUR))
                        k.I("s_cmp_eq_u32 s%d, 3" % sCUR)
                    if kk == 0 and n == 7:
                        k.I("s_cselect_b32 s%d, 0, s%d" % (sCUR, sCUR))
                        k.I("s_cselect_b32 s%d, %d, %d" % (sSTEP, (-2 * PS) & 0xffffffff, 0))
                    if kk == 0 and n == 8:
                        k.I("s_cselect_b32 s%d, s%d, %d" % (sSTEP, sSTEP, PS))
                    if kk == 3 and n == 7:
                        k.I("s_sub_u32 s%d, s%d, 1" % (sKB, sKB))
                        k.I("s_cmp_lg_u32 s%d, 0" % sKB)
        k.I("s_cbranch_scc1 %s" % lab)
    n0 = st.n
    def p_start():
        st()
        k.I("s_barrier")
        st()
        for t in p_reads(0): k.I(t)
    k.I("s_cmp_eq_u32 s3, 2")
    k.I("s_cbranch_scc1 L1_pv")
    p_start()
    p_loop(False, "L1_ploop")
    st()
    k.I("s_cmp_lg_u32 s3, 0")
    k.I("s_cbranch_scc1 L1_pnoscale")
    for i in range(64):
        k.I("v_pk_mul_f32 v[%d:%d], v[%d:%d], s[%d:%d]" % (PA + 2 * i, PA + 2 * i + 1, PA + 2 * i, PA + 2 * i + 1, sC, sC + 1))
    k.label("L1_pnoscale")
    k.I("s_waitcnt lgkmcnt(0)")
    for tl in range(8):
        e, r = tl >> 1, tl & 1
        F = PF + 8 * (tl % 6)
        cvt8(k, F, PA + 16 * tl)
        exec_hi(k)
        k.I("v_mov_b32 v%d, s%d" % (F + 6, sP6))
        k.I("v_mov_b32 v%d, s%d" % (F + 7, sP7))
        k.I(EXEC_ALL)
        k.I("s_add_u32 s%d, s%d, %d" % (sTMP, sDST, 64 * e + r))
        k.I("s_lshl_b32 s%d, s%d, s%d" % (sTMP, sTMP, sDSH))
        k.I("s_add_u32 s%d, s%d, s%d" % (sTMP, sTMP, sM))
        store4(F, sTMP, 0, pfl(tl)); store4(F + 4, sTMP, 1024, pfl(tl))
    st.dump(S_WS)
    k.I("s_endpgm")
    st.n = n0
    sec("pv")
    k.label("L1_pv")
    p_start()
    p_loop(True, "L1_pvloop")
    st()
    k.I("s_waitcnt lgkmcnt(0)")
    for tl in range(8):
        e, r = tl >> 1, tl & 1
        F = PF + 8 * (tl % 6)
        cvt8(k, F, PA + 16 * tl)
        exec_both(k, 0xf0000000)
        for i in range(8): k.I("v_mov_b32 v%d, v%d" % (F + i, vPADV))
        k.I(EXEC_ALL)
        k.I("s_add_u32 s%d, s%d, %d" % (sTMP, sDST, 64 * e + r))
        k.I("s_lshl_b32 s%d, s%d, 12" % (sTMP, sTMP))
        store4(F, sTMP, 2048, pfl(tl)); store4(F + 4, sTMP, 3072, pfl(tl))
    st.dump(S_WS)
    k.I("s_endpgm")

    sec("entry")
    k.label("L1_kv")
    st.n = n0
    AK, AV = ACC, ACC + 16
    IDN, PHI = ACC + 32, ACC + 40
    EP, EM = 132, 148
    k.I("""
    s_lshl_b32 s{g}, s{idx}, 2
    s_and_b32 s{tmp}, s3, 3
    s_add_u32 s{g}, s{g}, s{tmp}
    s_cmp_lt_u32 s{w}, 4
    s_cbranch_scc1 L1_kx
    s_lshl_b32 s{tmp}, s{w}, 8
    s_sub_u32 s{tmp}, s{tmp}, 1024
    v_add_u32 v{c0}, s{tmp}, v{l}
    v_mov_b32 v{oob}, 0x{oobv:x}
    """.format(g=sG, tmp=sTMP, idx=sIDX, rb=sRB, w=sW, c0=T + 4, l=vL, oob=T + 5, oobv=OOB))
    for i in range(4):
        k.I("""
        v_add_u32 v{c}, {c0}, v{cb}
        v_mul_u32_u24 v{r}, 9363, v{c}
        v_lshrrev_b32 v{r}, 16, v{r}
        v_lshlrev_b32 v{d}, 4, v{c}
        v_mul_u32_u24 v{q}, {d7}, v{r}
        v_add_u32 v{d}, v{d}, v{q}
        v_lshrrev_b32 v{r}, 1, v{r}
        v_mul_u32_u24 v{r}, 896, v{r}
        v_add_u32 v{d}, v{d}, v{r}
        v_cmp_gt_u32 vcc, 896, v{c}
        s_nop 1
        v_cndmask_b32 v{d}, v{oob}, v{d}, vcc
        """.format(c=T, r=T + 1, q=T + 2, c0=64 * i, cb=T + 4, d=vD + i, d7=896 - 112, oob=T + 5))
    k.I("""
    s_mul_i32 s{sof}, s{g}, 112
    s_add_u32 s{sof}, s{sof}, 896
    s_mov_b32 s{step}, {r64}
    s_lshl_b32 s{b1}, s{w}, 12
    s_sub_u32 s{b1}, s{b1}, 16384
    s_waitcnt lgkmcnt(0)
    """.format(sof=sSOF, g=sG, step=sSTEP, r64=64 * 2688, b1=sB1, w=sW))
    srd(k, S_SRC, 6, 7, 448 * 2688)
    k.I("s_branch L1_kgo")
    k.label("L1_kx")
    x_voffsets()
    k.I("""
    s_lshl_b32 s{sof}, s{rb}, 2
    s_add_u32 s{sof}, s{sof}, s{w}
    s_mul_i32 s{sof}, s{sof}, {r32}
    s_mov_b32 s{step}, 128
    s_lshl_b32 s{b1}, s{w}, 12
    s_add_u32 m0, s{b1}, 0
    s_add_u32 s{b1}, s{b1}, {kx}
    s_lshl_b32 s{m}, s{w}, 10
    s_mul_i32 s{tmp}, s{g}, 3136
    s_add_u32 s{tmp}, s{tmp}, s{m}
    s_add_u32 m0, s{m}, {kphi}
    s_waitcnt lgkmcnt(0)
    """.format(sof=sSOF, rb=sRB, w=sW, r32=32 * 896, step=sSTEP, b1=sB1, kx=KX, m=sM, tmp=sTMP, g=sG, kphi=KPHI))
    srd(k, S_PHI, 10, 11, 16 * 1568)
    srd(k, S_SRC, 4, 5, 2048 * 896)
    k.I("buffer_load_dwordx4 v%d, s[%d:%d], s%d offen lds" % (vL16, S_PHI, S_PHI + 3, sTMP))
    k.label("L1_kgo")
    rot_from((sG, sRB))
    def k_setup():
        srd(k, S_WS, 8, 9, WS_USED)
        k.I("""
        s_and_b32 s{m}, s{w}, 3
        s_lshl_b32 s{m}, s{m}, 12
        s_add_u32 s{m}, s{m}, {kx}
        s_lshr_b32 s{tmp}, s{w}, 2
        s_lshl_b32 s{head}, s{g}, 1
        s_add_u32 s{head}, s{head}, s{tmp}
        s_mul_i32 s{dst}, s{tmp}, 1568
        s_add_u32 s{dst}, s{dst}, {kphi}
        s_mul_i32 s{tmp}, s{tmp}, 56
        s_mov_b32 s{l0}, 0x{lg:x}
        s_mov_b32 s{l1}, 0x{lg:x}
        """.format(m=sM, w=sW, kx=KX, tmp=sTMP, head=sHEAD, g=sG, dst=sDST, kphi=KPHI, l0=sL, l1=sL + 1, lg=f2u(LOG2E)))
        read_addrs(4, 2 * KSLOT, KX, 224, sTMP, 2)
        k.I("v_lshl_add_u32 v%d, v%d, 2, v%d" % (T + 4, T + 1, T + 2))
        k.I("v_mul_u32_u24 v%d, 56, v%d" % (T + 4, T + 4))
        k.I("v_add3_u32 v%d, v%d, v%d, s%d" % (vPH, T + 4, T + 3, sDST))
        k.I("v_lshlrev_b32 v%d, 2, v%d" % (T + 2, T + 1))
        k.I("v_sub_u32 v%d, v%d, v%d" % (T + 2, T, T + 2))
        k.I("v_mov_b32 v%d, 0x3f80" % (T + 3))
        k.I("v_mov_b32 v%d, 0x3f800000" % (T + 4))
        for p in range(8):
            base = 8 * (p >> 1) + 2 * (p & 1)
            k.I("v_cmp_eq_u32 vcc, %d, v%d" % (base, T + 2))
            k.I("v_cmp_eq_u32 s[48:49], %d, v%d" % (base + 1, T + 2))
            k.I("v_cndmask_b32 v%d, 0, v%d, vcc" % (IDN + p, T + 3))
            k.I("v_cndmask_b32 v%d, v%d, v%d, s[48:49]" % (IDN + p, IDN + p, T + 4))
        for i in range(12, 16):
            k.I("v_mov_b32 v%d, 0" % (EP + i))
            k.I("v_mov_b32 v%d, 0" % (EM + i))
    def k_reads(o, kk):
        b = (4 * o + kk) & 1
        hi, lo = (o % 4) >> 1, ((o % 4) & 1) * KSLOT
        x = XF + 8 * b
        k.I("ds_read_b128 v[%d:%d], v%d offset:%d" % (x, x + 3, vXR + 4 * hi + kk, lo))
        for e in range(2):
            for jj in range(2):
                x = WF + 8 * b + 4 * e + 2 * jj
                k.I("ds_read_b64_tr_b16 v[%d:%d], v%d offset:%d" % (x, x + 1, vWR + hi, lo + (16 * kk + 4 * jj) * 224 + 112 * e))
        return 5
    def k_mfmas(ks):
        b = ks & 1
        xf = vr(XF + 8 * b, 4)
        c = 0 if ks == 0 else None
        return [mfma(vr(AK, 16), vr(WF + 8 * b, 4), xf, c), mfma(vr(AV, 16), xf, vr(WF + 8 * b + 4, 4), c)]
    gemm(4, KSLOT, 4, k_reads, k_mfmas, k_setup)
    for ff in range(2):
        for jj in range(2):
            r = PHI + 4 * ff + 2 * jj
            k.I("ds_read_b64_tr_b16 v[%d:%d], v%d offset:%d" % (r, r + 1, vPH, (16 * ff + 8 * jj) * 56))
    KF, VF, FKP, FKM = 100, 108, 116, 124
    cvt8(k, KF, AK)
    exec_hi(k)
    for r in (KF + 6, KF + 7): k.I("v_mov_b32 v%d, 0" % r)
    k.I(EXEC_ALL)
    k.I("s_waitcnt lgkmcnt(0)")
    k.I(mfma(vr(AK, 16), vr(PHI, 4), vr(KF, 4), 0))
    k.I(mfma(vr(AK, 16), vr(PHI + 4, 4), vr(KF + 4, 4)))
    cvt8(k, VF, AV)
    exec_both(k, 0xf0000000)
    for i in range(8): k.I("v_mov_b32 v%d, v%d" % (VF + i, vPADV))
    k.I(EXEC_ALL)
    feature_map(k, AK, FKP, FKM, EP, EM, T, sL, True)
    k.I(mfma(vr(AK, 16), vr(FKP, 4), vr(IDN, 4), 0))
    k.I(mfma(vr(AK, 16), vr(FKP + 4, 4), vr(IDN + 4, 4)))
    k.I(mfma(vr(AV, 16), vr(FKM, 4), vr(IDN, 4), 0))
    k.I(mfma(vr(AV, 16), vr(FKM + 4, 4), vr(IDN + 4, 4)))
    k.I("s_lshl_b32 s%d, s%d, 13" % (sTMP, sW))
    k.I("v_add_u32 v%d, s%d, v%d" % (T, sTMP, vL16))
    k.I("""
    s_and_b32 s{m}, s{w}, 3
    s_lshl_b32 s{m}, s{m}, 11
    s_and_b32 s{tmp}, s{w}, 4
    s_lshl_b32 s{tmp}, s{tmp}, 13
    s_add_u32 s{tmp}, s{tmp}, s{m}
    v_add_u32 v{t1}, s{tmp}, v{l16}
    s_lshl_b32 s{tmp}, s{head}, 4
    s_add_u32 s{tmp}, s{tmp}, s{rb}
    s_lshl_b32 s{tmp}, s{tmp}, 13
    s_add_u32 s{tmp}, s{tmp}, s{m}
    s_add_u32 s{tmp}, s{tmp}, 0x{off:x}
    """.format(m=sM, w=sW, tmp=sTMP, t1=T + 1, l16=vL16, head=sHEAD, rb=sRB, off=KVP_OFF))
    cvt8(k, FKP, AK)
    k.I(mfma(vr(EP, 16), vr(FKP, 4), vr(VF, 4), 0))
    k.I(mfma(vr(EP, 16), vr(FKP + 4, 4), vr(VF + 4, 4)))
    cvt8(k, FKM, AV)
    k.I(mfma(vr(EM, 16), vr(FKM, 4), vr(VF, 4), 0))
    k.I(mfma(vr(EM, 16), vr(FKM + 4, 4), vr(VF + 4, 4)))
    for q in range(8):
        k.I("ds_write_b128 v%d, v[%d:%d] offset:%d" % (T, EP + 4 * q, EP + 4 * q + 3, 1024 * q))
    k.I("s_waitcnt lgkmcnt(0)")
    st()
    k.I("s_barrier")
    for w in range(4):
        for q in range(2):
            r = ACC + 8 * w + 4 * q
            k.I("ds_read_b128 v[%d:%d], v%d offset:%d" % (r, r + 3, T + 1, 8192 * w + 1024 * q))
    for w in range(1, 4):
        k.I("s_waitcnt lgkmcnt(%d)" % (6 - 2 * w))
        for q in range(4):
            k.I(pk("v_pk_add_f32", ACC + 2 * q, ACC + 2 * q, ACC + 8 * w + 2 * q))
    store4(ACC, sTMP, 0); store4(ACC + 4, sTMP, 1024)
    st.dump(S_WS)
    k.label("L1_end")
    k.I("s_endpgm")
    k.items = secs["entry"] + [".p2align 12"] + secs["pqk"] + [".p2align 12"] + secs["pv"] + [".p2align 12"] + secs["kmain"]
    if TOUCH:
        k.label("L1_touch")
        k.I("""
        v_and_b32 v8, 15, v{l}
        v_mul_u32_u24 v8, 2688, v8
        v_lshrrev_b32 v9, 4, v{l}
        s_and_b32 s{tmp}, s{rb}, 3
        s_mul_i32 s{sof}, s{tmp}, {r16}
        s_mul_i32 s{b1}, s{rb}, {xr128}
        s_cmp_ge_u32 s3, 4
        s_cbranch_scc1 L1_tkv
        v_lshl_add_u32 v8, v9, 7, v8
        s_lshl_b32 s{g}, s3, 1
        s_cmp_eq_u32 s3, 3
        s_cselect_b32 s{g}, 0, s{g}
        s_add_u32 s{g}, s{g}, s{idx}
        s_mul_i32 s{tmp}, s{g}, 448
        s_add_u32 s{sof}, s{sof}, s{tmp}
        v_mul_u32_u24 v10, 896, v{l}
        v_add_u32 v11, 128, v10
        s_and_b32 s{tmp}, s3, 1
        s_mul_i32 s{tmp}, s{tmp}, {xr64}
        s_add_u32 s{b1}, s{b1}, s{tmp}
        s_cmp_ge_u32 s3, 2
        s_cselect_b32 s{b1}, 0x40000000, s{b1}
        s_branch L1_tgo
        L1_tkv:
        v_and_b32 v10, 1, v9
        v_mul_u32_u24 v10, 111, v10
        v_lshrrev_b32 v9, 1, v9
        v_mul_u32_u24 v11, 896, v9
        v_add3_u32 v8, v8, v10, v11
        s_lshl_b32 s{g}, s{idx}, 2
        s_and_b32 s{tmp}, s3, 3
        s_add_u32 s{g}, s{g}, s{tmp}
        s_mul_i32 s{g}, s{g}, 112
        s_add_u32 s{sof}, s{sof}, s{g}
        s_add_u32 s{sof}, s{sof}, 896
        s_mul_i32 s{tmp}, s{tmp}, {xr32}
        s_add_u32 s{b1}, s{b1}, s{tmp}
        v_and_b32 v10, 31, v{l}
        v_mul_u32_u24 v10, 896, v10
        v_lshl_add_u32 v10, v9, 7, v10
        v_mov_b32 v11, 0x40000000
        L1_tgo:
        s_waitcnt lgkmcnt(0)
        """.format(l=vL, tmp=sTMP, rb=sRB, sof=sSOF, r16=16 * 2688, b1=sB1, xr128=128 * 896, g=sG, idx=sIDX, xr64=64 * 896, xr32=32 * 896))
        srd(k, 12, 6, 7, 448 * 2688)
        srd(k, 16, 4, 5, 2048 * 896)
        def touch(kb, n):
            for j in range(kb, kb + n):
                k.I("s_add_u32 s%d, s%d, %d" % (sTMP, sSOF, j * 64 * 2688))
                k.I("buffer_load_dword v12, v8, s[12:15], s%d offen" % sTMP)
            k.I("buffer_load_dword v13, v10, s[16:19], s%d offen offset:%d" % (sB1, 128 * kb))
            if n == 2: k.I("buffer_load_dword v14, v11, s[16:19], s%d offen offset:%d" % (sB1, 128 * kb))
        plan = {1: [[(2, 2)], [(4, 2)], [(6, 1)]], 2: [[(2, 2), (4, 2)], [(6, 1)]], 3: [[(2, 2)], [], [(4, 2)], [(6, 1)]], 4: [[(2, 2), (4, 2), (6, 1)]]}[TOUCH]
        for grp in plan:
            k.I("s_barrier")
            for kb, n in grp: touch(kb, n)
        k.I("s_endpgm")
    return k, dict(grid=256, block=576 if TOUCH else 512, lds=LDS, vgpr=216, agpr=0, sgpr=102 if STAMP else 60)

def gen_k2():
    k = Kernel("attn_kernel")
    R = 4
    S_WS = 4
    sW, sHEAD, sTMP, sT, sU, sKVB, sP, sMASK, sPB, sPQ, sOA, sQA, sCNT = 8, 9, 10, 11, 12, 13, 14, 15, 17, 18, 19, 21, 16
    vL16 = 1
    Q = {"a": 4, "b": 12}
    S = {"a": 20, "b": 36}
    P = {"a": 52, "b": 60}
    O = {"a": 68, "b": 84}
    T = 100
    LKV, LPHI, LCNT, LWO = 16384, 20480, 22528, 23552
    def KR(i, f): return ar((i % R) * 16 + 4 * f, 4)
    def VR(i, f): return ar((i % R) * 16 + 8 + 4 * f, 4)
    k.I("""
    s_load_dwordx2 s[{ws0}:{ws1}], s[0:1], 72
    s_cmp_ge_u32 s2, 256
    s_cbranch_scc1 L2_end
    v_lshrrev_b32 v2, 6, v0
    v_and_b32 v1, 63, v0
    v_lshlrev_b32 v1, 4, v1
    v_readfirstlane_b32 s{w}, v2
    s_and_b32 s{head}, s2, 7
    s_lshl_b32 s{head}, s{head}, 1
    s_lshr_b32 s{tmp}, s2, 7
    s_add_u32 s{head}, s{head}, s{tmp}
    s_bfe_u32 s{t}, s2, 0x40003
    s_lshl_b32 s{t}, s{t}, 2
    s_mov_b32 s{ws2}, 0x{used:x}
    s_mov_b32 s{ws3}, 0x00020000
    s_cmp_ge_u32 s{w}, 4
    s_cbranch_scc1 L2_help
    s_load_dwordx2 s[24:25], s[0:1], 56
    s_lshr_b32 s{u}, s{w}, 1
    s_and_b32 s{tmp}, s{w}, 1
    s_lshl_b32 s{tmp}, s{tmp}, 1
    s_add_u32 s{t}, s{t}, s{tmp}
    s_add_u32 s{t}, s{t}, s{u}
    s_lshl_b32 s{tmp}, s{head}, 6
    s_add_u32 s{tmp}, s{t}, s{tmp}
    s_lshl_b32 s{tmp}, s{tmp}, 11
    s_add_u32 s{tmp}, s{tmp}, 0x{qoff:x}
    s_xor_b32 s{qa}, s{tmp}, 0x800
    s_lshl_b32 s{kvb}, s{head}, 18
    s_lshl_b32 s{p}, s{u}, 17
    s_add_u32 s{p}, s{kvb}, s{p}
    s_waitcnt lgkmcnt(0)
    """.format(w=sW, head=sHEAD, tmp=sTMP, u=sU, t=sT, kvb=sKVB, p=sP, qoff=Q_OFF, qa=sQA,
               ws0=S_WS, ws1=S_WS + 1, ws2=S_WS + 2, ws3=S_WS + 3, used=WS_USED))
    st = Stamper(k, 1, 4, 126); st.start()
    def ld(dst, soff, off):
        k.I("buffer_load_dwordx4 %s, v%d, s[%d:%d], s%d offen offset:%d%s" % (dst, vL16, S_WS, S_WS + 3, soff, off, LSC))
    ld(KR(3, 0), sKVB, 0); ld(KR(3, 1), sKVB, 1024)
    ld(vr(Q["a"], 4), sQA, 0); ld(vr(Q["a"] + 4, 4), sQA, 1024)
    ld(vr(Q["b"], 4), sTMP, 0); ld(vr(Q["b"] + 4, 4), sTMP, 1024)
    for j in range(3):
        ld(KR(j, 0), sP, 0); ld(KR(j, 1), sP, 1024); ld(VR(j, 0), sP, 2048); ld(VR(j, 1), sP, 3072)
        k.I("s_add_u32 s%d, s%d, 4096" % (sP, sP))
    for i in range(8): k.I("v_mov_b32 v%d, 0" % (P["b"] + i))
    for i in range(8): k.I("v_accvgpr_write_b32 a%d, 0" % (56 + i))
    for x in "ab": k.I(mfma(vr(O[x], 16), vr(P["b"], 4), vr(P["b"], 4), 0))
    k.I("s_barrier")
    k.I("""
    s_mov_b32 s{mask}, 0xffff0000
    s_lshl_b32 s{tmp}, s{t}, 4
    s_add_u32 s{tmp}, s{tmp}, s{head}
    s_lshl_b32 s{tmp}, s{tmp}, 11
    s_add_u32 s{oa}, s{tmp}, 0x{ooff:x}
    s_lshl_b32 s{tmp}, s{w}, 12
    v_add_u32 v3, s{tmp}, v1
    s_xor_b32 s{tmp}, s{tmp}, 0x2000
    v_add_u32 v2, s{tmp}, v1
    s_mov_b32 s{cnt}, 7
    """.format(head=sHEAD, tmp=sTMP, w=sW, t=sT, mask=sMASK, oa=sOA, ooff=O_OFF, cnt=sCNT))

    def qk(x, i):
        return [mfma(vr(S[x], 16), KR(i, 0), vr(Q[x], 4), 0), mfma(vr(S[x], 16), KR(i, 1), vr(Q[x] + 4, 4))]
    def pv(x, i):
        return [mfma(vr(O[x], 16), VR(i, 0), vr(P[x], 4)), mfma(vr(O[x], 16), VR(i, 1), vr(P[x] + 4, 4))]
    def phase(x, mf, after):
        def cv(n): return "v_cvt_pk_bf16_f32 v%d, v%d, v%d" % (P[x] + n, S[x] + 2 * n, S[x] + 2 * n + 1)
        def ex(n): return "v_exp_f32 v%d, v%d" % (S[x] + n, S[x] + n)
        for g in range(4):
            if mf[g] is not None: k.I(mf[g])
            if after[g] is not None: after[g]()
            k.I(ex(4 * g)); k.I(ex(4 * g + 1))
            if g > 0: k.I(cv(2 * g - 1))
            k.I(ex(4 * g + 2)); k.I(ex(4 * g + 3))
            k.I(cv(2 * g))
        k.I(cv(7))
    def bcast_hi(src, t0, t1):
        k.I("v_mov_b32 v%d, v%d" % (t0, src))
        k.I("v_mov_b32 v%d, v%d" % (t1, src))
        k.I("v_permlane32_swap_b32 v%d, v%d" % (t0, t1))
    def normalise(X, F, soff, eps):
        bcast_hi(X + 12, T, T + 2)
        if eps: k.I("v_add_f32 v%d, 0x%x, v%d" % (T + 2, f2u(1e-6), T + 2))
        k.I("v_rcp_f32 v%d, v%d" % (T + 2, T + 2))
        for i in range(8):
            k.I(pk("v_pk_mul_f32", X + 2 * i, X + 2 * i, T + 2, " op_sel_hi:[1,0]"))
        cvt8(k, F, X)
        exec_hi(k)
        k.I("v_mov_b32 v%d, 0" % (F + 6))
        k.I("v_mov_b32 v%d, 0" % (F + 7))
        k.I(EXEC_ALL)
        for f in range(2):
            k.I("buffer_store_dwordx4 v[%d:%d], v%d, s[%d:%d], s%d offen offset:%d%s" % (F + 4 * f, F + 4 * f + 3, vL16, S_WS, S_WS + 3, soff, 1024 * f, SC))

    st()
    k.I("s_waitcnt vmcnt(12)")
    st()
    for m in qk("a", 3) + qk("b", 3): k.I(m)
    ld(KR(3, 0), sP, 0)
    k.I("s_add_u32 s%d, s%d, %d" % (sP, sP, 2048 - 4096))
    for x, m in (("a", T), ("b", T + 4)):
        k.I("v_max3_f32 v%d, v%d, v%d, v%d" % (m, S[x], S[x] + 1, S[x] + 2))
        for i in range(3, 15, 2):
            k.I("v_max3_f32 v%d, v%d, v%d, v%d" % (m, m, S[x] + i, S[x] + i + 1))
        k.I("v_max_f32 v%d, v%d, v%d" % (m, m, S[x] + 15))
        xhalf(k, "v_max_f32", m, m + 1)
        k.I("v_add_f32 v%d, 0x%x, v%d" % (m, f2u(MOFF), m))
        neg_max_pieces(k, m, m + 1, m + 2, Q[x] + 6, Q[x] + 7, sMASK)
        if x == "a":
            k.I("s_waitcnt vmcnt(11)")
            for mm in qk("a", 0): k.I(mm)
    st()
    I = lambda t: (lambda: k.I(t))
    def tile(i, wait, loads, last=False, b1=None):
        L = [lambda: ld(KR(i + 3, 1), sP, 3072), lambda: ld(KR(i + 4, 0), sP, 2048), lambda: ld(VR(i + 3, 0), sP, 0), lambda: ld(VR(i + 3, 1), sP, 1024)]
        L = [f if u else None for f, u in zip(L, loads)]
        phase("a", qk("b", i) + pv("b", i - 1),
              [L[0], I("s_add_u32 s%d, s%d, 4096" % (sP, sP)) if any(loads) else None, L[1], I("s_waitcnt vmcnt(%d)" % wait)])
        if not last:
            phase("b", qk("a", i + 1) + pv("a", i), [L[2], b1, L[3], None])
        else:
            def send():
                for q in range(4):
                    k.I("ds_write_b128 v3, v[%d:%d] offset:%d" % (O["a"] + 4 * q, O["a"] + 4 * q + 3, 1024 * q))
            phase("b", pv("a", i) + [None, None], [None, None, None, send])
    k.label("L2_loop")
    for j in range(4):
        tile(j, 9, (1, 1, 1, 1), b1=I("s_sub_u32 s%d, s%d, 1" % (sCNT, sCNT)) if j == 3 else None)
    k.I("s_cmp_lg_u32 s%d, 0" % sCNT)
    k.I("s_cbranch_scc1 L2_loop")
    st()
    tile(28, 8, (1, 0, 1, 1)); tile(29, 6, (0, 0, 0, 0)); tile(30, 2, (0, 0, 0, 0)); tile(31, 0, (0, 0, 0, 0), last=True)
    for m in pv("b", 31): k.I(m)
    st()
    k.I("s_waitcnt lgkmcnt(0)")
    k.I("s_barrier")
    for q in range(4):
        k.I("ds_read_b128 v[%d:%d], v2 offset:%d" % (O["a"] + 4 * q, O["a"] + 4 * q + 3, 1024 * q))
    OB = O["b"]
    for q in range(4):
        k.I("s_waitcnt lgkmcnt(%d)" % (3 - q))
        k.I(pk("v_pk_add_f32", OB + 4 * q, OB + 4 * q, O["a"] + 4 * q))
        k.I(pk("v_pk_add_f32", OB + 4 * q + 2, OB + 4 * q + 2, O["a"] + 4 * q + 2))
    k.I("v_pk_mul_f32 v[%d:%d], v[%d:%d], 0" % (T, T + 1, OB, OB + 1))
    for i in range(1, 8):
        k.I("v_pk_fma_f32 v[%d:%d], v[%d:%d], 0, v[%d:%d]" % (T, T + 1, OB + 2 * i, OB + 2 * i + 1, T, T + 1))
    k.I("v_cmp_u_f32 vcc, v%d, v%d" % (T, T + 1))
    k.I("s_cbranch_vccnz L2_slow")
    k.label("L2_norm")
    normalise(OB, P["a"], sOA, False)
    def publish(br):
        k.I("""
        s_lshl_b32 s{tmp}, s{t}, 4
        s_add_u32 s{tmp}, s{tmp}, s{head}
        s_lshl_b32 s{tmp}, s{tmp}, 2
        s_add_u32 s{tmp}, s{tmp}, 0x{fo:x}
        v_mov_b32 v{a}, 1
        s_mov_b64 exec, 1
        s_waitcnt vmcnt(0)
        buffer_store_dword v{a}, v1, s[{ws}:{ws3}], s{tmp} offen sc1
        s_mov_b64 exec, -1
        """.format(tmp=sTMP, t=sT, head=sHEAD, fo=FLAG_OFF + 4096 * br, a=T, ws=S_WS, ws3=S_WS + 3))
    if FUSE:
        st()
        publish(0)
        k.I("s_branch L3_go")
    else:
        st.dump(S_WS)
    k.label("L2_end")
    k.I("s_endpgm")

    k.label("L2_help")
    HM = opt("hmode", 0)
    if HM == 1: k.I("s_endpgm")
    PART = 4
    NP, NM, PQ, FQ = 12, 28, 44, 60
    FB, EP, EM = 76, 84, 112
    KVF, PHI, QB = 0, 16, 24
    SWO, SPHI, sL = 24, 28, 32
    k.I("""
    s_and_b32 s3, s2, 4
    s_lshl_b32 s3, s3, 3
    s_add_u32 s3, s3, 16
    s_load_dwordx2 s[22:23], s[0:1], s3
    s_load_dwordx2 s[20:21], s[0:1], 40
    v_mov_b32 v{a}, {lcnt}
    v_mov_b32 v{b}, 0
    ds_write_b32 v{a}, v{b}
    s_and_b32 s{w}, s{w}, 3
    s_add_u32 s{t}, s{t}, s{w}
    s_lshl_b32 s{tmp}, s{head}, 6
    s_add_u32 s{tmp}, s{t}, s{tmp}
    s_lshl_b32 s{pq}, s{tmp}, 11
    s_add_u32 s{pq}, s{pq}, 0x{qbo:x}
    s_lshl_b32 s{pb}, s{head}, 17
    s_lshl_b32 s{tmp}, s{w}, 11
    s_add_u32 s{pb}, s{pb}, s{tmp}
    s_add_u32 s{pb}, s{pb}, 0x{kvp:x}
    s_mov_b32 s{l0}, 0x{lg:x}
    s_mov_b32 s{l1}, 0x{lg:x}
    s_lshl_b32 s{tmp}, s{t}, 4
    s_add_u32 s{tmp}, s{tmp}, s{head}
    s_lshl_b32 s{tmp}, s{tmp}, 11
    s_add_u32 s{oa}, s{tmp}, 0x{ooffb:x}
    s_add_u32 s{qa}, s{tmp}, 0x{ooff:x}
    s_lshl_b32 s{tmp}, s{w}, 10
    v_add_u32 v2, s{tmp}, v1
    v_lshrrev_b32 v{a}, 9, v1
    v_bfe_u32 v{b}, v1, 6, 2
    v_lshl_add_u32 v{a}, v{a}, 2, v{b}
    v_mul_u32_u24 v{a}, 56, v{a}
    v_bfe_u32 v{b}, v1, 8, 1
    v_lshl_add_u32 v{a}, v{b}, 5, v{a}
    v_bfe_u32 v{b}, v1, 4, 2
    v_lshl_add_u32 v3, v{b}, 3, v{a}
    s_lshr_b32 s{tmp}, s2, 3
    s_lshl_b32 s{tmp}, s{tmp}, 2
    s_add_u32 s{tmp}, s{tmp}, s{w}
    s_mul_i32 s3, s{tmp}, 3200
    v_lshlrev_b32 v{x}, 3, v1
    v_mov_b32 v{y}, 0x40000000
    v_cmp_gt_u32 vcc, 3200, v{x}
    s_and_b32 s16, s{w}, 1
    s_lshl_b32 s16, s16, 10
    v_cndmask_b32 v{x}, v{y}, v{x}, vcc
    s_add_u32 m0, s16, {lphi}
    s_mul_i32 s{tmp}, s{head}, 1568
    s_add_u32 s16, s16, s{tmp}
    s_setprio {prio}
    s_waitcnt lgkmcnt(0)
    s_barrier
    """.format(pb=sPB, head=sHEAD, tmp=sTMP, w=sW, kvp=KVP_OFF, t=sT, pq=sPQ, qbo=QB_OFF, oa=sOA, ooffb=O_OFF + (2 << 20), qa=sKVB, ooff=O_OFF,
               a=T, b=T + 1, x=T + 10, y=T + 11, l0=sL, l1=sL + 1, lg=f2u(LOG2E), lphi=LPHI, prio=opt("hprio", 1), lcnt=LCNT))
    srd(k, SWO, 22, 23, 448 * 896)
    srd(k, SPHI, 20, 21, 16 * 1568)
    k.I("buffer_load_dwordx4 v%d, s[%d:%d], s16 offen lds" % (vL16, SPHI, SPHI + 3))
    for f in range(2): ld(ar(QB + 4 * f, 4), sPQ, 1024 * f)
    def pload(blk, pos):
        for q in range(2): ld(vr(PART + 8 * pos + 4 * q, 4), sPB, 1024 * q)
        k.I("s_add_u32 s%d, s%d, 8192" % (sPB, sPB))
    DEPTH = opt("hdepth", 1)
    pos = lambda blk: 0 if blk == 0 else 1 + (blk - 1) % 8
    BAT = opt("hbat", 1)
    nb = 16 // BAT
    for blk in range(BAT): pload(blk, pos(blk))
    for i in range(12, 16):
        k.I("v_mov_b32 v%d, 0" % (EP + i))
        k.I("v_mov_b32 v%d, 0" % (EM + i))
    for bt in range(nb):
        if DEPTH and bt + 1 < nb:
            for blk in range(BAT * (bt + 1), BAT * (bt + 2)): pload(blk, pos(blk))
        k.I("s_waitcnt vmcnt(%d)" % (2 * BAT if (DEPTH and bt + 1 < nb) else 0))
        for blk in range(max(BAT * bt, 1), BAT * (bt + 1)):
            for q in range(4):
                k.I(pk("v_pk_add_f32", PART + 2 * q, PART + 2 * q, PART + 8 * pos(blk) + 2 * q))
        if not DEPTH and bt + 1 < nb:
            for blk in range(BAT * (bt + 1), BAT * (bt + 2)): pload(blk, pos(blk))
    for q in range(4):
        k.I("v_cvt_pk_bf16_f32 v%d, v%d, v%d" % (T + q, PART + 2 * q, PART + 2 * q + 1))
    exec_both(k, 0x20000000)
    for q in range(4): k.I("v_mov_b32 v%d, 0x3f803f80" % (T + q))
    k.I(EXEC_ALL)
    k.I("ds_write_b128 v2, v[%d:%d] offset:%d" % (T, T + 3, LKV))
    if opt("wopf", 1) and not FUSE:
        k.I("buffer_load_dword v%d, v%d, s[%d:%d], s3 offen" % (T + 11, T + 10, SWO, SWO + 3))
    k.I("""
    v_mov_b32 v{a}, {lcnt}
    v_mov_b32 v{b}, 1
    s_mov_b64 exec, 1
    s_waitcnt lgkmcnt(0)
    ds_add_u32 v{a}, v{b}
    L2_poll:
    ds_read_b32 v{b}, v{a}
    s_waitcnt lgkmcnt(0)
    v_cmp_ne_u32 vcc, 4, v{b}
    s_cbranch_vccnz L2_poll
    s_mov_b64 exec, -1
    """.format(a=T + 4, b=T + 5, lcnt=LCNT))
    for ff in range(2):
        for jj in range(2):
            r = PHI + 4 * ff + 2 * jj
            k.I("ds_read_b64_tr_b16 a[%d:%d], v3 offset:%d" % (r, r + 1, LPHI + (16 * ff + 8 * jj) * 56))
    for f in range(4):
        k.I("ds_read_b128 a[%d:%d], v%d offset:%d" % (KVF + 4 * f, KVF + 4 * f + 3, vL16, LKV + 1024 * f))
    if HM == 3: k.I("s_endpgm")
    k.I("s_setprio %d" % opt("hprio2", 1))
    k.I("s_waitcnt lgkmcnt(4)")
    k.I(mfma(vr(PQ, 16), ar(PHI, 4), ar(QB, 4), 0))
    k.I(mfma(vr(PQ, 16), ar(PHI + 4, 4), ar(QB + 4, 4)))
    feature_map(k, PQ, FQ, FQ + 8, EP, EM, T, sL, False)
    k.I("s_waitcnt lgkmcnt(0)")
    for f in range(4):
        k.I(mfma(vr(NP if f < 2 else NM, 16), ar(KVF + 4 * f, 4), vr(FQ + 4 * f, 4), 0 if f % 2 == 0 else None))
    bcast_hi(NP + 13, T, T + 2)
    bcast_hi(NM + 13, T + 1, T + 4)
    k.I("v_rcp_f32 v%d, v%d" % (T + 2, T + 2))
    k.I("v_rcp_f32 v%d, v%d" % (T + 4, T + 4))
    for i in range(8):
        k.I(pk("v_pk_mul_f32", NP + 2 * i, NP + 2 * i, T + 2, " op_sel_hi:[1,0]"))
    for i in range(8):
        k.I("v_pk_fma_f32 v[%d:%d], v[%d:%d], v[%d:%d], v[%d:%d] op_sel_hi:[1,0,1]" %
            (NP + 2 * i, NP + 2 * i + 1, NM + 2 * i, NM + 2 * i + 1, T + 4, T + 5, NP + 2 * i, NP + 2 * i + 1))
    normalise(NP, FB, sOA, True)
    if FUSE:
        publish(1)
        k.I("""
        s_cmp_ge_u32 s2, 224
        s_cbranch_scc1 L2_end
        v_lshrrev_b32 v{a}, 7, v1
        v_mul_u32_u24 v{a}, 896, v{a}
        v_bfe_u32 v{b}, v1, 4, 3
        v_bfe_u32 v{c}, v1, 8, 1
        v_lshlrev_b32 v{c}, 2, v{c}
        v_xor_b32 v{b}, v{b}, v{c}
        v_lshl_add_u32 v{a}, v{b}, 4, v{a}
        s_mul_i32 s3, s{w}, {r8}
        s_lshr_b32 s{tmp}, s2, 5
        s_lshl_b32 s{tmp}, s{tmp}, 7
        s_add_u32 s3, s3, s{tmp}
        s_lshl_b32 s16, s{w}, 10
        """.format(a=T, b=T + 1, c=T + 2, w=sW, r8=8 * 896, tmp=sTMP))
        for n in range(15):
            k.I("s_add_u32 m0, s16, %d" % (LWO + n * 4096))
            k.I("s_add_u32 s%d, s3, %d" % (sTMP, n * 32 * 896))
            k.I("buffer_load_dwordx4 v%d, s[%d:%d], s%d offen lds" % (T, SWO, SWO + 3, sTMP))
            k.I("s_waitcnt vmcnt(%d)" % (opt("wodepth", 1) if n < 14 else 0))
    k.I("s_endpgm")

    k.label("L2_slow")
    SS, QQ = S["b"], Q["b"]
    exec_hi(k)
    k.I("v_mov_b32 v%d, 0" % (QQ + 6))
    k.I("v_mov_b32 v%d, 0" % (QQ + 7))
    k.I(EXEC_ALL)
    k.I("v_mov_b32 v%d, 0xff800000" % T)
    k.I("s_mov_b32 s%d, s%d" % (sP, sKVB))
    k.I("s_add_u32 s%d, s%d, 0x40000" % (sTMP, sKVB))
    k.label("L2_slow1")
    ld(ar(0, 4), sP, 0); ld(ar(4, 4), sP, 1024)
    k.I("s_waitcnt vmcnt(0)")
    k.I(mfma(vr(SS, 16), ar(0, 4), vr(QQ, 4), 0))
    k.I(mfma(vr(SS, 16), ar(4, 4), vr(QQ + 4, 4)))
    for i in range(0, 16, 2):
        k.I("v_max3_f32 v%d, v%d, v%d, v%d" % (T, T, SS + i, SS + i + 1))
    k.I("s_add_u32 s%d, s%d, 4096" % (sP, sP))
    k.I("s_cmp_lt_u32 s%d, s%d" % (sP, sTMP))
    k.I("s_cbranch_scc1 L2_slow1")
    xhalf(k, "v_max_f32", T, T + 1)
    neg_max_pieces(k, T, T + 1, T + 2, QQ + 6, QQ + 7, sMASK)
    for i in range(16): k.I("v_mov_b32 v%d, 0" % (OB + i))
    k.I("s_mov_b32 s%d, s%d" % (sP, sKVB))
    k.label("L2_slow2")
    for f in range(4): ld(ar(4 * f, 4), sP, 1024 * f)
    k.I("s_waitcnt vmcnt(0)")
    k.I(mfma(vr(SS, 16), ar(0, 4), vr(QQ, 4), 0))
    k.I(mfma(vr(SS, 16), ar(4, 4), vr(QQ + 4, 4)))
    for i in range(16): k.I("v_exp_f32 v%d, v%d" % (SS + i, SS + i))
    cvt8(k, P["a"], SS)
    k.I(mfma(vr(OB, 16), ar(8, 4), vr(P["a"], 4)))
    k.I(mfma(vr(OB, 16), ar(12, 4), vr(P["a"] + 4, 4)))
    k.I("s_add_u32 s%d, s%d, 4096" % (sP, sP))
    k.I("s_cmp_lt_u32 s%d, s%d" % (sP, sTMP))
    k.I("s_cbranch_scc1 L2_slow2")
    k.I("s_nop 7\ns_nop 7")
    k.I("s_branch L2_norm")
    if FUSE:
        k.I(".p2align 12")
        k.label("L3_go")
        S_OUT = 24
        sBR, sRB, sCG, sO, sFL, sN = 28, 29, 30, 31, 32, 33
        vWR, vWR1, vST, vFL = 4, 5, 6, 7
        ACC, WF = (20, 36), 52
        vm = VmQueue(k)
        k.I("""
        s_cmp_ge_u32 s2, 224
        s_cbranch_scc1 L2_end
        s_bfe_u32 s{br}, s2, 0x10002
        s_and_b32 s{rb}, s2, 3
        s_lshl_b32 s{rb}, s{rb}, 2
        s_bfe_u32 s{tmp}, s2, 0x20003
        s_add_u32 s{rb}, s{rb}, s{tmp}
        s_lshl_b32 s{rb}, s{rb}, 2
        s_add_u32 s{rb}, s{rb}, s{w}
        s_lshl_b32 s{o}, s{br}, 6
        s_add_u32 s{o}, s{o}, s{rb}
        s_lshl_b32 s{fl}, s{o}, 6
        s_add_u32 s{fl}, s{fl}, 0x{fo:x}
        v_lshrrev_b32 v{vfl}, 2, v1
        s_mov_b32 s{n}, 0x20000
        s_mov_b64 exec, 0xffff
        L3_poll:
        buffer_load_dword v{a}, v{vfl}, s[{ws}:{ws3}], s{fl} offen sc1
        s_sub_u32 s{n}, s{n}, 1
        s_cbranch_scc1 L3_ready
        s_waitcnt vmcnt(0)
        v_cmp_ne_u32 vcc, 1, v{a}
        s_cbranch_vccnz L3_poll
        L3_ready:
        s_mov_b64 exec, -1
        s_lshl_b32 s{o}, s{o}, 15
        s_add_u32 s{o}, s{o}, 0x{ooff:x}
        """.format(br=sBR, rb=sRB, tmp=sTMP, w=sW, o=sO, fl=sFL, fo=FLAG_OFF, vfl=vFL, n=sN, a=T, ws=S_WS, ws3=S_WS + 3, ooff=O_OFF))
        st()
        def oload(h, f):
            if h % 2 == 0 and f == 0: k.I("s_add_u32 s%d, s%d, %d" % (sFL, sO, h * 2048))
            k.I("buffer_load_dwordx4 a[%d:%d], v%d, s[%d:%d], s%d offen offset:%d sc1" % (8 * h + 4 * f, 8 * h + 4 * f + 3, vL16, S_WS, S_WS + 3, sFL, (h % 2) * 2048 + 1024 * f))
            vm.add("o%d" % h)
        AHEAD = opt("ahead", 8)
        for hh in range(AHEAD): oload(hh, 0); oload(hh, 1)
        k.I("""
        v_lshrrev_b32 v{h}, 9, v1
        v_lshlrev_b32 v{wr}, 9, v{h}
        v_bfe_u32 v{c}, v1, 6, 2
        v_lshl_add_u32 v{wr}, v{c}, 7, v{wr}
        v_bfe_u32 v{c}, v1, 7, 1
        v_lshl_add_u32 v{wr}, v{c}, 6, v{wr}
        v_bfe_u32 v{c}, v1, 8, 1
        v_lshl_add_u32 v{wr}, v{c}, 5, v{wr}
        v_bfe_u32 v{c}, v1, 4, 2
        v_lshl_add_u32 v{wr}, v{c}, 3, v{wr}
        v_add_u32 v{wr}, {lwo}, v{wr}
        v_xor_b32 v{wr1}, 64, v{wr}
        v_bfe_u32 v{c}, v1, 4, 5
        v_mul_u32_u24 v{c}, 1792, v{c}
        v_lshl_add_u32 v{st}, v{h}, 4, v{c}
        s_mul_i32 s{rb}, s{rb}, {r32}
        s_mul_i32 s{tmp}, s{br}, 896
        s_add_u32 s{rb}, s{rb}, s{tmp}
        s_lshr_b32 s{tmp}, s2, 5
        s_lshl_b32 s{tmp}, s{tmp}, 7
        s_add_u32 s{rb}, s{rb}, s{tmp}
        s_mov_b32 s{o2}, {nb}
        s_mov_b32 s{o3}, 0x00020000
        """.format(h=T, c=T + 1, wr=vWR, wr1=vWR1, st=vST, rb=sRB, r32=32 * 1792, tmp=sTMP, br=sBR, lwo=LWO, o2=S_OUT + 2, o3=S_OUT + 3, nb=2048 * 1792))
        def wread(hh):
            b = WF + 16 * (hh & 1)
            L = []
            for f in range(2):
                for c in range(2):
                    for jj in range(2):
                        r = b + 8 * c + 4 * f + 2 * jj
                        L.append("ds_read_b64_tr_b16 v[%d:%d], v%d offset:%d" % (r, r + 1, vWR1 if c else vWR, (28 * hh + 16 * f + 8 * jj) * 128))
            return L
        for x in wread(0): k.I(x)
        for hh in range(16):
            nxt = wread(hh + 1) if hh + 1 < 16 else []
            for x in nxt: k.I(x)
            vm.wait(["o%d" % hh])
            k.I("s_waitcnt lgkmcnt(%d)" % len(nxt))
            b = WF + 16 * (hh & 1)
            n = 0
            for f in range(2):
                for c in range(2):
                    k.I(mfma(vr(ACC[c], 16), vr(b + 8 * c + 4 * f, 4), ar(8 * hh + 4 * f, 4), 0 if (hh == 0 and f == 0) else None))
                    if hh + AHEAD < 16 and n < 2: oload(hh + AHEAD, n)
                    n += 1
        st()
        for c in range(2):
            F = WF + 8 * c
            cvt8(k, F, ACC[c])
            for gp in range(2):
                k.I("v_permlane32_swap_b32 v%d, v%d" % (F + 4 * gp, F + 4 * gp + 2))
                k.I("v_permlane32_swap_b32 v%d, v%d" % (F + 4 * gp + 1, F + 4 * gp + 3))
                k.I("buffer_store_dwordx4 v[%d:%d], v%d, s[%d:%d], s%d offen offset:%d" % (F + 4 * gp, F + 4 * gp + 3, vST, S_OUT, S_OUT + 3, sRB, 64 * c + 32 * gp))
        st.dump(S_WS)
        k.I("s_endpgm")
        k.label("L_code_end")
    return k, dict(grid=256, block=512, lds=(LWO + 61440) if FUSE else LCNT + 64, vgpr=128, agpr=opt("k2agpr", 128), sgpr=102 if STAMP else 40)

def gen_k3():
    k = Kernel("oproj_kernel")
    S_WO, S_WS, S_OUT = 8, 12, 16
    sW, sBR, sRB, sCG, sTMP, sWO, sO, sM = 20, 21, 22, 23, 24, 25, 26, 27
    vL, vL16, vWD, vWR, vWR1, vST = 1, 2, 3, 4, 5, 6
    ACC = (16, 32)
    WF = 48
    T = 80
    NR = 480
    vm = VmQueue(k)
    k.I("""
    s_cmp_ge_u32 s2, 224
    s_cbranch_scc1 L3_end
    s_and_b32 s3, s2, 7
    s_lshr_b32 s{br}, s3, 2
    s_lshl_b32 s{tmp}, s{br}, 5
    s_add_u32 s{tmp}, s{tmp}, 16
    s_load_dwordx2 s[4:5], s[0:1], s{tmp}
    s_load_dwordx2 s[6:7], s[0:1], 72
    s_load_dwordx2 s[0:1], s[0:1], 56
    v_lshrrev_b32 v2, 6, v0
    v_and_b32 v{l}, 63, v0
    v_readfirstlane_b32 s{w}, v2
    v_lshlrev_b32 v{l16}, 4, v{l}
    v_lshrrev_b32 v{a}, 3, v{l}
    v_mul_u32_u24 v{a}, 896, v{a}
    v_and_b32 v{b}, 7, v{l}
    v_bfe_u32 v{c}, v{l}, 4, 1
    v_lshlrev_b32 v{c}, 2, v{c}
    v_xor_b32 v{b}, v{b}, v{c}
    v_lshl_add_u32 v{wd}, v{b}, 4, v{a}
    s_and_b32 s{rb}, s3, 3
    s_lshl_b32 s{rb}, s{rb}, 2
    s_bfe_u32 s{tmp}, s2, 0x20003
    s_add_u32 s{rb}, s{rb}, s{tmp}
    s_lshr_b32 s{cg}, s2, 5
    s_mul_i32 s{wo}, s{w}, {r8}
    s_lshl_b32 s{m}, s{w}, 10
    s_lshl_b32 s{tmp}, s{cg}, 7
    s_add_u32 s{wo}, s{wo}, s{tmp}
    s_lshl_b32 s{o}, s{br}, 6
    s_lshl_b32 s{rb}, s{rb}, 2
    s_add_u32 s{rb}, s{rb}, s{w}
    s_add_u32 s{o}, s{o}, s{rb}
    s_lshl_b32 s{o}, s{o}, 15
    s_add_u32 s{o}, s{o}, 0x{ooff:x}
    s_waitcnt lgkmcnt(0)
    """.format(br=sBR, tmp=sTMP, l=vL, w=sW, l16=vL16, a=T, b=T + 1, c=T + 2, wd=vWD, rb=sRB, cg=sCG, wo=sWO, m=sM, r8=8 * 896,
               o=sO, ooff=O_OFF))
    st = Stamper(k, 2, 4, 94); st.start()
    srd(k, S_WO, 4, 5, 448 * 896)
    srd(k, S_WS, 6, 7, WS_USED)
    def wdma(n):
        k.I("s_add_u32 m0, s%d, %d" % (sM, n * 4096))
        k.I("s_add_u32 s%d, s%d, %d" % (sTMP, sWO, n * 32 * 896))
        k.I("buffer_load_dwordx4 v%d, s[%d:%d], s%d offen lds" % (vWD, S_WO, S_WO + 3, sTMP))
        vm.add("w%d" % n)
    def oload(h, f):
        if h % 2 == 0 and f == 0:
            k.I("s_add_u32 s%d, s%d, %d" % (28, sO, h * 2048))
        k.I("buffer_load_dwordx4 a[%d:%d], v%d, s[%d:%d], s28 offen offset:%d" % (8 * h + 4 * f, 8 * h + 4 * f + 3, vL16, S_WS, S_WS + 3, (h % 2) * 2048 + 1024 * f))
        vm.add("o%d" % h)
    AHEAD = opt("ahead", 5)
    wneed = lambda h: (28 * h + 31) // 32
    nextw = 0
    def issue_head(h):
        nonlocal nextw
        L = []
        while nextw <= wneed(h):
            L.append(lambda n=nextw: wdma(n)); nextw += 1
        L.append(lambda: oload(h, 0)); L.append(lambda: oload(h, 1))
        return L
    for h in range(AHEAD):
        for f in issue_head(h): f()
    srd(k, S_OUT, 0, 1, 2048 * 1792)
    k.I("""
    v_lshrrev_b32 v{h}, 5, v{l}
    v_lshlrev_b32 v{wr}, 9, v{h}
    v_bfe_u32 v{c}, v{l}, 2, 2
    v_lshl_add_u32 v{wr}, v{c}, 7, v{wr}
    v_bfe_u32 v{c}, v{l}, 3, 1
    v_lshl_add_u32 v{wr}, v{c}, 6, v{wr}
    v_bfe_u32 v{c}, v{l}, 4, 1
    v_lshl_add_u32 v{wr}, v{c}, 5, v{wr}
    v_and_b32 v{c}, 3, v{l}
    v_lshl_add_u32 v{wr}, v{c}, 3, v{wr}
    v_xor_b32 v{wr1}, 64, v{wr}
    v_and_b32 v{c}, 31, v{l}
    v_mul_u32_u24 v{c}, 1792, v{c}
    v_lshl_add_u32 v{st}, v{h}, 4, v{c}
    s_mul_i32 s{rb}, s{rb}, {r32}
    s_mul_i32 s{tmp}, s{br}, 896
    s_add_u32 s{rb}, s{rb}, s{tmp}
    s_lshl_b32 s{tmp}, s{cg}, 7
    s_add_u32 s{rb}, s{rb}, s{tmp}
    """.format(h=T, c=T + 1, l=vL, wr=vWR, wr1=vWR1, st=vST, rb=sRB, r32=32 * 1792, tmp=sTMP, br=sBR, cg=sCG))
    def wread(h):
        b = WF + 16 * (h & 1)
        for f in range(2):
            for c in range(2):
                for jj in range(2):
                    r = b + 8 * c + 4 * f + 2 * jj
                    k.I("ds_read_b64_tr_b16 v[%d:%d], v%d offset:%d" % (r, r + 1, vWR1 if c else vWR, (28 * h + 16 * f + 8 * jj) * 128))
    SYNC = opt("sync", 2)
    def sync(h):
        vm.wait(["w%d" % wneed(min(h + SYNC - 1, 15))])
        k.I("s_barrier")
    st()
    sync(0); st(); wread(0)
    for h in range(16):
        nl = 0
        if h + 1 < 16:
            if (h + 1) % SYNC == 0:
                sync(h + 1)
                if (h + 1) % 4 == 0: st()
            wread(h + 1); nl = 8
        vm.wait(["o%d" % h])
        k.I("s_waitcnt lgkmcnt(%d)" % nl)
        pend = issue_head(h + AHEAD) if h + AHEAD < 16 else []
        b = WF + 16 * (h & 1)
        for f in range(2):
            for c in range(2):
                k.I(mfma(vr(ACC[c], 16), vr(b + 8 * c + 4 * f, 4), ar(8 * h + 4 * f, 4), 0 if (h == 0 and f == 0) else None))
                if pend: pend.pop(0)()
        assert not pend
    st()
    for c in range(2):
        F = WF + 8 * c
        cvt8(k, F, ACC[c])
        for gp in range(2):
            k.I("v_permlane32_swap_b32 v%d, v%d" % (F + 4 * gp, F + 4 * gp + 2))
            k.I("v_permlane32_swap_b32 v%d, v%d" % (F + 4 * gp + 1, F + 4 * gp + 3))
            k.I("buffer_store_dwordx4 v[%d:%d], v%d, s[%d:%d], s%d offen offset:%d" % (F + 4 * gp, F + 4 * gp + 3, vST, S_OUT, S_OUT + 3, sRB, 64 * c + 32 * gp) + ["", " sc1", " sc0 sc1", " nt", " sc1 nt"][opt("osc", 0)])
    st.dump(S_WS)
    k.label("L3_end")
    k.I("s_endpgm")
    k.label("L_code_end")
    return k, dict(grid=224, block=256, lds=NR * 128, vgpr=96, agpr=128, sgpr=102 if STAMP else 32)

HEADER = open("cdna_kernels/%s.s.ref" % NAME).read().split("; Override launch geometry")[0]

def build(kernels):
    out = [HEADER.rstrip("\n")]
    for k, cfg in kernels:
        out.append("; @launch kernel=%s grid=(%d,1,1) block=(%d,1,1) lds=%d" % (k.name, cfg["grid"], cfg["block"], cfg["lds"]))
    out.append('.amdgcn_target "amdgcn-amd-amdhsa--gfx950"')
    out.append(".text")
    for k, cfg in kernels:
        k.fix_hazards(verbose=("-v" in sys.argv))
        out += [".globl %s" % k.name, ".p2align %d" % opt("kalign", 12), ".type %s,@function" % k.name, "%s:" % k.name, k.text()]
    out.append('.section .rodata,"a"')
    for k, cfg in kernels:
        acc = (cfg["vgpr"] + 3) // 4 * 4
        out += [".p2align 6", ".amdhsa_kernel %s" % k.name,
                "  .amdhsa_next_free_vgpr %d" % (acc + cfg["agpr"] if cfg["agpr"] else cfg["vgpr"]),
                "  .amdhsa_next_free_sgpr %d" % cfg["sgpr"],
                "  .amdhsa_accum_offset %d" % acc,
                "  .amdhsa_group_segment_fixed_size 0",
                "  .amdhsa_kernarg_size 80",
                "  .amdhsa_user_sgpr_count 2",
                "  .amdhsa_user_sgpr_kernarg_segment_ptr 1",
                "  .amdhsa_system_sgpr_workgroup_id_x 1",
                ".end_amdhsa_kernel"]
    return "\n".join(out) + "\n"

if __name__ == "__main__":
    txt = build([gen_k1(), gen_k2()] + ([] if FUSE else [gen_k3()]))
    path = "cdna_kernels/%s.s" % NAME
    for a in sys.argv[1:]:
        if a.endswith(".s"): path = a
    open(path, "w").write(txt)
    print("wrote", path, len(txt), "bytes")
```

```python
import sys, struct
from asmlib import Kernel, vr, ar, sr

NAME = "concat_heads__mha_block__linear_kernel_hedgehog__prompt"
def f2u(x): return struct.unpack("<I", struct.pack("<f", x))[0]
def opt(name, default):
    for a in sys.argv[1:]:
        if a.startswith(name + "="): return int(a.split("=")[1])
    return default

KV_OFF   = 0
Q_OFF    = 4 << 20
QB_OFF   = 6 << 20
KVP_OFF  = 8 << 20
O_OFF    = 10 << 20
FLAG_OFF = 14 << 20
WS_USED  = 15 << 20

LOG2E = 1.4426950408889634
QSCALE = 28 ** -0.5 * LOG2E
MOFF = 40.0
ROUND_PQ = opt("round", 0)
ROT = opt("rot", 1)
FUSE = opt("fuse", 0)
LSC = ["", " sc1", " sc0 sc1"][opt("lsc", 0)]
SC = ["", " sc1", " sc0 sc1", " nt", " sc1 nt"][opt("sc", 1)]

STAMP = "-stamp" in sys.argv
STAMP_OFF = 16 << 20
class Stamper:
    def __init__(self, k, kidx, nwaves, va):
        self.k, self.kidx, self.n, self.nw, self.va = k, kidx, 0, nwaves, va
    def start(self):
        if not STAMP: return
        self.k.I("s_memrealtime s[96:97]")
        self.k.I("s_mov_b32 s98, s2")
        self.k.I("v_mov_b32 v%d, v0" % (self.va + 1))
        self()
    def __call__(self):
        if not STAMP: return
        self.k.I("s_memtime s[%d:%d]" % (64 + 2 * self.n, 65 + 2 * self.n)); self.n += 1
        assert self.n <= 15
    def dump(self, S_WS):
        if not STAMP: return
        k, a, b = self.k, self.va, self.va + 1
        sv = self.n
        self()
        k.I("s_waitcnt vmcnt(0)")
        self()
        k.I("s_memrealtime s[94:95]")
        k.I("s_waitcnt lgkmcnt(0)")
        k.I("s_sub_u32 s94, s94, s96")
        k.I("s_mov_b32 s%d, 0x2000000" % (S_WS + 2))
        k.I("v_lshrrev_b32 v%d, 6, v%d" % (b, b))
        k.I("s_mul_i32 s98, s98, %d" % self.nw)
        k.I("v_add_u32 v%d, s98, v%d" % (b, b))
        k.I("v_lshlrev_b32 v%d, 6, v%d" % (b, b))
        k.I("s_mov_b32 s98, 0x%x" % (STAMP_OFF + (self.kidx << 20)))
        k.I("s_mov_b64 exec, 1")
        for i in range(15):
            k.I(("s_sub_u32 s99, s%d, s64" % (64 + 2 * i) if i else "s_mov_b32 s99, s96") if i < self.n else "s_mov_b32 s99, 0")
            k.I("v_mov_b32 v%d, s99" % a)
            k.I("buffer_store_dword v%d, v%d, s[%d:%d], s98 offen offset:%d" % (a, b, S_WS, S_WS + 3, 4 * i))
        k.I("v_mov_b32 v%d, s94" % a)
        k.I("buffer_store_dword v%d, v%d, s[%d:%d], s98 offen offset:60" % (a, b, S_WS, S_WS + 3))
        self.n = sv

MF = "v_mfma_f32_32x32x16_bf16"
def mfma(d, a, b, c=None):
    return "%s %s, %s, %s, %s" % (MF, d, a, b, d if c is None else "0")

EXEC_ALL = "s_mov_b64 exec, -1"
EXEC_LO = "s_mov_b64 exec, 0xffffffff"
def exec_hi(k): k.I("s_mov_b32 exec_lo, 0\ns_mov_b32 exec_hi, -1")
def exec_both(k, m): k.I("s_mov_b32 exec_lo, 0x%x\ns_mov_b32 exec_hi, 0x%x" % (m, m))

def srd(k, s, lo, hi, nbytes):
    k.I("s_mov_b32 s%d, s%d" % (s, lo))
    k.I("s_mov_b32 s%d, s%d" % (s + 1, hi))
    k.I("s_mov_b32 s%d, 0x%x" % (s + 2, nbytes))
    k.I("s_mov_b32 s%d, 0x00020000" % (s + 3))

def cvt8(k, dst, src):
    for i in range(8):
        k.I("v_cvt_pk_bf16_f32 v%d, v%d, v%d" % (dst + i, src + 2 * i, src + 2 * i + 1))
def pk(op, d, a, b, mods=""):
    return "%s v[%d:%d], v[%d:%d], v[%d:%d]%s" % (op, d, d + 1, a, a + 1, b, b + 1, mods)

def xhalf(k, op, x, t):
    k.I("v_mov_b32 v%d, v%d" % (t, x))
    k.I("v_permlane32_swap_b32 v%d, v%d" % (x, t))
    k.I("%s v%d, v%d, v%d" % (op, x, x, t))

def neg_max_pieces(k, m, t0, t1, d6, d7, s_mask):
    k.I("v_and_b32 v%d, s%d, v%d" % (t0, s_mask, m))
    k.I("v_sub_f32 v%d, v%d, v%d" % (m, m, t0))
    k.I("v_and_b32 v%d, s%d, v%d" % (t1, s_mask, m))
    k.I("v_sub_f32 v%d, v%d, v%d" % (m, m, t1))
    exec_hi(k)
    k.I("v_cvt_pk_bf16_f32 v%d, -v%d, -v%d" % (d6, t0, t1))
    k.I("v_cvt_pk_bf16_f32 v%d, -v%d, 0" % (d7, m))
    k.I(EXEC_ALL)

_cp = [0]
def code_prefetch(k, s0, vt, vlane, swave, start, end, nwaves):
    _cp[0] += 1
    lab = "Lcp%d" % _cp[0]
    if start is None: start = lab
    k.I("s_getpc_b64 s[%d:%d]" % (s0, s0 + 1))
    k.label(lab)
    k.I("s_add_u32 s%d, s%d, %s-%s" % (s0, s0, start, lab))
    k.I("s_addc_u32 s%d, s%d, %s" % (s0 + 1, s0 + 1, "0"))
    k.I("s_mov_b32 s%d, %s-%s" % (s0 + 2, end, start))
    k.I("s_mov_b32 s%d, 0x00020000" % (s0 + 3))
    k.I("v_mul_u32_u24 v%d, %d, v%d" % (vt, 128 * nwaves, vlane))
    k.I("s_lshl_b32 s%d, s%d, 7" % (s0 + 4, swave))
    k.I("buffer_load_dword v%d, v%d, s[%d:%d], s%d offen" % (vt, vt, s0, s0 + 3, s0 + 4))

class VmQueue:
    def __init__(self, k): self.k, self.q = k, []
    def add(self, tag): self.q.append(tag)
    def count_for(self, tags):
        idx = max(i for i, t in enumerate(self.q) if t in tags)
        return len(self.q) - 1 - idx
    def wait(self, tags):
        n = self.count_for(tags)
        assert n <= 63
        self.k.I("s_waitcnt vmcnt(%d)" % n)

def feature_map(k, D, FP, FM, EP, EM, T, sL, norm):
    MX, MN, TT = T, T + 2, T + 4
    for (op3, op2, r) in (("v_max3_f32", "v_max_f32", MX), ("v_min3_f32", "v_min_f32", MN)):
        k.I("%s v%d, v%d, v%d, v%d" % (op3, r, D, D + 1, D + 2))
        for i in range(3, 11, 2):
            k.I("%s v%d, v%d, v%d, v%d" % (op3, r, r, D + i, D + i + 1))
        k.I("%s v%d, v%d, v%d" % (op2, r, r, D + 11))
    k.I(EXEC_LO)
    for (op3, r) in (("v_max3_f32", MX), ("v_min3_f32", MN)):
        k.I("%s v%d, v%d, v%d, v%d" % (op3, r, r, D + 12, D + 13))
        k.I("%s v%d, v%d, v%d, v%d" % (op3, r, r, D + 14, D + 15))
    k.I(EXEC_ALL)
    k.I("v_mov_b32 v%d, v%d" % (TT, MX))
    k.I("v_mov_b32 v%d, v%d" % (TT + 1, MN))
    k.I("v_permlane32_swap_b32 v%d, v%d" % (MX, TT))
    k.I("v_permlane32_swap_b32 v%d, v%d" % (MN, TT + 1))
    k.I("v_max_f32 v%d, v%d, v%d" % (MX, MX, TT))
    k.I("v_min_f32 v%d, v%d, v%d" % (MN, MN, TT + 1))
    k.I("v_mul_f32 v%d, s%d, v%d" % (MX, sL, MX))
    k.I("v_mul_f32 v%d, s%d, v%d" % (MN, sL, MN))
    def args(i):
        k.I("v_pk_fma_f32 v[%d:%d], v[%d:%d], s[%d:%d], v[%d:%d] op_sel_hi:[1,1,0] neg_lo:[0,0,1] neg_hi:[0,0,1]" %
            (EP + 2 * i, EP + 2 * i + 1, D + 2 * i, D + 2 * i + 1, sL, sL + 1, MX, MX + 1))
        k.I("v_pk_fma_f32 v[%d:%d], v[%d:%d], s[%d:%d], v[%d:%d] op_sel_hi:[1,1,0] neg_lo:[1,0,0] neg_hi:[1,0,0]" %
            (EM + 2 * i, EM + 2 * i + 1, D + 2 * i, D + 2 * i + 1, sL, sL + 1, MN, MN + 1))
    def exps(lo, hi):
        for i in range(lo, hi):
            k.I("v_exp_f32 v%d, v%d" % (EP + i, EP + i))
            k.I("v_exp_f32 v%d, v%d" % (EM + i, EM + i))
    for i in range(6): args(i)
    k.I(EXEC_LO)
    args(6); args(7); exps(12, 16)
    k.I(EXEC_ALL)
    exps(0, 12)
    if norm:
        for (E, r) in ((EP, MX), (EM, MN)):
            k.I(pk("v_pk_add_f32", r, E + 12, E + 14))
            for i in range(6):
                k.I(pk("v_pk_add_f32", r, r, E + 2 * i))
            k.I("v_add_f32 v%d, v%d, v%d" % (r, r, r + 1))
        k.I("v_mov_b32 v%d, v%d" % (TT, MX))
        k.I("v_mov_b32 v%d, v%d" % (TT + 1, MN))
        k.I("v_permlane32_swap_b32 v%d, v%d" % (MX, TT))
        k.I("v_permlane32_swap_b32 v%d, v%d" % (MN, TT + 1))
        k.I("v_add_f32 v%d, v%d, v%d" % (MX, MX, TT))
        k.I("v_add_f32 v%d, v%d, v%d" % (MN, MN, TT + 1))
        k.I("v_rcp_f32 v%d, v%d" % (MX, MX))
        k.I("v_rcp_f32 v%d, v%d" % (MN, MN))
        for (E, r, F) in ((EP, MX, FP), (EM, MN, FM)):
            for i in range(8):
                k.I(pk("v_pk_mul_f32", E + 2 * i, E + 2 * i, r, " op_sel_hi:[1,0]"))
            cvt8(k, F, E)
    else:
        cvt8(k, FP, EP); cvt8(k, FM, EM)

def gen_k1():
    k = Kernel("qkv_kernel")
    secs = {"entry": k.items}
    def sec(name): k.items = secs.setdefault(name, [])
    OOB = 0x40000000
    PSLOT, PX, PSCR = 48128, 28672, 45056
    KSLOT, KX, KPHI = 32768, 16384, 131072
    LDS = 135168
    S_SRC, S_WS, S_PHI = 12, 16, 20
    sW, sIDX, sG, sRB, sTMP, sM, sROT, sKB = 24, 25, 26, 27, 28, 29, 30, 31
    sSOF, sSTEP, sB1, sB2, sCUR, sL, sHEAD, sDST = 32, 33, 34, 35, 36, 54, 40, 41
    sC, sP6, sP7, sDSH = 42, 44, 45, 46
    vL, vL16, vD = 1, 2, 3
    vXR, vWR = 10, 22
    vPADV, vPH = 25, 26
    T = 28
    ACC = 36
    XF, WF = 100, 116
    k.I("""
    s_cmp_ge_u32 s2, 256
    s_cbranch_scc1 L1_end
    s_bfe_u32 s3, s2, 0x20003
    s_lshr_b32 s{tmp}, s2, 5
    s_and_b32 s{tmp}, s{tmp}, 4
    s_or_b32 s3, s3, s{tmp}
    s_cmp_ge_u32 s3, 3
    s_cselect_b32 s{tmp}, 24, 0
    s_load_dwordx4 s[4:7], s[0:1], s{tmp}
    s_load_dwordx2 s[8:9], s[0:1], 72
    s_load_dwordx2 s[10:11], s[0:1], 40
    v_lshrrev_b32 v2, 6, v0
    v_and_b32 v{l}, 63, v0
    v_readfirstlane_b32 s{w}, v2
    s_bfe_u32 s{rb}, s2, 0x20001
    s_lshl_b32 s{rb}, s{rb}, 2
    s_bfe_u32 s{idx}, s2, 0x20005
    s_add_u32 s{rb}, s{rb}, s{idx}
    s_and_b32 s{idx}, s2, 1
    """.format(tmp=sTMP, l=vL, w=sW, idx=sIDX, rb=sRB))
    st = Stamper(k, 0, 8, 214); st.start()
    k.I("v_lshlrev_b32 v%d, 4, v%d" % (vL16, vL))
    TOUCH = opt("touch", 0)
    if TOUCH:
        k.I("s_cmp_eq_u32 s%d, 8" % sW)
        k.I("s_cbranch_scc1 L1_touch")
    k.I("s_cmp_ge_u32 s3, 4")
    k.I("s_cbranch_scc1 L1_kv")

    def x_voffsets():
        k.I("""
        v_lshrrev_b32 v{a}, 3, v{l}
        v_mul_u32_u24 v{a}, 896, v{a}
        v_and_b32 v{b}, 7, v{l}
        v_lshrrev_b32 v{c}, 4, v{l}
        v_xor_b32 v{b}, v{b}, v{c}
        v_lshl_add_u32 v{x0}, v{b}, 4, v{a}
        v_xor_b32 v{b}, 4, v{b}
        v_lshl_add_u32 v{x1}, v{b}, 4, v{a}
        v_add_u32 v{x1}, 7168, v{x1}
        v_add_u32 v{x2}, 14336, v{x0}
        v_add_u32 v{x3}, 14336, v{x1}
        """.format(a=T, b=T + 1, c=T + 2, l=vL, x0=vD, x1=vD + 1, x2=vD + 2, x3=vD + 3))
    GROUPS = [int(c) for c in str(opt("groups", 43))]
    assert sum(GROUPS) == 7
    sROTS = [sROT, 47, 37, 39]
    ginfo = []
    base = 0
    for gi, n in enumerate(GROUPS):
        for j in range(n): ginfo.append((gi, base, n, j))
        base += n
    def rot_from(expr_regs):
        a, b = expr_regs
        k.I("s_add_u32 s%d, s3, s%d" % (sKB, b))
        for gi, n in enumerate(GROUPS):
            if n == 1 or not ROT:
                k.I("s_mov_b32 s%d, 0" % sROTS[gi]); continue
            mg = -(-256 // n)
            assert all((x * mg) >> 8 == x // n for x in range(40))
            k.I("s_mul_i32 s%d, s%d, %d" % (sTMP, sKB, mg))
            k.I("s_lshr_b32 s%d, s%d, 8" % (sTMP, sTMP))
            k.I("s_mul_i32 s%d, s%d, %d" % (sTMP, sTMP, n))
            k.I("s_sub_u32 s%d, s%d, s%d" % (sROTS[gi], sKB, sTMP))
    def src_srd(is_x_label):
        pass
    def read_addrs(nslot, slot, xoff, wstride, wextra_sgpr, nbase):
        k.I("""
        v_and_b32 v{s}, 31, v{l}
        v_lshrrev_b32 v{h}, 5, v{l}
        v_bfe_u32 v{c}, v{l}, 1, 3
        v_xor_b32 v{c}, v{c}, v{h}
        v_lshlrev_b32 v{d}, 7, v{s}
        v_add_u32 v{d}, s{m}, v{d}
        v_lshl_add_u32 v{r0}, v{c}, 4, v{d}
        v_xor_b32 v{e}, 2, v{c}
        v_lshl_add_u32 v{r1}, v{e}, 4, v{d}
        v_xor_b32 v{e}, 4, v{c}
        v_lshl_add_u32 v{r2}, v{e}, 4, v{d}
        v_xor_b32 v{e}, 6, v{c}
        v_lshl_add_u32 v{r3}, v{e}, 4, v{d}
        v_bfe_u32 v{c}, v{l}, 4, 1
        v_lshlrev_b32 v{d}, 5, v{c}
        v_and_b32 v{c}, 3, v{l}
        v_lshl_add_u32 v{d}, v{c}, 3, v{d}
        v_bfe_u32 v{c}, v{l}, 2, 2
        v_lshl_add_u32 v{e}, v{h}, 3, v{c}
        v_mul_u32_u24 v{e}, {ws}, v{e}
        v_add3_u32 v{wr}, v{e}, v{d}, s{wx}
        v_mov_b32 v{f}, 0x3f803f80
        v_cmp_eq_u32 vcc, 28, v{s}
        """.format(s=T, h=T + 1, c=T + 2, d=T + 3, e=T + 4, f=T + 5, l=vL, m=sM, r0=vXR, r1=vXR + 1, r2=vXR + 2, r3=vXR + 3,
                   ws=wstride, wr=vWR, wx=wextra_sgpr))
        for b in range(1, nbase):
            for kk in range(4): k.I("v_add_u32 v%d, %d, v%d" % (vXR + 4 * b + kk, b * slot, vXR + kk))
            k.I("v_add_u32 v%d, %d, v%d" % (vWR + b, b * slot, vWR))
        k.I("v_cndmask_b32 v%d, 0, v%d, vcc" % (vPADV, T + 5))

    def gemm(NS, SLOT, NDMA, reads, mfmas, setup):
        vm = VmQueue(k)
        def dma(o):
            def one(i):
                def f():
                    if i == 0:
                        gi, gb, gn, gj = ginfo[o]
                        k.I("s_add_u32 s%d, s%d, %d" % (sKB, sROTS[gi], gb + gj))
                        k.I("s_sub_u32 s%d, s%d, %d" % (sTMP, sKB, gn))
                        k.I("s_cmp_ge_u32 s%d, %d" % (sKB, gb + gn))
                        k.I("s_cselect_b32 s%d, s%d, s%d" % (sKB, sTMP, sKB))
                        k.I("s_mul_i32 s%d, s%d, s%d" % (sCUR, sKB, sSTEP))
                        k.I("s_add_u32 s%d, s%d, s%d" % (sCUR, sCUR, sSOF))
                    k.I("s_add_u32 m0, s%d, %d" % (sB1 if i < 4 else sB2, (o % NS) * SLOT + 1024 * (i % 4)))
                    k.I("s_nop 0")
                    k.I("buffer_load_dwordx4 v%d, s[%d:%d], s%d offen lds" % (vD + i, S_SRC, S_SRC + 3, sCUR)); vm.add(o)
                return f
            return [one(i) for i in range(NDMA)]
        for f in dma(0): f()
        PRE1 = opt("pre1", 1)
        if PRE1:
            k.I("s_barrier")
            for f in dma(1): f()
        k.I("s_branch L1_kset")
        sec("pv")
        k.label("L1_kset")
        if opt("cpf", 2) == 1:
            code_prefetch(k, 48, 27, vL, sW, "attn_kernel", "L3_end", 8); vm.add("code")
        setup()
        k.I("s_branch L1_kmain")
        sec("kmain")
        k.label("L1_kmain")
        st()
        vm.wait([0])
        k.I("s_barrier")
        st()
        reads(0, 0)
        pend = []
        if not PRE1:
            for f in dma(1): f()
        for o in range(2, NS): pend += dma(o)
        for ks in range(28):
            o, kk = ks >> 2, ks & 3
            if kk == 3 and o < 6:
                assert vm.q.count(o + 1) == NDMA
                k.I("s_waitcnt lgkmcnt(0)")
                vm.wait([o + 1])
                k.I("s_barrier")
                st()
                reads(o + 1, 0)
                if o + NS <= 6: pend += dma(o + NS)
            elif ks < 27:
                n = reads(o, kk + 1)
                k.I("s_waitcnt lgkmcnt(%d)" % n)
            else:
                k.I("s_waitcnt lgkmcnt(0)")
            for m in mfmas(ks):
                k.I(m)
                if pend: pend.pop(0)()
        st()
    def store4(reg, soff, off, fl=SC):
        k.I("buffer_store_dwordx4 v[%d:%d], v%d, s[%d:%d], s%d offen offset:%d%s" % (reg, reg + 3, vL16, S_WS, S_WS + 3, soff, off, fl))
    PSC = opt("psc", 8)
    pfl = lambda tl: SC if tl < PSC else ""

    PS = 45056
    S_X2 = 56
    k.I("""
    s_lshl_b32 s{g}, s3, 1
    s_cmp_eq_u32 s3, 3
    s_cselect_b32 s{g}, 0, s{g}
    s_add_u32 s{g}, s{g}, s{idx}
    s_cmp_lt_u32 s{w}, 4
    s_cbranch_scc1 L1_pc
    s_sub_u32 s{w}, s{w}, 4
    s_mul_i32 s{sof}, s{w}, {r16}
    s_mul_i32 s{tmp}, s{g}, 448
    s_add_u32 s{sof}, s{sof}, s{tmp}
    s_lshl_b32 s{step}, s{rb}, 2
    s_add_u32 s{step}, s{step}, s{w}
    s_mul_i32 s{step}, s{step}, {r32}
    s_mul_i32 s{b1}, s{w}, 7168
    s_lshl_b32 s{b2}, s{w}, 12
    s_add_u32 s{b2}, s{b2}, {px}
    """.format(g=sG, idx=sIDX, rb=sRB, tmp=sTMP, w=sW, sof=sSOF, r16=16 * 2688, step=sSTEP, r32=32 * 896, b1=sB1, b2=sB2, px=PX))
    rot_from((sG, sRB))
    x_voffsets()
    vDW = 8
    for i in range(7):
        k.I("""
        v_add_u32 v{c}, {c0}, v{l}
        v_mul_u32_u24 v{r}, 2341, v{c}
        v_lshrrev_b32 v{r}, 16, v{r}
        v_mul_u32_u24 v{r}, {dl}, v{r}
        v_lshl_add_u32 v{d}, v{c}, 4, v{r}
        """.format(c=T, r=T + 1, c0=64 * i, l=vL, dl=2688 - 448, d=vDW + i))
    k.I("s_waitcnt lgkmcnt(0)")
    srd(k, S_SRC, 6, 7, 448 * 2688)
    srd(k, S_X2, 4, 5, 2048 * 896)
    vm = VmQueue(k)
    def pload(o):
        gi, gb, gn, gj = ginfo[o]
        k.I("s_add_u32 s%d, s%d, %d" % (sKB, sROTS[gi], gb + gj))
        k.I("s_sub_u32 s%d, s%d, %d" % (sTMP, sKB, gn))
        k.I("s_cmp_ge_u32 s%d, %d" % (sKB, gb + gn))
        k.I("s_cselect_b32 s%d, s%d, s%d" % (sKB, sTMP, sKB))
        k.I("s_lshl_b32 s%d, s%d, 7" % (sM, sKB))
        k.I("s_add_u32 s%d, s%d, s%d" % (sM, sM, sSTEP))
        k.I("s_mul_i32 s%d, s%d, %d" % (sCUR, sKB, 64 * 2688))
        k.I("s_add_u32 s%d, s%d, s%d" % (sCUR, sCUR, sSOF))
        for i in range(11):
            if i < 4:
                k.I("s_add_u32 m0, s%d, %d" % (sB2, (o % 3) * PS + 1024 * i))
                k.I("s_nop 0")
                k.I("buffer_load_dwordx4 v%d, s[%d:%d], s%d offen lds" % (vD + i, S_X2, S_X2 + 3, sM))
            else:
                k.I("s_add_u32 m0, s%d, %d" % (sB1, (o % 3) * PS + 1024 * (i - 4)))
                k.I("s_nop 0")
                k.I("buffer_load_dwordx4 v%d, s[%d:%d], s%d offen lds" % (vDW + i - 4, S_SRC, S_SRC + 3, sCUR))
            vm.add(o)
    pload(0); pload(1)
    if opt("pl2", 0): pload(2)
    for o in range(7):
        vm.wait([o])
        k.I("s_barrier")
        if o == 0 and not opt("pl2", 0): pload(2)
        if o >= 1 and o + 2 <= 6: pload(o + 2)
    if FUSE:
        k.I("""
        s_load_dwordx2 s[48:49], s[0:1], 16
        s_load_dwordx2 s[52:53], s[0:1], 48
        s_lshr_b32 s{tmp}, s2, 3
        s_lshl_b32 s{tmp}, s{tmp}, 2
        s_add_u32 s{tmp}, s{tmp}, s{w}
        s_mul_i32 s{tmp}, s{tmp}, 6272
        v_lshlrev_b32 v{a}, 7, v{l}
        s_mov_b32 s50, {nb}
        s_mov_b32 s51, 0x00020000
        s_mov_b32 s54, {nb}
        s_mov_b32 s55, 0x00020000
        s_mov_b32 exec_hi, 0x1ffff
        s_waitcnt lgkmcnt(0)
        buffer_load_dword v32, v{a}, s[48:51], s{tmp} offen
        buffer_load_dword v33, v{a}, s[52:55], s{tmp} offen
        s_mov_b64 exec, -1
        s_cmp_ge_u32 s2, 2
        s_cbranch_scc1 L1_end
        v_mov_b32 v36, 0
        v_mov_b32 v37, 0
        v_mov_b32 v38, 0
        v_mov_b32 v39, 0
        s_lshl_b32 s{tmp}, s2, 2
        s_add_u32 s{tmp}, s{tmp}, s{w}
        s_lshl_b32 s{tmp}, s{tmp}, 10
        s_add_u32 s{tmp}, s{tmp}, 0x{fo:x}
        """.format(tmp=sTMP, w=sW, a=T, l=vL, nb=448 * 896, fo=FLAG_OFF))
        srd(k, S_WS, 8, 9, WS_USED)
        store4(36, sTMP, 0)
    k.I("s_endpgm")

    sec("pqk")
    k.label("L1_pc")
    PA, PF = 36, 164
    if opt("cpf", 2) == 2: code_prefetch(k, 48, 27, vL, sW, None, "L_code_end", 4)
    srd_done = False
    k.I("""
    s_and_b32 s{m}, s{w}, 1
    s_lshl_b32 s{m}, s{m}, 13
    s_add_u32 s{m}, s{m}, {px}
    s_lshr_b32 s{tmp}, s{w}, 1
    s_mul_i32 s{tmp}, s{tmp}, 224
    """.format(m=sM, w=sW, px=PX, tmp=sTMP))
    read_addrs(3, PS, PX, 448, sTMP, 1)
    for i in range(4): k.I("v_mov_b32 v%d, 0" % (PF + i))
    k.I("""
    s_and_b32 s{head}, s{g}, 1
    s_lshl_b32 s{head}, s{head}, 3
    s_and_b32 s{tmp}, s{w}, 2
    s_lshl_b32 s{tmp}, s{tmp}, 1
    s_add_u32 s{head}, s{head}, s{tmp}
    s_lshl_b32 s{dst}, s{head}, 6
    s_lshl_b32 s{tmp}, s{rb}, 2
    s_add_u32 s{dst}, s{dst}, s{tmp}
    s_and_b32 s{tmp}, s{w}, 1
    s_lshl_b32 s{tmp}, s{tmp}, 1
    s_add_u32 s{dst}, s{dst}, s{tmp}
    s_mov_b32 s{c0}, 0x{qs:x}
    s_mov_b32 s{c1}, 0x{qs:x}
    s_mov_b32 s{kb}, 7
    s_mov_b32 s{cur}, 0
    s_lshr_b32 s{tmp}, s{g}, 1
    s_cmp_eq_u32 s{tmp}, 1
    s_cselect_b32 s{p6}, 0x3f803f80, 0
    s_cselect_b32 s{p7}, 0x3f80, 0
    s_cselect_b32 s{dsh}, 12, 11
    s_cselect_b32 s{m}, {kvo}, {qo}
    s_cmp_eq_u32 s3, 3
    s_cselect_b32 s{m}, {qbo}, s{m}
    s_waitcnt lgkmcnt(0)
    """.format(head=sHEAD, g=sG, tmp=sTMP, w=sW, dst=sDST, rb=sRB, c0=sC, c1=sC + 1, qs=f2u(QSCALE), kb=sKB, cur=sCUR,
               p6=sP6, p7=sP7, dsh=sDSH, m=sM, kvo=KV_OFF, qo=Q_OFF, qbo=QB_OFF))
    for tl in range(8): k.I(mfma(vr(PA + 16 * tl, 16), vr(PF, 4), vr(PF, 4), 0))
    srd(k, S_WS, 8, 9, WS_USED)
    def p_reads(kk):
        b = PF + 24 * (kk & 1)
        L = []
        for r in range(2):
            L.append("ds_read_b128 v[%d:%d], v%d offset:%d" % (b + 4 * r, b + 4 * r + 3, vXR + kk, 4096 * r))
        for e in range(4):
            for jj in range(2):
                x = b + 8 + 4 * e + 2 * jj
                L.append("ds_read_b64_tr_b16 v[%d:%d], v%d offset:%d" % (x, x + 1, vWR, (16 * kk + 4 * jj) * 448 + 56 * e))
        return L
    def p_loop(swap, lab):
        k.label(lab)
        for kk in range(4):
            k.I("s_waitcnt lgkmcnt(0)")
            if kk == 3:
                k.I("s_barrier")
                for r in [vXR + i for i in range(4)] + [vWR]: k.I("v_add_u32 v%d, s%d, v%d" % (r, sSTEP, r))
            R = p_reads((kk + 1) & 3)
            b = PF + 24 * (kk & 1)
            n = 0
            for e in range(4):
                for r in range(2):
                    xf, wf = vr(b + 4 * r, 4), vr(b + 8 + 4 * e, 4)
                    k.I(mfma(vr(PA + 16 * (2 * e + r), 16), xf if swap else wf, wf if swap else xf))
                    for _ in range(2):
                        if R: k.I(R.pop(0))
                    n += 1
                    if kk == 0 and n == 6:
                        k.I("s_add_u32 s%d, s%d, 1" % (sCUR, sCUR))
                        k.I("s_cmp_eq_u32 s%d, 3" % sCUR)
                    if kk == 0 and n == 7:
                        k.I("s_cselect_b32 s%d, 0, s%d" % (sCUR, sCUR))
                        k.I("s_cselect_b32 s%d, %d, %d" % (sSTEP, (-2 * PS) & 0xffffffff, 0))
                    if kk == 0 and n == 8:
                        k.I("s_cselect_b32 s%d, s%d, %d" % (sSTEP, sSTEP, PS))
                    if kk == 3 and n == 7:
                        k.I("s_sub_u32 s%d, s%d, 1" % (sKB, sKB))
                        k.I("s_cmp_lg_u32 s%d, 0" % sKB)
        k.I("s_cbranch_scc1 %s" % lab)
    n0 = st.n
    def p_start():
        st()
        k.I("s_barrier")
        st()
        for t in p_reads(0): k.I(t)
    k.I("s_cmp_eq_u32 s3, 2")
    k.I("s_cbranch_scc1 L1_pv")
    p_start()
    p_loop(False, "L1_ploop")
    st()
    k.I("s_cmp_lg_u32 s3, 0")
    k.I("s_cbranch_scc1 L1_pnoscale")
    for i in range(64):
        k.I("v_pk_mul_f32 v[%d:%d], v[%d:%d], s[%d:%d]" % (PA + 2 * i, PA + 2 * i + 1, PA + 2 * i, PA + 2 * i + 1, sC, sC + 1))
    k.label("L1_pnoscale")
    k.I("s_waitcnt lgkmcnt(0)")
    for tl in range(8):
        e, r = tl >> 1, tl & 1
        F = PF + 8 * (tl % 6)
        cvt8(k, F, PA + 16 * tl)
        exec_hi(k)
        k.I("v_mov_b32 v%d, s%d" % (F + 6, sP6))
        k.I("v_mov_b32 v%d, s%d" % (F + 7, sP7))
        k.I(EXEC_ALL)
        k.I("s_add_u32 s%d, s%d, %d" % (sTMP, sDST, 64 * e + r))
        k.I("s_lshl_b32 s%d, s%d, s%d" % (sTMP, sTMP, sDSH))
        k.I("s_add_u32 s%d, s%d, s%d" % (sTMP, sTMP, sM))
        store4(F, sTMP, 0, pfl(tl)); store4(F + 4, sTMP, 1024, pfl(tl))
    st.dump(S_WS)
    k.I("s_endpgm")
    st.n = n0
    sec("pv")
    k.label("L1_pv")
    p_start()
    p_loop(True, "L1_pvloop")
    st()
    k.I("s_waitcnt lgkmcnt(0)")
    for tl in range(8):
        e, r = tl >> 1, tl & 1
        F = PF + 8 * (tl % 6)
        cvt8(k, F, PA + 16 * tl)
        exec_both(k, 0xf0000000)
        for i in range(8): k.I("v_mov_b32 v%d, v%d" % (F + i, vPADV))
        k.I(EXEC_ALL)
        k.I("s_add_u32 s%d, s%d, %d" % (sTMP, sDST, 64 * e + r))
        k.I("s_lshl_b32 s%d, s%d, 12" % (sTMP, sTMP))
        store4(F, sTMP, 2048, pfl(tl)); store4(F + 4, sTMP, 3072, pfl(tl))
    st.dump(S_WS)
    k.I("s_endpgm")

    sec("entry")
    k.label("L1_kv")
    st.n = n0
    AK, AV = ACC, ACC + 16
    IDN, PHI = ACC + 32, ACC + 40
    EP, EM = 132, 148
    k.I("""
    s_lshl_b32 s{g}, s{idx}, 2
    s_and_b32 s{tmp}, s3, 3
    s_add_u32 s{g}, s{g}, s{tmp}
    s_cmp_lt_u32 s{w}, 4
    s_cbranch_scc1 L1_kx
    s_lshl_b32 s{tmp}, s{w}, 8
    s_sub_u32 s{tmp}, s{tmp}, 1024
    v_add_u32 v{c0}, s{tmp}, v{l}
    v_mov_b32 v{oob}, 0x{oobv:x}
    """.format(g=sG, tmp=sTMP, idx=sIDX, rb=sRB, w=sW, c0=T + 4, l=vL, oob=T + 5, oobv=OOB))
    for i in range(4):
        k.I("""
        v_add_u32 v{c}, {c0}, v{cb}
        v_mul_u32_u24 v{r}, 9363, v{c}
        v_lshrrev_b32 v{r}, 16, v{r}
        v_lshlrev_b32 v{d}, 4, v{c}
        v_mul_u32_u24 v{q}, {d7}, v{r}
        v_add_u32 v{d}, v{d}, v{q}
        v_lshrrev_b32 v{r}, 1, v{r}
        v_mul_u32_u24 v{r}, 896, v{r}
        v_add_u32 v{d}, v{d}, v{r}
        v_cmp_gt_u32 vcc, 896, v{c}
        s_nop 1
        v_cndmask_b32 v{d}, v{oob}, v{d}, vcc
        """.format(c=T, r=T + 1, q=T + 2, c0=64 * i, cb=T + 4, d=vD + i, d7=896 - 112, oob=T + 5))
    k.I("""
    s_mul_i32 s{sof}, s{g}, 112
    s_add_u32 s{sof}, s{sof}, 896
    s_mov_b32 s{step}, {r64}
    s_lshl_b32 s{b1}, s{w}, 12
    s_sub_u32 s{b1}, s{b1}, 16384
    s_waitcnt lgkmcnt(0)
    """.format(sof=sSOF, g=sG, step=sSTEP, r64=64 * 2688, b1=sB1, w=sW))
    srd(k, S_SRC, 6, 7, 448 * 2688)
    k.I("s_branch L1_kgo")
    k.label("L1_kx")
    x_voffsets()
    k.I("""
    s_lshl_b32 s{sof}, s{rb}, 2
    s_add_u32 s{sof}, s{sof}, s{w}
    s_mul_i32 s{sof}, s{sof}, {r32}
    s_mov_b32 s{step}, 128
    s_lshl_b32 s{b1}, s{w}, 12
    s_add_u32 m0, s{b1}, 0
    s_add_u32 s{b1}, s{b1}, {kx}
    s_lshl_b32 s{m}, s{w}, 10
    s_mul_i32 s{tmp}, s{g}, 3136
    s_add_u32 s{tmp}, s{tmp}, s{m}
    s_add_u32 m0, s{m}, {kphi}
    s_waitcnt lgkmcnt(0)
    """.format(sof=sSOF, rb=sRB, w=sW, r32=32 * 896, step=sSTEP, b1=sB1, kx=KX, m=sM, tmp=sTMP, g=sG, kphi=KPHI))
    srd(k, S_PHI, 10, 11, 16 * 1568)
    srd(k, S_SRC, 4, 5, 2048 * 896)
    k.I("buffer_load_dwordx4 v%d, s[%d:%d], s%d offen lds" % (vL16, S_PHI, S_PHI + 3, sTMP))
    k.label("L1_kgo")
    rot_from((sG, sRB))
    def k_setup():
        srd(k, S_WS, 8, 9, WS_USED)
        k.I("""
        s_and_b32 s{m}, s{w}, 3
        s_lshl_b32 s{m}, s{m}, 12
        s_add_u32 s{m}, s{m}, {kx}
        s_lshr_b32 s{tmp}, s{w}, 2
        s_lshl_b32 s{head}, s{g}, 1
        s_add_u32 s{head}, s{head}, s{tmp}
        s_mul_i32 s{dst}, s{tmp}, 1568
        s_add_u32 s{dst}, s{dst}, {kphi}
        s_mul_i32 s{tmp}, s{tmp}, 56
        s_mov_b32 s{l0}, 0x{lg:x}
        s_mov_b32 s{l1}, 0x{lg:x}
        """.format(m=sM, w=sW, kx=KX, tmp=sTMP, head=sHEAD, g=sG, dst=sDST, kphi=KPHI, l0=sL, l1=sL + 1, lg=f2u(LOG2E)))
        read_addrs(4, 2 * KSLOT, KX, 224, sTMP, 2)
        k.I("v_lshl_add_u32 v%d, v%d, 2, v%d" % (T + 4, T + 1, T + 2))
        k.I("v_mul_u32_u24 v%d, 56, v%d" % (T + 4, T + 4))
        k.I("v_add3_u32 v%d, v%d, v%d, s%d" % (vPH, T + 4, T + 3, sDST))
        k.I("v_lshlrev_b32 v%d, 2, v%d" % (T + 2, T + 1))
        k.I("v_sub_u32 v%d, v%d, v%d" % (T + 2, T, T + 2))
        k.I("v_mov_b32 v%d, 0x3f80" % (T + 3))
        k.I("v_mov_b32 v%d, 0x3f800000" % (T + 4))
        for p in range(8):
            base = 8 * (p >> 1) + 2 * (p & 1)
            k.I("v_cmp_eq_u32 vcc, %d, v%d" % (base, T + 2))
            k.I("v_cmp_eq_u32 s[48:49], %d, v%d" % (base + 1, T + 2))
            k.I("v_cndmask_b32 v%d, 0, v%d, vcc" % (IDN + p, T + 3))
            k.I("v_cndmask_b32 v%d, v%d, v%d, s[48:49]" % (IDN + p, IDN + p, T + 4))
        for i in range(12, 16):
            k.I("v_mov_b32 v%d, 0" % (EP + i))
            k.I("v_mov_b32 v%d, 0" % (EM + i))
    def k_reads(o, kk):
        b = (4 * o + kk) & 1
        hi, lo = (o % 4) >> 1, ((o % 4) & 1) * KSLOT
        x = XF + 8 * b
        k.I("ds_read_b128 v[%d:%d], v%d offset:%d" % (x, x + 3, vXR + 4 * hi + kk, lo))
        for e in range(2):
            for jj in range(2):
                x = WF + 8 * b + 4 * e + 2 * jj
                k.I("ds_read_b64_tr_b16 v[%d:%d], v%d offset:%d" % (x, x + 1, vWR + hi, lo + (16 * kk + 4 * jj) * 224 + 112 * e))
        return 5
    def k_mfmas(ks):
        b = ks & 1
        xf = vr(XF + 8 * b, 4)
        c = 0 if ks == 0 else None
        return [mfma(vr(AK, 16), vr(WF + 8 * b, 4), xf, c), mfma(vr(AV, 16), xf, vr(WF + 8 * b + 4, 4), c)]
    gemm(4, KSLOT, 4, k_reads, k_mfmas, k_setup)
    for ff in range(2):
        for jj in range(2):
            r = PHI + 4 * ff + 2 * jj
            k.I("ds_read_b64_tr_b16 v[%d:%d], v%d offset:%d" % (r, r + 1, vPH, (16 * ff + 8 * jj) * 56))
    KF, VF, FKP, FKM = 100, 108, 116, 124
    cvt8(k, KF, AK)
    exec_hi(k)
    for r in (KF + 6, KF + 7): k.I("v_mov_b32 v%d, 0" % r)
    k.I(EXEC_ALL)
    k.I("s_waitcnt lgkmcnt(0)")
    k.I(mfma(vr(AK, 16), vr(PHI, 4), vr(KF, 4), 0))
    k.I(mfma(vr(AK, 16), vr(PHI + 4, 4), vr(KF + 4, 4)))
    cvt8(k, VF, AV)
    exec_both(k, 0xf0000000)
    for i in range(8): k.I("v_mov_b32 v%d, v%d" % (VF + i, vPADV))
    k.I(EXEC_ALL)
    feature_map(k, AK, FKP, FKM, EP, EM, T, sL, True)
    k.I(mfma(vr(AK, 16), vr(FKP, 4), vr(IDN, 4), 0))
    k.I(mfma(vr(AK, 16), vr(FKP + 4, 4), vr(IDN + 4, 4)))
    k.I(mfma(vr(AV, 16), vr(FKM, 4), vr(IDN, 4), 0))
    k.I(mfma(vr(AV, 16), vr(FKM + 4, 4), vr(IDN + 4, 4)))
    k.I("s_lshl_b32 s%d, s%d, 13" % (sTMP, sW))
    k.I("v_add_u32 v%d, s%d, v%d" % (T, sTMP, vL16))
    k.I("""
    s_and_b32 s{m}, s{w}, 3
    s_lshl_b32 s{m}, s{m}, 11
    s_and_b32 s{tmp}, s{w}, 4
    s_lshl_b32 s{tmp}, s{tmp}, 13
    s_add_u32 s{tmp}, s{tmp}, s{m}
    v_add_u32 v{t1}, s{tmp}, v{l16}
    s_lshl_b32 s{tmp}, s{head}, 4
    s_add_u32 s{tmp}, s{tmp}, s{rb}
    s_lshl_b32 s{tmp}, s{tmp}, 13
    s_add_u32 s{tmp}, s{tmp}, s{m}
    s_add_u32 s{tmp}, s{tmp}, 0x{off:x}
    """.format(m=sM, w=sW, tmp=sTMP, t1=T + 1, l16=vL16, head=sHEAD, rb=sRB, off=KVP_OFF))
    cvt8(k, FKP, AK)
    k.I(mfma(vr(EP, 16), vr(FKP, 4), vr(VF, 4), 0))
    k.I(mfma(vr(EP, 16), vr(FKP + 4, 4), vr(VF + 4, 4)))
    cvt8(k, FKM, AV)
    k.I(mfma(vr(EM, 16), vr(FKM, 4), vr(VF, 4), 0))
    k.I(mfma(vr(EM, 16), vr(FKM + 4, 4), vr(VF + 4, 4)))
    for q in range(8):
        k.I("ds_write_b128 v%d, v[%d:%d] offset:%d" % (T, EP + 4 * q, EP + 4 * q + 3, 1024 * q))
    k.I("s_waitcnt lgkmcnt(0)")
    st()
    k.I("s_barrier")
    for w in range(4):
        for q in range(2):
            r = ACC + 8 * w + 4 * q
            k.I("ds_read_b128 v[%d:%d], v%d offset:%d" % (r, r + 3, T + 1, 8192 * w + 1024 * q))
    for w in range(1, 4):
        k.I("s_waitcnt lgkmcnt(%d)" % (6 - 2 * w))
        for q in range(4):
            k.I(pk("v_pk_add_f32", ACC + 2 * q, ACC + 2 * q, ACC + 8 * w + 2 * q))
    store4(ACC, sTMP, 0); store4(ACC + 4, sTMP, 1024)
    st.dump(S_WS)
    k.label("L1_end")
    k.I("s_endpgm")
    k.items = secs["entry"] + [".p2align 12"] + secs["pqk"] + [".p2align 12"] + secs["pv"] + [".p2align 12"] + secs["kmain"]
    if TOUCH:
        k.label("L1_touch")
        k.I("""
        v_and_b32 v8, 15, v{l}
        v_mul_u32_u24 v8, 2688, v8
        v_lshrrev_b32 v9, 4, v{l}
        s_and_b32 s{tmp}, s{rb}, 3
        s_mul_i32 s{sof}, s{tmp}, {r16}
        s_mul_i32 s{b1}, s{rb}, {xr128}
        s_cmp_ge_u32 s3, 4
        s_cbranch_scc1 L1_tkv
        v_lshl_add_u32 v8, v9, 7, v8
        s_lshl_b32 s{g}, s3, 1
        s_cmp_eq_u32 s3, 3
        s_cselect_b32 s{g}, 0, s{g}
        s_add_u32 s{g}, s{g}, s{idx}
        s_mul_i32 s{tmp}, s{g}, 448
        s_add_u32 s{sof}, s{sof}, s{tmp}
        v_mul_u32_u24 v10, 896, v{l}
        v_add_u32 v11, 128, v10
        s_and_b32 s{tmp}, s3, 1
        s_mul_i32 s{tmp}, s{tmp}, {xr64}
        s_add_u32 s{b1}, s{b1}, s{tmp}
        s_cmp_ge_u32 s3, 2
        s_cselect_b32 s{b1}, 0x40000000, s{b1}
        s_branch L1_tgo
        L1_tkv:
        v_and_b32 v10, 1, v9
        v_mul_u32_u24 v10, 111, v10
        v_lshrrev_b32 v9, 1, v9
        v_mul_u32_u24 v11, 896, v9
        v_add3_u32 v8, v8, v10, v11
        s_lshl_b32 s{g}, s{idx}, 2
        s_and_b32 s{tmp}, s3, 3
        s_add_u32 s{g}, s{g}, s{tmp}
        s_mul_i32 s{g}, s{g}, 112
        s_add_u32 s{sof}, s{sof}, s{g}
        s_add_u32 s{sof}, s{sof}, 896
        s_mul_i32 s{tmp}, s{tmp}, {xr32}
        s_add_u32 s{b1}, s{b1}, s{tmp}
        v_and_b32 v10, 31, v{l}
        v_mul_u32_u24 v10, 896, v10
        v_lshl_add_u32 v10, v9, 7, v10
        v_mov_b32 v11, 0x40000000
        L1_tgo:
        s_waitcnt lgkmcnt(0)
        """.format(l=vL, tmp=sTMP, rb=sRB, sof=sSOF, r16=16 * 2688, b1=sB1, xr128=128 * 896, g=sG, idx=sIDX, xr64=64 * 896, xr32=32 * 896))
        srd(k, 12, 6, 7, 448 * 2688)
        srd(k, 16, 4, 5, 2048 * 896)
        def touch(kb, n):
            for j in range(kb, kb + n):
                k.I("s_add_u32 s%d, s%d, %d" % (sTMP, sSOF, j * 64 * 2688))
                k.I("buffer_load_dword v12, v8, s[12:15], s%d offen" % sTMP)
            k.I("buffer_load_dword v13, v10, s[16:19], s%d offen offset:%d" % (sB1, 128 * kb))
            if n == 2: k.I("buffer_load_dword v14, v11, s[16:19], s%d offen offset:%d" % (sB1, 128 * kb))
        plan = {1: [[(2, 2)], [(4, 2)], [(6, 1)]], 2: [[(2, 2), (4, 2)], [(6, 1)]], 3: [[(2, 2)], [], [(4, 2)], [(6, 1)]], 4: [[(2, 2), (4, 2), (6, 1)]]}[TOUCH]
        for grp in plan:
            k.I("s_barrier")
            for kb, n in grp: touch(kb, n)
        k.I("s_endpgm")
    return k, dict(grid=256, block=576 if TOUCH else 512, lds=LDS, vgpr=216, agpr=0, sgpr=102 if STAMP else 60)

def gen_k2():
    k = Kernel("attn_kernel")
    R = 4
    S_WS = 4
    sW, sHEAD, sTMP, sT, sU, sKVB, sP, sMASK, sPB, sPQ, sOA, sQA, sCNT = 8, 9, 10, 11, 12, 13, 14, 15, 17, 18, 19, 21, 16
    vL16 = 1
    Q = {"a": 4, "b": 12}
    S = {"a": 20, "b": 36}
    P = {"a": 52, "b": 60}
    O = {"a": 68, "b": 84}
    T = 100
    LKV, LPHI, LCNT, LWO = 16384, 20480, 22528, 23552
    def KR(i, f): return ar((i % R) * 16 + 4 * f, 4)
    def VR(i, f): return ar((i % R) * 16 + 8 + 4 * f, 4)
    k.I("""
    s_load_dwordx2 s[{ws0}:{ws1}], s[0:1], 72
    s_cmp_ge_u32 s2, 256
    s_cbranch_scc1 L2_end
    v_lshrrev_b32 v2, 6, v0
    v_and_b32 v1, 63, v0
    v_lshlrev_b32 v1, 4, v1
    v_readfirstlane_b32 s{w}, v2
    s_and_b32 s{head}, s2, 7
    s_lshl_b32 s{head}, s{head}, 1
    s_lshr_b32 s{tmp}, s2, 7
    s_add_u32 s{head}, s{head}, s{tmp}
    s_bfe_u32 s{t}, s2, 0x40003
    s_lshl_b32 s{t}, s{t}, 2
    s_mov_b32 s{ws2}, 0x{used:x}
    s_mov_b32 s{ws3}, 0x00020000
    s_cmp_ge_u32 s{w}, 4
    s_cbranch_scc1 L2_help
    s_load_dwordx2 s[24:25], s[0:1], 56
    s_lshr_b32 s{u}, s{w}, 1
    s_and_b32 s{tmp}, s{w}, 1
    s_lshl_b32 s{tmp}, s{tmp}, 1
    s_add_u32 s{t}, s{t}, s{tmp}
    s_add_u32 s{t}, s{t}, s{u}
    s_lshl_b32 s{tmp}, s{head}, 6
    s_add_u32 s{tmp}, s{t}, s{tmp}
    s_lshl_b32 s{tmp}, s{tmp}, 11
    s_add_u32 s{tmp}, s{tmp}, 0x{qoff:x}
    s_xor_b32 s{qa}, s{tmp}, 0x800
    s_lshl_b32 s{kvb}, s{head}, 18
    s_lshl_b32 s{p}, s{u}, 17
    s_add_u32 s{p}, s{kvb}, s{p}
    s_waitcnt lgkmcnt(0)
    """.format(w=sW, head=sHEAD, tmp=sTMP, u=sU, t=sT, kvb=sKVB, p=sP, qoff=Q_OFF, qa=sQA,
               ws0=S_WS, ws1=S_WS + 1, ws2=S_WS + 2, ws3=S_WS + 3, used=WS_USED))
    st = Stamper(k, 1, 4, 126); st.start()
    def ld(dst, soff, off):
        k.I("buffer_load_dwordx4 %s, v%d, s[%d:%d], s%d offen offset:%d%s" % (dst, vL16, S_WS, S_WS + 3, soff, off, LSC))
    ld(KR(3, 0), sKVB, 0); ld(KR(3, 1), sKVB, 1024)
    ld(vr(Q["a"], 4), sQA, 0); ld(vr(Q["a"] + 4, 4), sQA, 1024)
    ld(vr(Q["b"], 4), sTMP, 0); ld(vr(Q["b"] + 4, 4), sTMP, 1024)
    for j in range(3):
        ld(KR(j, 0), sP, 0); ld(KR(j, 1), sP, 1024); ld(VR(j, 0), sP, 2048); ld(VR(j, 1), sP, 3072)
        k.I("s_add_u32 s%d, s%d, 4096" % (sP, sP))
    for i in range(8): k.I("v_mov_b32 v%d, 0" % (P["b"] + i))
    for i in range(8): k.I("v_accvgpr_write_b32 a%d, 0" % (56 + i))
    for x in "ab": k.I(mfma(vr(O[x], 16), vr(P["b"], 4), vr(P["b"], 4), 0))
    k.I("s_barrier")
    k.I("""
    s_mov_b32 s{mask}, 0xffff0000
    s_lshl_b32 s{tmp}, s{t}, 4
    s_add_u32 s{tmp}, s{tmp}, s{head}
    s_lshl_b32 s{tmp}, s{tmp}, 11
    s_add_u32 s{oa}, s{tmp}, 0x{ooff:x}
    s_lshl_b32 s{tmp}, s{w}, 12
    v_add_u32 v3, s{tmp}, v1
    s_xor_b32 s{tmp}, s{tmp}, 0x2000
    v_add_u32 v2, s{tmp}, v1
    s_mov_b32 s{cnt}, 7
    """.format(head=sHEAD, tmp=sTMP, w=sW, t=sT, mask=sMASK, oa=sOA, ooff=O_OFF, cnt=sCNT))
    S_OUT, sT3, sO3, sFL, sN, sOo, sWo = 24, 28, 29, 30, 31, 34, 42
    vFL = T + 11
    if FUSE:
        k.I("""
        s_and_b32 s{t3}, s2, 7
        s_lshl_b32 s{t3}, s{t3}, 2
        s_bfe_u32 s{tmp}, s2, 0x20003
        s_add_u32 s{t3}, s{t3}, s{tmp}
        s_lshl_b32 s{t3}, s{t3}, 1
        s_and_b32 s{tmp}, s{w}, 1
        s_add_u32 s{t3}, s{t3}, s{tmp}
        s_lshl_b32 s{o3}, s{t3}, 1
        s_add_u32 s{o3}, s{o3}, s{u}
        s_lshl_b32 s{fl}, s{o3}, 5
        s_add_u32 s{fl}, s{fl}, 0x{fo:x}
        s_lshl_b32 s{o3}, s{o3}, 14
        s_add_u32 s{o3}, s{o3}, 0x{ooff:x}
        v_lshrrev_b32 v{vfl}, 2, v1
        v_and_b32 v{vfl}, 28, v{vfl}
        """.format(t3=sT3, tmp=sTMP, w=sW, o3=sO3, u=sU, fl=sFL, fo=FLAG_OFF, ooff=O_OFF, vfl=vFL))

    def qk(x, i):
        return [mfma(vr(S[x], 16), KR(i, 0), vr(Q[x], 4), 0), mfma(vr(S[x], 16), KR(i, 1), vr(Q[x] + 4, 4))]
    def pv(x, i):
        return [mfma(vr(O[x], 16), VR(i, 0), vr(P[x], 4)), mfma(vr(O[x], 16), VR(i, 1), vr(P[x] + 4, 4))]
    def phase(x, mf, after):
        def cv(n): return "v_cvt_pk_bf16_f32 v%d, v%d, v%d" % (P[x] + n, S[x] + 2 * n, S[x] + 2 * n + 1)
        def ex(n): return "v_exp_f32 v%d, v%d" % (S[x] + n, S[x] + n)
        for g in range(4):
            if mf[g] is not None: k.I(mf[g])
            if after[g] is not None: after[g]()
            k.I(ex(4 * g)); k.I(ex(4 * g + 1))
            if g > 0: k.I(cv(2 * g - 1))
            k.I(ex(4 * g + 2)); k.I(ex(4 * g + 3))
            k.I(cv(2 * g))
        k.I(cv(7))
    def bcast_hi(src, t0, t1):
        k.I("v_mov_b32 v%d, v%d" % (t0, src))
        k.I("v_mov_b32 v%d, v%d" % (t1, src))
        k.I("v_permlane32_swap_b32 v%d, v%d" % (t0, t1))
    def normalise(X, F, soff, eps):
        bcast_hi(X + 12, T, T + 2)
        if eps: k.I("v_add_f32 v%d, 0x%x, v%d" % (T + 2, f2u(1e-6), T + 2))
        k.I("v_rcp_f32 v%d, v%d" % (T + 2, T + 2))
        for i in range(8):
            k.I(pk("v_pk_mul_f32", X + 2 * i, X + 2 * i, T + 2, " op_sel_hi:[1,0]"))
        cvt8(k, F, X)
        exec_hi(k)
        k.I("v_mov_b32 v%d, 0" % (F + 6))
        k.I("v_mov_b32 v%d, 0" % (F + 7))
        k.I(EXEC_ALL)
        for f in range(2):
            k.I("buffer_store_dwordx4 v[%d:%d], v%d, s[%d:%d], s%d offen offset:%d%s" % (F + 4 * f, F + 4 * f + 3, vL16, S_WS, S_WS + 3, soff, 1024 * f, SC))

    st()
    k.I("s_waitcnt vmcnt(12)")
    st()
    for m in qk("a", 3) + qk("b", 3): k.I(m)
    ld(KR(3, 0), sP, 0)
    k.I("s_add_u32 s%d, s%d, %d" % (sP, sP, 2048 - 4096))
    for x, m in (("a", T), ("b", T + 4)):
        k.I("v_max3_f32 v%d, v%d, v%d, v%d" % (m, S[x], S[x] + 1, S[x] + 2))
        for i in range(3, 15, 2):
            k.I("v_max3_f32 v%d, v%d, v%d, v%d" % (m, m, S[x] + i, S[x] + i + 1))
        k.I("v_max_f32 v%d, v%d, v%d" % (m, m, S[x] + 15))
        xhalf(k, "v_max_f32", m, m + 1)
        k.I("v_add_f32 v%d, 0x%x, v%d" % (m, f2u(MOFF), m))
        neg_max_pieces(k, m, m + 1, m + 2, Q[x] + 6, Q[x] + 7, sMASK)
        if x == "a":
            k.I("s_waitcnt vmcnt(11)")
            for mm in qk("a", 0): k.I(mm)
    st()
    I = lambda t: (lambda: k.I(t))
    def tile(i, wait, loads, last=False, b1=None, ex=None):
        L = [lambda: ld(KR(i + 3, 1), sP, 3072), lambda: ld(KR(i + 4, 0), sP, 2048), lambda: ld(VR(i + 3, 0), sP, 0), lambda: ld(VR(i + 3, 1), sP, 1024)]
        L = [f if u else None for f, u in zip(L, loads)]
        A = [L[0], I("s_add_u32 s%d, s%d, 4096" % (sP, sP)) if any(loads) else None, L[1], I("s_waitcnt vmcnt(%d)" % wait) if wait is not None else None]
        B = [L[2], b1, L[3], None]
        if ex: A, B = ex[:4], (ex[4:] + [None] * 4)[:4]
        phase("a", qk("b", i) + pv("b", i - 1), A)
        if not last:
            phase("b", qk("a", i + 1) + pv("a", i), B)
        else:
            def send():
                for q in range(4):
                    k.I("ds_write_b128 v3, v[%d:%d] offset:%d" % (O["a"] + 4 * q, O["a"] + 4 * q + 3, 1024 * q))
            phase("b", pv("a", i) + [None, None], B[:3] + [send])
    k.label("L2_loop")
    for j in range(4):
        tile(j, 9, (1, 1, 1, 1), b1=I("s_sub_u32 s%d, s%d, 1" % (sCNT, sCNT)) if j == 3 else None)
    k.I("s_cmp_lg_u32 s%d, 0" % sCNT)
    k.I("s_cbranch_scc1 L2_loop")
    st()
    def flagload(br):
        k.I("buffer_load_dword v%d, v%d, s[%d:%d], s%d offen offset:%d sc1" % (T + 10, vFL, S_WS, S_WS + 3, sFL, 4096 * br - 1 if False else 0) if br == 0 else
            "buffer_load_dword v%d, v%d, s[%d:%d], s%d offen sc1" % (T + 10, vFL, S_WS, S_WS + 3, sN))
    def poll(br, lab):
        k.I("s_waitcnt vmcnt(0)")
        k.I("v_cmp_ne_u32 vcc, 1, v%d" % (T + 10))
        k.I("s_cbranch_vccz %s_ok" % lab)
        k.I("s_mov_b32 s%d, 0x20000" % sCNT)
        k.label(lab)
        flagload(br)
        k.I("s_sub_u32 s%d, s%d, 1" % (sCNT, sCNT))
        k.I("s_cbranch_scc1 %s_ok" % lab)
        k.I("s_waitcnt vmcnt(0)")
        k.I("v_cmp_ne_u32 vcc, 1, v%d" % (T + 10))
        k.I("s_cbranch_vccnz %s" % lab)
        k.label(lab + "_ok")
    def obload(n):
        def f():
            if n % 4 == 0: k.I("s_add_u32 s%d, s%d, %d" % (sTMP, sO3, (2 << 20) + 1024 * n))
            k.I("buffer_load_dwordx4 a[%d:%d], v%d, s[%d:%d], s%d offen offset:%d sc1" % (64 + 4 * n, 67 + 4 * n, vL16, S_WS, S_WS + 3, sTMP, 1024 * (n % 4)))
        return f
    if FUSE:
        k.I("s_add_u32 s%d, s%d, 4096" % (sN, sFL))
        tile(28, 8, (1, 0, 1, 1), b1=lambda: flagload(1))
        tile(29, 7, (0, 0, 0, 0))
        poll(1, "L3_pb")
        tile(30, None, (0, 0, 0, 0), ex=[obload(n) for n in range(8)])
        tile(31, None, (0, 0, 0, 0), last=True, ex=[obload(n) for n in range(8, 14)])
        obload(14)(); obload(15)()
    else:
        tile(28, 8, (1, 0, 1, 1)); tile(29, 6, (0, 0, 0, 0)); tile(30, 2, (0, 0, 0, 0)); tile(31, 0, (0, 0, 0, 0), last=True)
    for m in pv("b", 31): k.I(m)
    st()
    k.I("s_waitcnt lgkmcnt(0)")
    k.I("s_barrier")
    for q in range(4):
        k.I("ds_read_b128 v[%d:%d], v2 offset:%d" % (O["a"] + 4 * q, O["a"] + 4 * q + 3, 1024 * q))
    OB = O["b"]
    for q in range(4):
        k.I("s_waitcnt lgkmcnt(%d)" % (3 - q))
        k.I(pk("v_pk_add_f32", OB + 4 * q, OB + 4 * q, O["a"] + 4 * q))
        k.I(pk("v_pk_add_f32", OB + 4 * q + 2, OB + 4 * q + 2, O["a"] + 4 * q + 2))
    k.I("v_pk_mul_f32 v[%d:%d], v[%d:%d], 0" % (T, T + 1, OB, OB + 1))
    for i in range(1, 8):
        k.I("v_pk_fma_f32 v[%d:%d], v[%d:%d], 0, v[%d:%d]" % (T, T + 1, OB + 2 * i, OB + 2 * i + 1, T, T + 1))
    k.I("v_cmp_u_f32 vcc, v%d, v%d" % (T, T + 1))
    k.I("s_cbranch_vccnz L2_slow")
    k.label("L2_norm")
    normalise(OB, P["a"], sOA, False)
    def publish(br):
        k.I("""
        s_lshl_b32 s{tmp}, s{t}, 4
        s_add_u32 s{tmp}, s{tmp}, s{head}
        s_lshl_b32 s{tmp}, s{tmp}, 2
        s_add_u32 s{tmp}, s{tmp}, 0x{fo:x}
        v_mov_b32 v{a}, 1
        s_mov_b64 exec, 1
        s_waitcnt vmcnt(0)
        buffer_store_dword v{a}, v1, s[{ws}:{ws3}], s{tmp} offen sc1
        s_mov_b64 exec, -1
        """.format(tmp=sTMP, t=sT, head=sHEAD, fo=FLAG_OFF + 4096 * br, a=T, ws=S_WS, ws3=S_WS + 3))
    if FUSE:
        st()
        publish(0)
        k.I("s_branch L3_go")
    else:
        st.dump(S_WS)
    k.label("L2_end")
    k.I("s_endpgm")

    k.label("L2_help")
    HM = opt("hmode", 0)
    if HM == 1: k.I("s_endpgm")
    PART = 4
    NP, NM, PQ, FQ = 12, 28, 44, 60
    FB, EP, EM = 76, 84, 112
    KVF, PHI, QB = 0, 16, 24
    SWO, SPHI, sL = 24, 28, 32
    k.I("""
    s_and_b32 s3, s2, {wsel}
    s_lshl_b32 s3, s3, 3
    s_add_u32 s3, s3, 16
    s_load_dwordx2 s[22:23], s[0:1], s3
    s_load_dwordx2 s[34:35], s[0:1], 48
    s_load_dwordx2 s[20:21], s[0:1], 40
    v_mov_b32 v{a}, {lcnt}
    v_mov_b32 v{b}, 0
    ds_write_b32 v{a}, v{b}
    s_and_b32 s{w}, s{w}, 3
    s_add_u32 s{t}, s{t}, s{w}
    s_lshl_b32 s{tmp}, s{head}, 6
    s_add_u32 s{tmp}, s{t}, s{tmp}
    s_lshl_b32 s{pq}, s{tmp}, 11
    s_add_u32 s{pq}, s{pq}, 0x{qbo:x}
    s_lshl_b32 s{pb}, s{head}, 17
    s_lshl_b32 s{tmp}, s{w}, 11
    s_add_u32 s{pb}, s{pb}, s{tmp}
    s_add_u32 s{pb}, s{pb}, 0x{kvp:x}
    s_mov_b32 s{l0}, 0x{lg:x}
    s_mov_b32 s{l1}, 0x{lg:x}
    s_lshl_b32 s{tmp}, s{t}, 4
    s_add_u32 s{tmp}, s{tmp}, s{head}
    s_lshl_b32 s{tmp}, s{tmp}, 11
    s_add_u32 s{oa}, s{tmp}, 0x{ooffb:x}
    s_add_u32 s{qa}, s{tmp}, 0x{ooff:x}
    s_lshl_b32 s{tmp}, s{w}, 10
    v_add_u32 v2, s{tmp}, v1
    v_lshrrev_b32 v{a}, 9, v1
    v_bfe_u32 v{b}, v1, 6, 2
    v_lshl_add_u32 v{a}, v{a}, 2, v{b}
    v_mul_u32_u24 v{a}, 56, v{a}
    v_bfe_u32 v{b}, v1, 8, 1
    v_lshl_add_u32 v{a}, v{b}, 5, v{a}
    v_bfe_u32 v{b}, v1, 4, 2
    v_lshl_add_u32 v3, v{b}, 3, v{a}
    s_lshr_b32 s{tmp}, s2, 3
    s_lshl_b32 s{tmp}, s{tmp}, 2
    s_add_u32 s{tmp}, s{tmp}, s{w}
    s_mul_i32 s3, s{tmp}, 3200
    v_lshlrev_b32 v{x}, 3, v1
    v_mov_b32 v{y}, 0x40000000
    v_cmp_gt_u32 vcc, 3200, v{x}
    s_and_b32 s16, s{w}, 1
    s_lshl_b32 s16, s16, 10
    v_cndmask_b32 v{x}, v{y}, v{x}, vcc
    s_add_u32 m0, s16, {lphi}
    s_mul_i32 s{tmp}, s{head}, 1568
    s_add_u32 s16, s16, s{tmp}
    s_setprio {prio}
    s_waitcnt lgkmcnt(0)
    s_barrier
    """.format(pb=sPB, head=sHEAD, tmp=sTMP, w=sW, kvp=KVP_OFF, t=sT, pq=sPQ, qbo=QB_OFF, oa=sOA, ooffb=O_OFF + (2 << 20), qa=sKVB, ooff=O_OFF,
               a=T, b=T + 1, x=T + 10, y=T + 11, l0=sL, l1=sL + 1, lg=f2u(LOG2E), lphi=LPHI, prio=opt("hprio", 1), lcnt=LCNT, wsel=0 if FUSE else 4))
    srd(k, SWO, 22, 23, 448 * 896)
    srd(k, SPHI, 20, 21, 16 * 1568)
    k.I("buffer_load_dwordx4 v%d, s[%d:%d], s16 offen lds" % (vL16, SPHI, SPHI + 3))
    for f in range(2): ld(ar(QB + 4 * f, 4), sPQ, 1024 * f)
    def pload(blk, pos):
        for q in range(2): ld(vr(PART + 8 * pos + 4 * q, 4), sPB, 1024 * q)
        k.I("s_add_u32 s%d, s%d, 8192" % (sPB, sPB))
    DEPTH = opt("hdepth", 1)
    pos = lambda blk: 0 if blk == 0 else 1 + (blk - 1) % 8
    BAT = opt("hbat", 1)
    nb = 16 // BAT
    for blk in range(BAT): pload(blk, pos(blk))
    for i in range(12, 16):
        k.I("v_mov_b32 v%d, 0" % (EP + i))
        k.I("v_mov_b32 v%d, 0" % (EM + i))
    for bt in range(nb):
        if DEPTH and bt + 1 < nb:
            for blk in range(BAT * (bt + 1), BAT * (bt + 2)): pload(blk, pos(blk))
        k.I("s_waitcnt vmcnt(%d)" % (2 * BAT if (DEPTH and bt + 1 < nb) else 0))
        for blk in range(max(BAT * bt, 1), BAT * (bt + 1)):
            for q in range(4):
                k.I(pk("v_pk_add_f32", PART + 2 * q, PART + 2 * q, PART + 8 * pos(blk) + 2 * q))
        if not DEPTH and bt + 1 < nb:
            for blk in range(BAT * (bt + 1), BAT * (bt + 2)): pload(blk, pos(blk))
    for q in range(4):
        k.I("v_cvt_pk_bf16_f32 v%d, v%d, v%d" % (T + q, PART + 2 * q, PART + 2 * q + 1))
    exec_both(k, 0x20000000)
    for q in range(4): k.I("v_mov_b32 v%d, 0x3f803f80" % (T + q))
    k.I(EXEC_ALL)
    k.I("ds_write_b128 v2, v[%d:%d] offset:%d" % (T, T + 3, LKV))
    if opt("wopf", 1) and not FUSE:
        k.I("buffer_load_dword v%d, v%d, s[%d:%d], s3 offen" % (T + 11, T + 10, SWO, SWO + 3))
    k.I("""
    v_mov_b32 v{a}, {lcnt}
    v_mov_b32 v{b}, 1
    s_mov_b64 exec, 1
    s_waitcnt lgkmcnt(0)
    ds_add_u32 v{a}, v{b}
    L2_poll:
    ds_read_b32 v{b}, v{a}
    s_waitcnt lgkmcnt(0)
    v_cmp_ne_u32 vcc, 4, v{b}
    s_cbranch_vccnz L2_poll
    s_mov_b64 exec, -1
    """.format(a=T + 4, b=T + 5, lcnt=LCNT))
    for ff in range(2):
        for jj in range(2):
            r = PHI + 4 * ff + 2 * jj
            k.I("ds_read_b64_tr_b16 a[%d:%d], v3 offset:%d" % (r, r + 1, LPHI + (16 * ff + 8 * jj) * 56))
    for f in range(4):
        k.I("ds_read_b128 a[%d:%d], v%d offset:%d" % (KVF + 4 * f, KVF + 4 * f + 3, vL16, LKV + 1024 * f))
    if HM == 3: k.I("s_endpgm")
    k.I("s_setprio %d" % opt("hprio2", 1))
    k.I("s_waitcnt lgkmcnt(4)")
    k.I(mfma(vr(PQ, 16), ar(PHI, 4), ar(QB, 4), 0))
    k.I(mfma(vr(PQ, 16), ar(PHI + 4, 4), ar(QB + 4, 4)))
    feature_map(k, PQ, FQ, FQ + 8, EP, EM, T, sL, False)
    k.I("s_waitcnt lgkmcnt(0)")
    for f in range(4):
        k.I(mfma(vr(NP if f < 2 else NM, 16), ar(KVF + 4 * f, 4), vr(FQ + 4 * f, 4), 0 if f % 2 == 0 else None))
    bcast_hi(NP + 13, T, T + 2)
    bcast_hi(NM + 13, T + 1, T + 4)
    k.I("v_rcp_f32 v%d, v%d" % (T + 2, T + 2))
    k.I("v_rcp_f32 v%d, v%d" % (T + 4, T + 4))
    for i in range(8):
        k.I(pk("v_pk_mul_f32", NP + 2 * i, NP + 2 * i, T + 2, " op_sel_hi:[1,0]"))
    for i in range(8):
        k.I("v_pk_fma_f32 v[%d:%d], v[%d:%d], v[%d:%d], v[%d:%d] op_sel_hi:[1,0,1]" %
            (NP + 2 * i, NP + 2 * i + 1, NM + 2 * i, NM + 2 * i + 1, T + 4, T + 5, NP + 2 * i, NP + 2 * i + 1))
    normalise(NP, FB, sOA, True)
    if FUSE:
        publish(1)
        k.I("""
        s_cmp_ge_u32 s2, 224
        s_cbranch_scc1 L2_end
        v_lshrrev_b32 v{a}, 7, v1
        v_mul_u32_u24 v{a}, 896, v{a}
        v_bfe_u32 v{b}, v1, 4, 3
        v_bfe_u32 v{c}, v1, 8, 1
        v_lshlrev_b32 v{c}, 2, v{c}
        v_xor_b32 v{b}, v{b}, v{c}
        v_lshl_add_u32 v{a}, v{b}, 4, v{a}
        s_mul_i32 s3, s{w}, {r8}
        s_lshr_b32 s{tmp}, s2, 5
        s_lshl_b32 s{tmp}, s{tmp}, 7
        s_add_u32 s3, s3, s{tmp}
        s_lshl_b32 s16, s{w}, 10
        """.format(a=T, b=T + 1, c=T + 2, w=sW, r8=8 * 896, tmp=sTMP))
        srd(k, SPHI, 34, 35, 448 * 896)
        for br in range(2):
            for n in range(15):
                k.I("s_add_u32 m0, s16, %d" % (LWO + 61440 * br + n * 4096))
                k.I("s_add_u32 s%d, s3, %d" % (sTMP, n * 32 * 896))
                k.I("buffer_load_dwordx4 v%d, s[%d:%d], s%d offen lds" % (T, (SWO, SPHI)[br], (SWO, SPHI)[br] + 3, sTMP))
                k.I("s_waitcnt vmcnt(%d)" % (opt("wodepth", 1) if (br, n) != (1, 14) else 0))
    k.I("s_endpgm")

    k.label("L2_slow")
    SS, QQ = S["b"], Q["b"]
    exec_hi(k)
    k.I("v_mov_b32 v%d, 0" % (QQ + 6))
    k.I("v_mov_b32 v%d, 0" % (QQ + 7))
    k.I(EXEC_ALL)
    k.I("v_mov_b32 v%d, 0xff800000" % T)
    k.I("s_mov_b32 s%d, s%d" % (sP, sKVB))
    k.I("s_add_u32 s%d, s%d, 0x40000" % (sTMP, sKVB))
    k.label("L2_slow1")
    ld(ar(0, 4), sP, 0); ld(ar(4, 4), sP, 1024)
    k.I("s_waitcnt vmcnt(0)")
    k.I(mfma(vr(SS, 16), ar(0, 4), vr(QQ, 4), 0))
    k.I(mfma(vr(SS, 16), ar(4, 4), vr(QQ + 4, 4)))
    for i in range(0, 16, 2):
        k.I("v_max3_f32 v%d, v%d, v%d, v%d" % (T, T, SS + i, SS + i + 1))
    k.I("s_add_u32 s%d, s%d, 4096" % (sP, sP))
    k.I("s_cmp_lt_u32 s%d, s%d" % (sP, sTMP))
    k.I("s_cbranch_scc1 L2_slow1")
    xhalf(k, "v_max_f32", T, T + 1)
    neg_max_pieces(k, T, T + 1, T + 2, QQ + 6, QQ + 7, sMASK)
    for i in range(16): k.I("v_mov_b32 v%d, 0" % (OB + i))
    k.I("s_mov_b32 s%d, s%d" % (sP, sKVB))
    k.label("L2_slow2")
    for f in range(4): ld(ar(4 * f, 4), sP, 1024 * f)
    k.I("s_waitcnt vmcnt(0)")
    k.I(mfma(vr(SS, 16), ar(0, 4), vr(QQ, 4), 0))
    k.I(mfma(vr(SS, 16), ar(4, 4), vr(QQ + 4, 4)))
    for i in range(16): k.I("v_exp_f32 v%d, v%d" % (SS + i, SS + i))
    cvt8(k, P["a"], SS)
    k.I(mfma(vr(OB, 16), ar(8, 4), vr(P["a"], 4)))
    k.I(mfma(vr(OB, 16), ar(12, 4), vr(P["a"] + 4, 4)))
    k.I("s_add_u32 s%d, s%d, 4096" % (sP, sP))
    k.I("s_cmp_lt_u32 s%d, s%d" % (sP, sTMP))
    k.I("s_cbranch_scc1 L2_slow2")
    k.I("s_nop 7\ns_nop 7")
    k.I("s_branch L2_norm")
    if FUSE:
        k.I(".p2align 12")
        k.label("L3_go")
        vWR, vWR1, vST, vA0, vA1 = 4, 5, 6, 8, 9
        ACC, WF, XCH = (20, 36), 52, 84
        k.I("""
        s_cmp_ge_u32 s2, 224
        s_cbranch_scc1 L2_end
        v_lshrrev_b32 v{h}, 9, v1
        v_lshlrev_b32 v{wr}, 9, v{h}
        v_bfe_u32 v{c}, v1, 6, 2
        v_lshl_add_u32 v{wr}, v{c}, 7, v{wr}
        v_bfe_u32 v{c}, v1, 7, 1
        v_lshl_add_u32 v{wr}, v{c}, 6, v{wr}
        v_bfe_u32 v{c}, v1, 8, 1
        v_lshl_add_u32 v{wr}, v{c}, 5, v{wr}
        v_bfe_u32 v{c}, v1, 4, 2
        v_lshl_add_u32 v{wr}, v{c}, 3, v{wr}
        s_mul_i32 s{tmp}, s{u}, {h8}
        s_add_u32 s{tmp}, s{tmp}, {lwo}
        v_add_u32 v{wr}, s{tmp}, v{wr}
        s_lshl_b32 s{tmp}, s{u}, 6
        v_xor_b32 v{wr}, s{tmp}, v{wr}
        v_xor_b32 v{wr1}, 64, v{wr}
        v_add_u32 v{a0}, 61440, v{wr}
        v_add_u32 v{a1}, 61440, v{wr1}
        v_bfe_u32 v{c}, v1, 4, 5
        v_mul_u32_u24 v{c}, 1792, v{c}
        v_lshl_add_u32 v{st}, v{h}, 4, v{c}
        s_mul_i32 s{t3}, s{t3}, {r32}
        s_add_u32 s{t3}, s{t3}, s{tmp}
        s_lshr_b32 s{n}, s2, 5
        s_lshl_b32 s{tmp}, s{n}, 7
        s_add_u32 s{t3}, s{t3}, s{tmp}
        s_mov_b32 s{o2}, {nb}
        s_mov_b32 s{o3}, 0x00020000
        """.format(h=T, c=T + 1, wr=vWR, wr1=vWR1, st=vST, t3=sT3, r32=32 * 1792, tmp=sTMP, u=sU, h8=8 * 3584, lwo=LWO, a0=vA0, a1=vA1,
                   n=sN, o2=S_OUT + 2, o3=S_OUT + 3, nb=2048 * 1792))
        def wread(slot, r0, r1, base):
            b = WF + 16 * (slot & 1)
            L = []
            for f in range(2):
                for c in range(2):
                    for jj in range(2):
                        r = b + 8 * c + 4 * f + 2 * jj
                        L.append("ds_read_b64_tr_b16 v[%d:%d], v%d offset:%d" % (r, r + 1, r1 if c else r0, base + (16 * f + 8 * jj) * 128))
            return L
        def mf(slot, abase):
            b = WF + 16 * (slot & 1)
            return [mfma(vr(ACC[c], 16), vr(b + 8 * c + 4 * f, 4), ar(abase + 8 * slot + 4 * f, 4), 0 if (slot == 0 and f == 0) else None) for f in range(2) for c in range(2)]
        def trade1(vw, vr_):
            for q in range(4):
                k.I("ds_write_b128 v%d, v[%d:%d] offset:%d" % (vw, ACC[1] + 4 * q, ACC[1] + 4 * q + 3, 1024 * q))
            k.I("s_waitcnt lgkmcnt(0)")
            k.I("s_barrier")
            for q in range(4):
                k.I("ds_read_b128 v[%d:%d], v%d offset:%d" % (XCH + 4 * q, XCH + 4 * q + 3, vr_, 1024 * q))
        def trade2(F):
            for q in range(4):
                k.I("s_waitcnt lgkmcnt(%d)" % (3 - q))
                k.I(pk("v_pk_add_f32", ACC[0] + 4 * q, ACC[0] + 4 * q, XCH + 4 * q))
                k.I(pk("v_pk_add_f32", ACC[0] + 4 * q + 2, ACC[0] + 4 * q + 2, XCH + 4 * q + 2))
            cvt8(k, F, ACC[0])
            for gp in range(2):
                k.I("v_permlane32_swap_b32 v%d, v%d" % (F + 4 * gp, F + 4 * gp + 2))
                k.I("v_permlane32_swap_b32 v%d, v%d" % (F + 4 * gp + 1, F + 4 * gp + 3))
        def ostore(F, off):
            for gp in range(2):
                k.I("buffer_store_dwordx4 v[%d:%d], v%d, s[%d:%d], s%d offen offset:%d" % (F + 4 * gp, F + 4 * gp + 3, vST, S_OUT, S_OUT + 3, sT3, off + 32 * gp))
        k.I("v_add_u32 v10, %d, v3" % (LWO + 2 * 61440))
        k.I("v_add_u32 v11, %d, v2" % (LWO + 2 * 61440))
        for x in wread(0, vA0, vA1, 0): k.I(x)
        for i in range(8):
            k.I("s_add_u32 s%d, s%d, %d" % (sTMP, sN, i))
            k.I("s_and_b32 s%d, s%d, 7" % (sTMP, sTMP))
            k.I("s_mul_i32 s%d, s%d, 3584" % (sWo + i, sTMP))
            k.I("s_lshl_b32 s%d, s%d, 11" % (sTMP, sTMP))
            k.I("s_add_u32 s%d, s%d, s%d" % (sOo + i, sTMP, sO3))
        for i in range(8):
            nxt = wread(i + 1, vA0, vA1, 3584 * (i + 1)) if i + 1 < 8 else []
            for x in nxt: k.I(x)
            k.I("s_waitcnt lgkmcnt(%d)" % len(nxt))
            for m in mf(i, 64): k.I(m)
        st()
        flagload(0)
        trade1(10, 11)
        trade2(12)
        st()
        poll(0, "L3_pa")
        st()
        for i in range(8):
            for f in range(2):
                k.I("buffer_load_dwordx4 a[%d:%d], v%d, s[%d:%d], s%d offen offset:%d sc1" % (8 * i + 4 * f, 8 * i + 4 * f + 3, vL16, S_WS, S_WS + 3, sOo + i, 1024 * f))
        ostore(12, 896)
        def adr(i):
            k.I("v_add_u32 v%d, s%d, v%d" % (vA0, sWo + i, vWR))
            k.I("v_add_u32 v%d, s%d, v%d" % (vA1, sWo + i, vWR1))
        adr(0)
        for x in wread(0, vA0, vA1, 0): k.I(x)
        for i in range(8):
            nxt = []
            if i + 1 < 8:
                adr(i + 1)
                nxt = wread(i + 1, vA0, vA1, 0)
            for x in nxt: k.I(x)
            k.I("s_waitcnt vmcnt(%d) lgkmcnt(%d)" % (2 + 2 * (7 - i), len(nxt)))
            for m in mf(i, 0): k.I(m)
        st()
        trade1(3, 2)
        trade2(12)
        ostore(12, 0)
        st.dump(S_WS)
        k.I("s_endpgm")
        k.label("L_code_end")
    return k, dict(grid=256, block=512, lds=(LWO + 2 * 61440 + 16384) if FUSE else LCNT + 64, vgpr=128, agpr=opt("k2agpr", 128), sgpr=102 if STAMP else 52)

def gen_k3():
    k = Kernel("oproj_kernel")
    S_WO, S_WS, S_OUT = 8, 12, 16
    sW, sBR, sRB, sCG, sTMP, sWO, sO, sM = 20, 21, 22, 23, 24, 25, 26, 27
    vL, vL16, vWD, vWR, vWR1, vST = 1, 2, 3, 4, 5, 6
    ACC = (16, 32)
    WF = 48
    T = 80
    NR = 480
    vm = VmQueue(k)
    k.I("""
    s_cmp_ge_u32 s2, 224
    s_cbranch_scc1 L3_end
    s_and_b32 s3, s2, 7
    s_lshr_b32 s{br}, s3, 2
    s_lshl_b32 s{tmp}, s{br}, 5
    s_add_u32 s{tmp}, s{tmp}, 16
    s_load_dwordx2 s[4:5], s[0:1], s{tmp}
    s_load_dwordx2 s[6:7], s[0:1], 72
    s_load_dwordx2 s[0:1], s[0:1], 56
    v_lshrrev_b32 v2, 6, v0
    v_and_b32 v{l}, 63, v0
    v_readfirstlane_b32 s{w}, v2
    v_lshlrev_b32 v{l16}, 4, v{l}
    v_lshrrev_b32 v{a}, 3, v{l}
    v_mul_u32_u24 v{a}, 896, v{a}
    v_and_b32 v{b}, 7, v{l}
    v_bfe_u32 v{c}, v{l}, 4, 1
    v_lshlrev_b32 v{c}, 2, v{c}
    v_xor_b32 v{b}, v{b}, v{c}
    v_lshl_add_u32 v{wd}, v{b}, 4, v{a}
    s_and_b32 s{rb}, s3, 3
    s_lshl_b32 s{rb}, s{rb}, 2
    s_bfe_u32 s{tmp}, s2, 0x20003
    s_add_u32 s{rb}, s{rb}, s{tmp}
    s_lshr_b32 s{cg}, s2, 5
    s_mul_i32 s{wo}, s{w}, {r8}
    s_lshl_b32 s{m}, s{w}, 10
    s_lshl_b32 s{tmp}, s{cg}, 7
    s_add_u32 s{wo}, s{wo}, s{tmp}
    s_lshl_b32 s{o}, s{br}, 6
    s_lshl_b32 s{rb}, s{rb}, 2
    s_add_u32 s{rb}, s{rb}, s{w}
    s_add_u32 s{o}, s{o}, s{rb}
    s_lshl_b32 s{o}, s{o}, 15
    s_add_u32 s{o}, s{o}, 0x{ooff:x}
    s_waitcnt lgkmcnt(0)
    """.format(br=sBR, tmp=sTMP, l=vL, w=sW, l16=vL16, a=T, b=T + 1, c=T + 2, wd=vWD, rb=sRB, cg=sCG, wo=sWO, m=sM, r8=8 * 896,
               o=sO, ooff=O_OFF))
    st = Stamper(k, 2, 4, 94); st.start()
    srd(k, S_WO, 4, 5, 448 * 896)
    srd(k, S_WS, 6, 7, WS_USED)
    def wdma(n):
        k.I("s_add_u32 m0, s%d, %d" % (sM, n * 4096))
        k.I("s_add_u32 s%d, s%d, %d" % (sTMP, sWO, n * 32 * 896))
        k.I("buffer_load_dwordx4 v%d, s[%d:%d], s%d offen lds" % (vWD, S_WO, S_WO + 3, sTMP))
        vm.add("w%d" % n)
    def oload(h, f):
        if h % 2 == 0 and f == 0:
            k.I("s_add_u32 s%d, s%d, %d" % (28, sO, h * 2048))
        k.I("buffer_load_dwordx4 a[%d:%d], v%d, s[%d:%d], s28 offen offset:%d" % (8 * h + 4 * f, 8 * h + 4 * f + 3, vL16, S_WS, S_WS + 3, (h % 2) * 2048 + 1024 * f))
        vm.add("o%d" % h)
    AHEAD = opt("ahead", 5)
    wneed = lambda h: (28 * h + 31) // 32
    nextw = 0
    def issue_head(h):
        nonlocal nextw
        L = []
        while nextw <= wneed(h):
            L.append(lambda n=nextw: wdma(n)); nextw += 1
        L.append(lambda: oload(h, 0)); L.append(lambda: oload(h, 1))
        return L
    for h in range(AHEAD):
        for f in issue_head(h): f()
    srd(k, S_OUT, 0, 1, 2048 * 1792)
    k.I("""
    v_lshrrev_b32 v{h}, 5, v{l}
    v_lshlrev_b32 v{wr}, 9, v{h}
    v_bfe_u32 v{c}, v{l}, 2, 2
    v_lshl_add_u32 v{wr}, v{c}, 7, v{wr}
    v_bfe_u32 v{c}, v{l}, 3, 1
    v_lshl_add_u32 v{wr}, v{c}, 6, v{wr}
    v_bfe_u32 v{c}, v{l}, 4, 1
    v_lshl_add_u32 v{wr}, v{c}, 5, v{wr}
    v_and_b32 v{c}, 3, v{l}
    v_lshl_add_u32 v{wr}, v{c}, 3, v{wr}
    v_xor_b32 v{wr1}, 64, v{wr}
    v_and_b32 v{c}, 31, v{l}
    v_mul_u32_u24 v{c}, 1792, v{c}
    v_lshl_add_u32 v{st}, v{h}, 4, v{c}
    s_mul_i32 s{rb}, s{rb}, {r32}
    s_mul_i32 s{tmp}, s{br}, 896
    s_add_u32 s{rb}, s{rb}, s{tmp}
    s_lshl_b32 s{tmp}, s{cg}, 7
    s_add_u32 s{rb}, s{rb}, s{tmp}
    """.format(h=T, c=T + 1, l=vL, wr=vWR, wr1=vWR1, st=vST, rb=sRB, r32=32 * 1792, tmp=sTMP, br=sBR, cg=sCG))
    if opt("fl", 1):
        k.I("""
        s_lshl_b32 s{tmp}, s{w}, 12
        s_add_u32 s{tmp}, s{tmp}, {base}
        v_and_b32 v{c}, 31, v{l}
        v_lshlrev_b32 v{d}, 7, v{c}
        v_add_u32 v{d}, s{tmp}, v{d}
        v_and_b32 v{c}, 7, v{l}
        v_xor_b32 v{c}, v{c}, v{h}
        v_lshl_add_u32 v8, v{c}, 4, v{d}
        v_xor_b32 v9, 32, v8
        v_xor_b32 v10, 64, v8
        v_xor_b32 v11, 96, v8
        v_lshrrev_b32 v{d}, 3, v{l}
        v_and_b32 v{c}, 7, v{l}
        v_mul_u32_u24 v{st}, 1792, v{d}
        v_lshl_add_u32 v{st}, v{c}, 4, v{st}
        v_xor_b32 v{c}, v{c}, v{d}
        v_lshlrev_b32 v{d}, 7, v{d}
        v_lshl_add_u32 v12, v{c}, 4, v{d}
        v_add_u32 v12, s{tmp}, v12
        """.format(tmp=sTMP, w=sW, base=NR * 128, c=T + 1, d=T + 2, h=T, l=vL, st=vST))
    def wread(h):
        b = WF + 16 * (h & 1)
        for f in range(2):
            for c in range(2):
                for jj in range(2):
                    r = b + 8 * c + 4 * f + 2 * jj
                    k.I("ds_read_b64_tr_b16 v[%d:%d], v%d offset:%d" % (r, r + 1, vWR1 if c else vWR, (28 * h + 16 * f + 8 * jj) * 128))
    SYNC = opt("sync", 2)
    def sync(h):
        vm.wait(["w%d" % wneed(min(h + SYNC - 1, 15))])
        k.I("s_barrier")
    st()
    sync(0); st(); wread(0)
    for h in range(16):
        nl = 0
        if h + 1 < 16:
            if (h + 1) % SYNC == 0:
                sync(h + 1)
                if (h + 1) % 4 == 0: st()
            wread(h + 1); nl = 8
        vm.wait(["o%d" % h])
        k.I("s_waitcnt lgkmcnt(%d)" % nl)
        pend = issue_head(h + AHEAD) if h + AHEAD < 16 else []
        b = WF + 16 * (h & 1)
        for f in range(2):
            for c in range(2):
                k.I(mfma(vr(ACC[c], 16), vr(b + 8 * c + 4 * f, 4), ar(8 * h + 4 * f, 4), 0 if (h == 0 and f == 0) else None))
                if pend: pend.pop(0)()
        assert not pend
    st()
    OFL = ["", " sc1", " sc0 sc1", " nt", " sc1 nt"][opt("osc", 1)]
    if opt("fl", 1):
        for c in range(2):
            F = WF + 8 * c
            cvt8(k, F, ACC[c])
            for gp in range(2):
                k.I("v_permlane32_swap_b32 v%d, v%d" % (F + 4 * gp, F + 4 * gp + 2))
                k.I("v_permlane32_swap_b32 v%d, v%d" % (F + 4 * gp + 1, F + 4 * gp + 3))
                k.I("ds_write_b128 v%d, v[%d:%d]" % (8 + 2 * c + gp, F + 4 * gp, F + 4 * gp + 3))
        k.I("s_waitcnt lgkmcnt(0)")
        for i in range(4):
            k.I("ds_read_b128 v[%d:%d], v12 offset:%d" % (16 + 4 * i, 19 + 4 * i, 1024 * i))
        for i in range(4):
            k.I("s_waitcnt lgkmcnt(%d)" % (3 - i))
            k.I("buffer_store_dwordx4 v[%d:%d], v%d, s[%d:%d], s%d offen%s" % (16 + 4 * i, 19 + 4 * i, vST, S_OUT, S_OUT + 3, sRB, OFL))
            if i < 3: k.I("s_add_u32 s%d, s%d, %d" % (sRB, sRB, 8 * 1792))
    else:
        for c in range(2):
            F = WF + 8 * c
            cvt8(k, F, ACC[c])
            for gp in range(2):
                k.I("v_permlane32_swap_b32 v%d, v%d" % (F + 4 * gp, F + 4 * gp + 2))
                k.I("v_permlane32_swap_b32 v%d, v%d" % (F + 4 * gp + 1, F + 4 * gp + 3))
                k.I("buffer_store_dwordx4 v[%d:%d], v%d, s[%d:%d], s%d offen offset:%d" % (F + 4 * gp, F + 4 * gp + 3, vST, S_OUT, S_OUT + 3, sRB, 64 * c + 32 * gp))
    st.dump(S_WS)
    k.label("L3_end")
    k.I("s_endpgm")
    k.label("L_code_end")
    return k, dict(grid=224, block=256, lds=NR * 128 + 16384, vgpr=96, agpr=128, sgpr=102 if STAMP else 32)

HEADER = open("cdna_kernels/%s.s.ref" % NAME).read().split("; Override launch geometry")[0]

def build(kernels):
    out = [HEADER.rstrip("\n")]
    for k, cfg in kernels:
        out.append("; @launch kernel=%s grid=(%d,1,1) block=(%d,1,1) lds=%d" % (k.name, cfg["grid"], cfg["block"], cfg["lds"]))
    out.append('.amdgcn_target "amdgcn-amd-amdhsa--gfx950"')
    out.append(".text")
    for k, cfg in kernels:
        k.fix_hazards(verbose=("-v" in sys.argv))
        out += [".globl %s" % k.name, ".p2align %d" % opt("kalign", 12), ".type %s,@function" % k.name, "%s:" % k.name, k.text()]
    out.append('.section .rodata,"a"')
    for k, cfg in kernels:
        acc = (cfg["vgpr"] + 3) // 4 * 4
        out += [".p2align 6", ".amdhsa_kernel %s" % k.name,
                "  .amdhsa_next_free_vgpr %d" % (acc + cfg["agpr"] if cfg["agpr"] else cfg["vgpr"]),
                "  .amdhsa_next_free_sgpr %d" % cfg["sgpr"],
                "  .amdhsa_accum_offset %d" % acc,
                "  .amdhsa_group_segment_fixed_size 0",
                "  .amdhsa_kernarg_size 80",
                "  .amdhsa_user_sgpr_count 2",
                "  .amdhsa_user_sgpr_kernarg_segment_ptr 1",
                "  .amdhsa_system_sgpr_workgroup_id_x 1",
                ".end_amdhsa_kernel"]
    return "\n".join(out) + "\n"

if __name__ == "__main__":
    txt = build([gen_k1(), gen_k2()] + ([] if FUSE else [gen_k3()]))
    path = "cdna_kernels/%s.s" % NAME
    for a in sys.argv[1:]:
        if a.endswith(".s"): path = a
    open(path, "w").write(txt)
    print("wrote", path, len(txt), "bytes")
```
